```python
import torch

def _softmax(x, axis=-1):
    return torch.softmax(x, dim=axis)
def _gelu(x):
    return torch.nn.functional.gelu(x, approximate="tanh")
def _silu(x):
    return torch.nn.functional.silu(x)
def _sigmoid(x):
    return torch.sigmoid(x)
def _layernorm(x, axis=-1, eps=1e-5):
    m = x.mean(dim=axis, keepdim=True)
    v = x.var(dim=axis, keepdim=True, unbiased=False)
    return (x - m) / torch.sqrt(v + eps)
def _scatter_add(tgt, idx, src, axis=0):
    return tgt.clone().index_add_(axis, idx, src)
def _segment_sum(src, seg, n):
    out = torch.zeros((n,) + src.shape[1:], dtype=src.dtype)
    return out.index_add_(0, seg, src)
def _pad(x, pw):
    flat = tuple(v for pair in reversed(pw) for v in pair)
    return torch.nn.functional.pad(x, flat)

kernel_name = 'interleave_layers__linear_attn_block__dense_activation_gelu__prompt'

def setup_inputs():

    _w = (lambda a: (lambda t: t.to(torch.bfloat16) if t.is_floating_point() else t)(torch.as_tensor(a)))
    def _A_setup():
        B, S, D = 1, 2048, 1024
        return {
            "x": _w((lambda *s: torch.randn(*s, dtype=torch.bfloat16) * 0.05)(B, S, D)),
            "wqkv": _w((lambda *s: torch.randn(*s, dtype=torch.bfloat16) * 0.05)(D, 3 * D)),
            "wo": _w((lambda *s: torch.randn(*s, dtype=torch.bfloat16) * 0.05)(D, D)),
        }
    _A_in = _A_setup()

    def _B_setup():
        B, S, D, F = 1, 2048, 1024, 3584
        return {
            "x": _w((lambda *s: torch.randn(*s, dtype=torch.bfloat16) * 0.05)(B, S, D)),
            "w1": _w((lambda *s: torch.randn(*s, dtype=torch.bfloat16) * 3.2)(D, F) * (D ** -0.5)),
            "b1": _w((lambda *s: torch.randn(*s, dtype=torch.bfloat16) * 0.8)(F) * 0.01),
            "w2": _w((lambda *s: torch.randn(*s, dtype=torch.bfloat16) * 0.8)(F, D) * (F ** -0.5)),
            "b2": _w((lambda *s: torch.randn(*s, dtype=torch.bfloat16) * 0.8)(D) * 0.01),
        }
    _B_in = _B_setup()

    return {
        "A_x": _A_in["x"],
        "A_wqkv": _A_in["wqkv"],
        "A_wo": _A_in["wo"],
        "B_x": _B_in["x"],
        "B_w1": _B_in["w1"],
        "B_b1": _B_in["b1"],
        "B_w2": _B_in["w2"],
        "B_b2": _B_in["b2"],
    }

def reference(A_x, A_wqkv, A_wo, B_x, B_w1, B_b1, B_w2, B_b2):
    def _A_ref(x, wqkv, wo):
        B, S, D = x.shape
        H = 32; Dh = D // H
        qkv = (lambda x, *d: x.permute(*d))((x @ wqkv).reshape(B, S, 3, H, Dh), 2, 0, 3, 1, 4)
        q, k, v = qkv[0], qkv[1], qkv[2]
        phi = lambda t: torch.where(t > 0, t + 1, torch.exp(t)) + 1e-6
        pq, pk = phi(q), phi(k)
        kv = torch.einsum("bhsd,bhse->bhde", pk, v)
        z = torch.einsum("bhsd->bhd", pk)
        num = torch.einsum("bhqd,bhde->bhqe", pq, kv)
        den = torch.einsum("bhqd,bhd->bhq", pq, z)[..., None] + 1e-6
        o = num / den
        return (lambda x, *d: x.permute(*d))(o, 0, 2, 1, 3).reshape(B, S, D) @ wo

    def _B_ref(x, w1, b1, w2, b2):
        h = torch.einsum("bsd,df->bsf", x, w1) + b1
        h = _gelu(h)
        return torch.einsum("bsf,fd->bsd", h, w2) + b2

    x = A_x
    x = x + _A_ref(_layernorm(x, axis=-1), A_wqkv, A_wo)
    x = x + _B_ref(_layernorm(x, axis=-1), B_w1, B_b1, B_w2, B_b2)
    x = x + _A_ref(_layernorm(x, axis=-1), A_wqkv, A_wo)
    x = x + _B_ref(_layernorm(x, axis=-1), B_w1, B_b1, B_w2, B_b2)
    return x
```

```python
class Asm:
    def __init__(self):
        self.lines = []
        self._uid = 0
    def __call__(self, s=""):
        for l in s.split("\n"):
            l = l.strip()
            if l:
                self.lines.append(("" if l.endswith(":") else "    ") + l)
    def label(self, name):
        self.lines.append(name + ":")
    def uid(self, p="L"):
        self._uid += 1
        return f"{p}_{self._uid}"
    def text(self):
        return "\n".join(self.lines) + "\n"

def vr(a, n=1):
    return f"v{a}" if n == 1 else f"v[{a}:{a+n-1}]"
def ar(a, n=1):
    return f"a{a}" if n == 1 else f"a[{a}:{a+n-1}]"
def sr(a, n=1):
    return f"s{a}" if n == 1 else f"s[{a}:{a+n-1}]"

def kernel_header(name):
    return (f".globl {name}\n.p2align 8\n.type {name},@function\n{name}:\n")

def kernel_desc(name, vgpr=256, accum=256, sgpr=102):
    return f""".amdhsa_kernel {name}
  .amdhsa_next_free_vgpr {vgpr}
  .amdhsa_next_free_sgpr {sgpr}
  .amdhsa_accum_offset {accum}
  .amdhsa_group_segment_fixed_size 0
  .amdhsa_kernarg_size 88
  .amdhsa_user_sgpr_count 2
  .amdhsa_user_sgpr_kernarg_segment_ptr 1
  .amdhsa_system_sgpr_workgroup_id_x 1
  .amdhsa_float_denorm_mode_32 3
.end_amdhsa_kernel
"""

def build_file(launches, kernels, comment=""):
    out = comment
    for (n, g, b, lds) in launches:
        out += f"; @launch kernel={n} grid=({g},1,1) block=({b},1,1) lds={lds}\n"
    out += '.amdgcn_target "amdgcn-amd-amdhsa--gfx950"\n.text\n'
    for (n, body, vg, ac, sg) in kernels:
        out += kernel_header(n) + body
    out += '.section .rodata,"a"\n'
    for (n, body, vg, ac, sg) in kernels:
        out += ".p2align 6\n" + kernel_desc(n, vg, ac, sg)
    return out
```

```python
import re, subprocess, os, tempfile

REG = re.compile(r'(?<![\w.])([vsa])(?:(\d+)|\[(\d+):(\d+)\])')
TRANS = ("v_exp_f32", "v_log_f32", "v_rcp_f32", "v_rsq_f32", "v_sqrt_f32", "v_sin_f32", "v_cos_f32")
def regs(tok):
    out = set()
    for m in REG.finditer(tok):
        k = m.group(1)
        lo, hi = (int(m.group(2)),)*2 if m.group(2) else (int(m.group(3)), int(m.group(4)))
        out |= {(k, i) for i in range(lo, hi+1)}
    if re.search(r'\bvcc\b', tok): out |= {("s", "vcc")}
    if re.search(r'\bexec\b', tok): out |= {("s", "exec")}
    if re.search(r'\bm0\b', tok): out |= {("s", "m0")}
    return out

class I:
    def __init__(s, line):
        s.line = line
        t = line.strip()
        s.op = t.split()[0]
        rest = t[len(s.op):].strip()
        s.ops = [o.strip() for o in rest.split(",")] if rest else []
        op = s.op
        s.valu = op.startswith("v_") and not op.startswith("v_mfma")
        s.mfma = op.startswith("v_mfma")
        s.vmem = op.startswith(("buffer_", "global_"))
        s.ds = op.startswith("ds_")
        s.salu = op.startswith("s_")
        s.trans = op.replace("_e32", "").replace("_e64", "") in TRANS
        s.dpp = "quad_perm" in t or "row_" in t or "_dpp" in op
        s.perm = op.startswith("v_permlane")
        s.rdlane = op.startswith(("v_readfirstlane", "v_readlane"))
        s.ldsdma = s.vmem and (" lds" in t or "load_lds" in op)
        s.w, s.r = set(), set()
        if s.valu or s.mfma:
            nd = 1
            if op.startswith(("v_add_co", "v_addc_co", "v_sub_co", "v_subb_co", "v_mad_u64")): nd = 2
            for o in s.ops[:nd]: s.w |= regs(o)
            for o in s.ops[nd:]: s.r |= regs(o)
            if s.perm: s.w |= regs(s.ops[1]); s.r |= regs(s.ops[0])
            if op.startswith(("v_fmac", "v_dot2c", "v_pk_fmac")) or s.dpp: s.r |= regs(s.ops[0])
            if op.startswith("v_cmpx"): s.w.add(("s", "exec"))
            if s.mfma:
                s.ab = regs(s.ops[1]) | regs(s.ops[2]); s.c = regs(s.ops[3])
                s.passes = 8 if "32x32" in op else 4
        elif s.vmem:
            allr = set()
            for o in s.ops: allr |= regs(o)
            if "load" in op and not s.ldsdma:
                s.w = regs(s.ops[0])
                for o in s.ops[1:]: s.r |= regs(o)
            else:
                s.r = allr
                if "atomic" in op and " sc0" in t: s.w = regs(s.ops[0])
            s.wide = ("store" in op and ("x3" in op or "x4" in op))
            if s.wide: s.data = regs(s.ops[0]) if op.startswith("buffer") else regs(s.ops[1])
        elif s.ds:
            if "read" in op or "permute" in op or "swizzle" in op:
                s.w = regs(s.ops[0])
                for o in s.ops[1:]: s.r |= regs(o)
            else:
                for o in s.ops: s.r |= regs(o)
        elif s.salu:
            if s.ops and not op.startswith(("s_cmp", "s_waitcnt", "s_nop", "s_cbranch", "s_branch", "s_sleep", "s_setprio", "s_barrier", "s_bitcmp")):
                s.w = regs(s.ops[0])
                for o in s.ops[1:]: s.r |= regs(o)
            else:
                for o in s.ops: s.r |= regs(o)
    def states(s):
        if s.op == "s_nop": return int(s.ops[0]) + 1
        return 1

def need(p, c):
    n = 0
    vw = {x for x in p.w if x[0] in "va"}
    sw = {x for x in p.w if x[0] == "s"}
    if p.valu:
        if c.mfma and vw & c.r: n = max(n, 2)
        if c.valu and (c.dpp or c.perm) and vw & c.r: n = max(n, 2)
        if c.rdlane and vw & c.r: n = max(n, 1)
        if p.trans and c.valu and not c.trans and vw & c.r: n = max(n, 1)
        if p.trans and (c.vmem or c.ds) and vw & c.r: n = max(n, 1)
        if sw & c.r:
            if c.valu: n = max(n, 4 if c.rdlane or c.op.startswith("v_writelane") else 2)
            if c.vmem: n = max(n, 5)
            if c.salu: n = max(n, 1)
        if ("s", "exec") in sw:
            if c.mfma or c.perm or c.rdlane: n = max(n, 4)
            if c.dpp: n = max(n, 5)
        if ("op_sel" in p.line and not p.op.startswith("v_pk") or "sdwa" in p.op) and c.valu and vw & (c.r | c.w): n = max(n, 1)
        if p.op.startswith("v_dot") and c.valu and vw & (c.r | c.w) and not (c.op == p.op and not (vw & (regs(c.ops[1]) | regs(c.ops[2])))): n = max(n, 3)
        if p.op.startswith("v_dot") and (c.vmem or c.ds or c.mfma) and vw & c.r: n = max(n, 3)
    if p.mfma:
        big = {4: 8, 8: 12}[p.passes]
        if c.mfma:
            if vw & c.ab: n = max(n, big)
            if vw & c.c and not (vw == c.c and p.passes == c.passes): n = max(n, big - 2)
            if vw & c.w and not (vw & c.c): n = max(n, big - 2)
        elif (c.valu or c.vmem or c.ds) and vw & (c.r | c.w): n = max(n, big)
        if c.valu and p.c & c.w: n = max(n, p.passes - 1)
    if p.vmem and getattr(p, "wide", False) and (c.valu or c.mfma) and p.data & c.w: n = max(n, 2)
    if p.salu and ("s", "m0") in p.w and c.ldsdma: n = max(n, 1)
    return n

def is_instr(l):
    t = l.strip()
    return t and not t.endswith(":") and not t.startswith((".", ";"))

def fix_hazards(lines, report=None):
    out = []; hist = []
    for l in lines:
        if not is_instr(l):
            out.append(l); continue
        c = I(l)
        dist = 0; add = 0
        for p in reversed(hist):
            n = need(p, c)
            if n > dist: add = max(add, n - dist)
            dist += p.states()
            if dist >= 12: break
        if add:
            nl = f"    s_nop {add-1}"
            out.append(nl); hist.append(I(nl))
            if report is not None: report.append((add, l.strip()))
        out.append(l); hist.append(c)
        if c.op in ("s_branch", "s_endpgm", "s_setpc_b64"): hist = []
        hist = hist[-14:]
    return out

_size_cache = {}
def sizes(lines):
    todo = sorted({l.strip() for l in lines if is_instr(l)} - set(_size_cache))
    q = []
    for t in todo:
        if t.split()[0].startswith(("s_cbranch", "s_branch")): _size_cache[t] = 4
        elif re.search(r'[A-Za-z_]\w*-[A-Za-z_]\w*|@', t.split(None, 1)[1] if " " in t else ""): _size_cache[t] = 8
        else: q.append(t)
    if q:
        r = subprocess.run(["llvm-mc", "-triple=amdgcn-amd-amdhsa", "-mcpu=gfx950", "-show-encoding"], input="\n".join(q) + "\n", capture_output=True, text=True)
        assert r.returncode == 0, r.stderr[:3000]
        enc = re.findall(r'encoding: \[([^\]]*)\]', r.stdout)
        assert len(enc) == len(q), (len(enc), len(q))
        for t, e in zip(q, enc): _size_cache[t] = len(e.split(","))
    return _size_cache

NO_E64 = ("v_readfirstlane", "v_permlane", "v_nop", "v_accvgpr", "v_dot2c", "v_fmamk", "v_fmaak", "v_madak", "v_madmk", "v_swap")
def fix_align(lines):
    sz = sizes(lines)
    out = []; off = 0; last4 = None
    i = 0
    for l in lines:
        t = l.strip()
        if not is_instr(l):
            m = re.match(r'\.p2align\s+(\d+)', t)
            if m and int(m.group(1)) >= 3: off = 0; last4 = None
            out.append(l); continue
        n = sz[t]
        if n % 8 == 0 and off % 8 == 4:
            p = out[last4].strip(); op = p.split()[0]
            if op.startswith("v_") and not op.startswith(NO_E64) and "dpp" not in op and "sdwa" not in op and "_e64" not in op:
                out[last4] = "    " + op.replace("_e32", "") + "_e64" + p[len(op):]
            else:
                out.append("    s_nop 0")
            off += 4
        if n % 8 == 4: last4 = len(out)
        out.append(l); off += n
    return out
```

```python
import sys, struct, math
from asmlib import *
import fixup

NAME = "interleave_layers__linear_attn_block__dense_activation_gelu__prompt_kernel"
MB_ = 1 << 20
ROWF, LDF, COLF, COLL = 0, 4096, 8192, 12288
STAT = 1*MB_; STAT_I = 256*1024
CSP = 2*MB_; CSP_I = 256*1024
KVP = 3*MB_; KVP_L = 1*MB_
ZP = 5*MB_; ZP_L = 64*1024
OB = 8*MB_; X1B = 16*MB_; X2B = 24*MB_; ACT_L = 4*MB_
HB = 32*MB_; H_L = 16*MB_; H_RB = 56*16384
XB = 64*MB_; XB_I = 8*MB_
TS = 128*MB_
WSZ = 256*MB_
RES = 135168
L_RSTD = RES + 16384; L_NMR = L_RSTD + 512
L_CSQ = L_NMR + 512; L_CS1 = L_CSQ + 1024; L_B1 = L_CS1 + 1024
L_MODE = L_B1 + 1024
L_KVF = L_MODE + 64; L_ZF = L_KVF + 4096
LDS_BYTES = L_ZF + 2048
L_XCH = 98304
assert LDS_BYTES <= 163840
XSZ = 16384
def f2u(x): return struct.unpack("<I", struct.pack("<f", x))[0]
LOG2E = 1.4426950408889634
EPS = 1e-6
GC1 = -2.0*math.sqrt(2.0/math.pi)*LOG2E
GC2 = GC1*0.044715
SPIN = 1 << 16

S_RB, S_CB, S_XCD, S_W, S_L = 3, 4, 5, 6, 7
SX, SW, SWS, SM = 8, 12, 16, 20
P_X, P_WQKV, P_WO, P_W1, P_B1, P_W2, P_B2, P_OUT, P_DBG = 24, 26, 28, 32, 34, 36, 38, 40, 42
S_MODE, S_WM, S_WN, S_FB = 44, 45, 46, 47
T = 48
S_KX, S_KW, S_LX, S_LW, S_LH, S_LINE, S_CNT, S_SLOT, S_XSTR = 64, 65, 66, 67, 68, 69, 70, 71, 72
S_DLX, S_DLW = 73, 74
S_MASK = 76
S_PT = 78
S_COL = 80
S_TGT, S_SPIN, S_G4, S_BOOT = 84, 85, 86, 87
S_C = 88
S_ST = 96
VST = 255

class Ph:
    def __init__(s, name, subt, NST, n, ldb, swapped):
        s.name, s.subt, s.NST, s.n, s.ldb, s.swapped = name, subt, NST, n, ldb, swapped
        s.woff = []; o = XSZ
        for w in subt: s.woff.append(o); o += 64*w
        s.stage = o
        s.PW = sum(2 if w == 128 else 1 for w in subt); s.P = 4 + s.PW
        s.nblk = []
        for t, w in enumerate(subt):
            s.nblk += [(0, s.woff[t], w), (1, s.woff[t], w)] if w == 128 else [(2, s.woff[t], w)]
        s.NB = len(s.nblk)
G1 = Ph("g1", [128]*3, 3, 16, 6144, [True]*2 + [False]*4)
G3 = Ph("g3", [128]*3 + [64], 3, 16, 7168, [True]*7)
G2 = Ph("g2", [128]*2, 4, 8, 2048, [True]*4)
G4 = Ph("g4", [128]*2, 4, 28, 2048, [True]*4)

class Gen:
    def __init__(g, stamps=False, force_slow=False):
        g.a = Asm(); g.stamps = stamps; g.force_slow = force_slow
        g.nst = {"c": 0, "l": 0}; g.stn = {"c": [], "l": []}
    def stamp(g, role, name, g24=False):
        if not g.stamps: return
        k = g.nst[role]; g.nst[role] += 2 if g24 else 1; assert g.nst[role] <= 32
        g.stn[role] += ["g2" + name, "g4" + name] if g24 else [name]
        g.a(f"""s_memrealtime s[{S_ST}:{S_ST+1}]
        s_lshl_b32 m0, s{S_L}, 5
        s_add_u32 m0, m0, {k}
        {f"s_add_u32 m0, m0, s{S_G4}" if g24 else ""}
        s_waitcnt lgkmcnt(0)
        v_writelane_b32 v{VST}, s{S_ST}, m0""")
    def srd(g, d, ptr, size, off_s=None):
        a = g.a
        if off_s is None: a(f"s_mov_b32 s{d}, s{ptr}\ns_mov_b32 s{d+1}, s{ptr+1}")
        else: a(f"s_add_u32 s{d}, s{ptr}, s{off_s}\ns_addc_u32 s{d+1}, s{ptr+1}, 0")
        a(f"s_mov_b32 s{d+2}, {size}\ns_mov_b32 s{d+3}, 0x20000")
    def poll(g, voff, soff, vt, srd=SWS, first_done=False, andmask=None, acquire=True):
        a = g.a; L = a.uid("poll"); C = a.uid("pollc"); D = a.uid("polld")
        a(f"s_mov_b32 s{S_SPIN}, {SPIN}")
        if first_done: a(f"s_branch {C}")
        a.label(L)
        a(f"buffer_load_dword v{vt}, v{voff}, s[{srd}:{srd+3}], {soff} offen sc1\ns_waitcnt vmcnt(0)")
        a.label(C)
        if andmask is not None:
            a(f"v_and_b32 v{vt+1}, {andmask}, v{vt}\nv_cmp_le_u32 vcc, s{S_TGT}, v{vt+1}")
        else:
            a(f"v_cmp_le_u32 vcc, s{S_TGT}, v{vt}")
        a(f"""s_andn2_b64 s[{S_PT}:{S_PT+1}], s[{S_MASK}:{S_MASK+1}], vcc
        s_cbranch_scc0 {D}
        s_sub_u32 s{S_SPIN}, s{S_SPIN}, 1
        s_cbranch_scc0 {L}""")
        a.label(D)
        if acquire:
            E = a.uid("polle")
            a(f"s_cmp_eq_u32 s{S_MODE}, 0\ns_cbranch_scc1 {E}\nbuffer_inv sc1\ns_waitcnt vmcnt(0)")
            a.label(E)
    def signal_row(g, code, vt):
        a = g.a; S = a.uid("sigs"); D = a.uid("sigd")
        a(f"""s_add_u32 s{T}, s{S_FB}, {code}
        v_mov_b32 v{vt}, s{T}
        s_cmp_eq_u32 s{S_MODE}, 0
        s_waitcnt vmcnt(0)
        s_cbranch_scc0 {S}
        buffer_store_dword v{vt}, v{V_FLG}, s[{SWS}:{SWS+3}], 0 offen
        s_branch {D}""")
        a.label(S)
        a(f"""buffer_wbl2 sc1
        s_waitcnt vmcnt(0)
        buffer_store_dword v{vt}, v{V_FLG}, s[{SWS}:{SWS+3}], 0 offen sc1""")
        a.label(D)

    def entry(g):
        a = g.a
        a(f"""s_cmp_ge_u32 s2, 256
        s_cbranch_scc1 L_end
        s_load_dwordx16 s[24:39], s[0:1], 0
        s_load_dwordx4 s[40:43], s[0:1], 64
        s_load_dwordx2 s[{SWS}:{SWS+1}], s[0:1], 80
        v_lshrrev_b32 v1, 6, v0
        v_and_b32 v0, 63, v0
        v_readfirstlane_b32 s{S_W}, v1
        s_and_b32 s{S_XCD}, s2, 7
        s_lshr_b32 s{S_CB}, s2, 4
        s_bfe_u32 s{S_RB}, s2, 0x10003
        s_lshl_b32 s{T}, s{S_XCD}, 1
        s_add_u32 s{S_RB}, s{S_RB}, s{T}
        s_mov_b32 s{S_L}, 0
        s_mov_b32 s{S_FB}, 0
        s_mov_b32 s{S_MODE}, 1
        s_mov_b32 s{SWS+2}, {WSZ}
        s_mov_b32 s{SWS+3}, 0x20000
        v_mov_b32 v{VST}, 0
        s_cmp_ge_u32 s{S_W}, 4
        s_cbranch_scc0 L_compute
        s_sub_u32 s{S_W}, s{S_W}, 4""")

    def finish(g, role):
        a = g.a
        wv = 0 if role == "c" else 4
        a(f"""s_lshl_b32 s{T}, s{S_RB}, 18
        s_lshl_b32 s{T+1}, s{S_CB}, 7
        s_add_u32 s{T+1}, s{T+1}, s{T}
        s_add_u32 s{T+2}, s{S_W}, {wv}
        s_lshl_b32 s{T+3}, s{T+2}, 15
        s_add_u32 s{T+1}, s{T+1}, s{T+3}
        s_lshl_b32 s{T+2}, s{T+2}, 11
        s_add_u32 s{T+2}, s{T+2}, {RES}""")
        g.srd(SM, P_OUT, 2048*2048)
        a(f"""v_lshrrev_b32 v20, 3, v0
        v_and_b32 v21, 7, v0
        v_lshlrev_b32 v22, 11, v20
        v_lshl_add_u32 v22, v21, 4, v22
        v_lshrrev_b32 v23, 4, v0
        v_xor_b32 v21, v21, v23
        v_lshlrev_b32 v21, 4, v21
        v_lshl_add_u32 v21, v20, 7, v21
        v_add_u32 v21, s{T+2}, v21
        v_xor_b32 v20, 64, v21
        v_add_u32 v23, 16384, v22
        s_waitcnt lgkmcnt(0)
        s_barrier
        ds_read_b128 v[24:27], v21
        ds_read_b128 v[28:31], v20 offset:1024
        s_waitcnt lgkmcnt(1)
        buffer_store_dwordx4 v[24:27], v22, s[{SM}:{SM+3}], s{T+1} offen
        s_waitcnt lgkmcnt(0)
        buffer_store_dwordx4 v[28:31], v23, s[{SM}:{SM+3}], s{T+1} offen""")
        if g.stamps:
            a("s_waitcnt vmcnt(0)")
            g.stamp(role, "end")
            a(f"""s_lshl_b32 s{T}, s2, 3
            s_add_u32 s{T}, s{T}, s{S_W}
            s_add_u32 s{T}, s{T}, {wv}
            s_lshl_b32 s{T}, s{T}, 8
            s_add_u32 s{T}, s{T}, {TS}
            v_lshlrev_b32 v20, 2, v0
            buffer_store_dword v{VST}, v20, s[{SWS}:{SWS+3}], s{T} offen""")
        a("s_endpgm")

    def l_setup_w(g, p, natural=False):
        a = g.a; t0, t1, t2 = LV_T, LV_T+1, LV_T+2
        a(f"s_mov_b32 s{T+1}, {p.ldb}")
        krow = LV_KN if natural else LV_KF
        a(f"""v_mul_lo_u32 v{t0}, v{krow}, s{T+1}
        v_add_u32 v{t0}, v{t0}, v{LV_CH}
        v_xor_b32 v{t1}, 64, v{t0}
        v_add_u32 v{t1}, {(8 if natural else 4)*p.ldb - 1024}, v{t1}""")
        r = LV_W
        for t, w in enumerate(p.subt):
            if w == 128:
                a(f"v_add_u32 v{r}, s{S_COL+t}, v{t0}\nv_add_u32 v{r+1}, s{S_COL+t}, v{t1}"); r += 2
            else:
                a(f"v_mul_lo_u32 v{t2}, v{LV_KH}, s{T+1}\nv_add3_u32 v{r}, v{t2}, v{LV_CHH}, s{S_COL+t}"); r += 1
    def l_issue_x(g, p, slot):
        a = g.a
        if slot is None: a(f"s_mov_b32 m0, s{S_DLX}")
        else: a(f"s_add_u32 m0, s{S_LX}, {slot*p.stage}")
        for i in range(4):
            a(f"buffer_load_dwordx4 v{LV_X+i}, s[{SX}:{SX+3}], s{S_KX} offen offset:{1024*i} sc1 lds")
    def l_issue_w(g, p, slot):
        a = g.a; r = LV_W
        for t, w in enumerate(p.subt):
            base = S_LW if w == 128 else S_LH
            if slot is None: a(f"s_add_u32 m0, s{S_DLW}, {p.woff[t]}")
            else: a(f"s_add_u32 m0, s{base}, {slot*p.stage + p.woff[t]}")
            for q in range(2 if w == 128 else 1):
                a(f"buffer_load_dwordx4 v{r}, s[{SW}:{SW+3}], s{S_KW} offen offset:{1024*q} lds"); r += 1
    def l_line(g, p, i, x=True, w=True):
        a = g.a; src = f"s{S_CNT}" if i is None else str(i)
        if p in (G1, G3):
            a(f"s_add_u32 s{S_LINE}, s{S_RB}, {src}\ns_and_b32 s{S_LINE}, s{S_LINE}, 15")
        elif p is G2:
            a(f"""s_add_u32 s{S_LINE}, s{S_XCD}, {src}
            s_and_b32 s{S_LINE}, s{S_LINE}, 7
            s_and_b32 s{T}, s{S_CB}, 8
            s_add_u32 s{S_LINE}, s{S_LINE}, s{T}""")
        elif i is None or i < 24:
            a(f"""s_add_u32 s{S_LINE}, s{S_XCD}, {src}
            s_and_b32 s{S_LINE}, s{S_LINE}, 7
            s_and_b32 s{T}, s{S_CB}, 8
            s_mul_i32 s{T}, s{T}, 3
            s_add_u32 s{S_LINE}, s{S_LINE}, s{T}
            s_and_b32 s{T}, {src}, 24
            s_add_u32 s{S_LINE}, s{S_LINE}, s{T}""")
        else:
            a(f"""s_add_u32 s{S_LINE}, s{S_XCD}, {src}
            s_and_b32 s{S_LINE}, s{S_LINE}, 3
            s_and_b32 s{T}, s{S_CB}, 8
            s_lshr_b32 s{T}, s{T}, 1
            s_add_u32 s{S_LINE}, s{S_LINE}, s{T}
            s_add_u32 s{S_LINE}, s{S_LINE}, 48""")
        if x: a(f"s_mul_i32 s{S_KX}, s{S_LINE}, s{S_XSTR}")
        if w: a(f"s_mul_i32 s{S_KW}, s{S_LINE}, {64*p.ldb}")
    def l_cols(g, p):
        a = g.a
        if p is G1:
            a(f"s_lshl_b32 s{S_COL}, s{S_CB}, 7\ns_add_u32 s{S_COL+1}, s{S_COL}, 2048\ns_add_u32 s{S_COL+2}, s{S_COL}, 4096")
        elif p is G3:
            a(f"""s_and_b32 s{T}, s{S_CB}, 7
            s_lshl_b32 s{T}, s{T}, 7
            s_lshr_b32 s{T+1}, s{S_CB}, 3
            s_mul_i32 s{S_COL}, s{T+1}, 3072
            s_add_u32 s{S_COL}, s{S_COL}, s{T}
            s_add_u32 s{S_COL+1}, s{S_COL}, 1024
            s_add_u32 s{S_COL+2}, s{S_COL}, 2048
            s_lshl_b32 s{T+1}, s{T+1}, 6
            s_add_u32 s{S_COL+3}, s{T}, s{T+1}
            s_add_u32 s{S_COL+3}, s{S_COL+3}, 6144""")
        else:
            a(f"s_lshl_b32 s{S_COL}, s{S_CB}, 7\ns_xor_b32 s{S_COL+1}, s{S_COL}, 1024")
    def l_runahead(g, p, wptr, xbase, xlayer, xrb):
        a = g.a
        g.srd(SW, wptr, {G1: 1024*6144, G2: 1024*2048, G3: 1024*7168, G4: 3584*2048}[p])
        g.l_cols(p); g.l_setup_w(p)
        for s in range(p.NST - 1):
            g.l_line(p, s, x=False); g.l_issue_w(p, s)
        a(f"""s_mul_i32 s{T}, s{S_L}, {xlayer}
        s_mul_i32 s{T+1}, s{S_RB}, {xrb}
        s_add_u32 s{T}, s{T}, s{T+1}
        s_add_u32 s{T}, s{T}, {xbase}""")
        g.srd(SX, SWS, xrb, T)
    def l_wait_rows(g, code, half):
        a = g.a
        a(f"s_add_u32 s{S_TGT}, s{S_FB}, {code}")
        if half:
            a(f"s_cmp_ge_u32 s{S_CB}, 8\ns_cselect_b32 s{S_MASK}, 0, -1\ns_cselect_b32 s{S_MASK+1}, -1, 0")
        else:
            a(f"s_mov_b64 s[{S_MASK}:{S_MASK+1}], -1")
        a(f"s_lshl_b32 s{T+4}, s{S_RB}, 8")
        g.poll(LV_L4, f"s{T+4}", LV_T)
    def l_main(g, p, jobs=None, q0=None):
        a = g.a; N, n = p.NST, p.n
        jobs = jobs or {}
        if q0 is None:
            q = []
            for s in range(N - 1):
                g.l_line(p, s, w=False); g.l_issue_x(p, s); q += [s]*4
        else: q = list(q0)
        def wait(s):
            last = max(i for i, t in enumerate(q) if t == s)
            a(f"s_waitcnt vmcnt({len(q) - 1 - last})")
        s = 0
        while s < n:
            if p is G4 and s == 2:
                L = a.uid("g4l")
                a(f"s_mov_b32 s{S_CNT}, 5\ns_mov_b32 s{S_SLOT}, {1*p.stage}")
                a.label(L)
                a(f"s_add_u32 s{S_DLX}, s{S_LX}, s{S_SLOT}\ns_add_u32 s{S_DLW}, s{S_LW}, s{S_SLOT}")
                g.l_line(p, None)
                a(f"s_waitcnt vmcnt({p.P*(N-2)})\ns_barrier")
                g.l_issue_x(p, None); g.l_issue_w(p, None)
                a(f"""s_add_u32 s{S_SLOT}, s{S_SLOT}, {p.stage}
                s_and_b32 s{S_SLOT}, s{S_SLOT}, {N*p.stage - 1}
                s_add_u32 s{S_CNT}, s{S_CNT}, 1
                s_cmp_lt_u32 s{S_CNT}, 24
                s_cbranch_scc1 {L}""")
                for i in range(5, 24): q += [i]*p.P
                s = 21
                continue
            i = s + N - 1
            if i < n: g.l_line(p, i)
            wait(s); a("s_barrier")
            if (s, "pre") in jobs: jobs[(s, "pre")]()
            if i < n:
                g.l_issue_x(p, i % N); g.l_issue_w(p, i % N); q += [i]*p.P
            if (s, "post") in jobs: jobs[(s, "post")]()
            s += 1
        a("s_waitcnt lgkmcnt(0)\ns_barrier")

    def job_colsum(g, p):
        a = g.a; D = a.uid("csd"); Hf = a.uid("csh"); St = a.uid("css")
        F, A0, ONE = 64, 128, 60
        a(f"s_cmp_lg_u32 s{S_L}, 0\ns_cbranch_scc1 {D}")
        for i in range(4): a(f"v_mov_b32 v{ONE+i}, 0x3f803f80")
        a(f"s_cmp_eq_u32 s{S_W}, 3\ns_cbranch_scc1 {Hf if p is G3 else D}")
        a(f"""s_lshl_b32 s{T}, s{S_W}, 13
        s_add_u32 s{T}, s{T}, {XSZ}
        v_lshlrev_b32 v{LV_T}, 7, v{LV_TR}
        v_add3_u32 v{LV_T}, v{LV_T}, v{LV_TC}, s{T}""")
        for seg in range(4):
            a(f"v_xor_b32 v{LV_T+1}, {seg}, v{LV_TS}\nv_lshl_add_u32 v{LV_T+1}, v{LV_T+1}, 5, v{LV_T}")
            for kk in range(2):
                for h in range(2):
                    a(f"ds_read_b64_tr_b16 {vr(F+seg*8+kk*4+h*2,2)}, v{LV_T+1} offset:{(32*kk+4*h)*128}")
        a("s_waitcnt lgkmcnt(0)")
        for seg in range(4):
            for kk in range(2):
                a(f"v_mfma_f32_16x16x32_bf16 {vr(A0+4*seg,4)}, {vr(ONE,4)}, {vr(F+seg*8+kk*4,4)}, {'0' if kk == 0 else vr(A0+4*seg,4)}")
        if p is G3:
            a(f"s_branch {St}")
            a.label(Hf)
            a(f"""v_lshlrev_b32 v{LV_T}, 6, v{LV_TR}
            v_add_u32 v{LV_T}, v{LV_T}, v{LV_TC}
            v_add_u32 v{LV_T}, {p.woff[3]}, v{LV_T}
            v_lshrrev_b32 v{LV_T+2}, 1, v{LV_TS}""")
            for seg in range(2):
                a(f"v_xor_b32 v{LV_T+1}, {seg}, v{LV_T+2}\nv_lshl_add_u32 v{LV_T+1}, v{LV_T+1}, 5, v{LV_T}")
                for kk in range(2):
                    for h in range(2):
                        a(f"ds_read_b64_tr_b16 {vr(F+seg*8+kk*4+h*2,2)}, v{LV_T+1} offset:{(32*kk+4*h)*64}")
            a("s_waitcnt lgkmcnt(0)")
            for seg in range(2):
                for kk in range(2):
                    a(f"v_mfma_f32_16x16x32_bf16 {vr(A0+4*seg,4)}, {vr(ONE,4)}, {vr(F+seg*8+kk*4,4)}, {'0' if kk == 0 else vr(A0+4*seg,4)}")
            a.label(St)
        a(f"""s_nop 7
        v_cmp_gt_u32 vcc, 16, v0
        v_cndmask_b32 v{A0}, v{A0+4}, v{A0}, vcc
        v_cmp_gt_u32 vcc, 48, v0
        v_cndmask_b32 v{A0+8}, v{A0+12}, v{A0+8}, vcc
        v_cmp_gt_u32 vcc, 32, v0
        v_cndmask_b32 v{A0}, v{A0+8}, v{A0}, vcc
        s_lshl_b32 s{T}, s{S_CB}, 14
        s_lshl_b32 s{T+1}, s{S_RB}, 10
        s_add_u32 s{T}, s{T}, s{T+1}
        s_add_u32 s{T}, s{T}, {CSP + (CSP_I if p is G3 else 0)}
        buffer_store_dword v{A0}, v{LV_T4}, s[{SWS}:{SWS+3}], s{T} offen sc1""")
        a.label(D)
    def stat_base(g, p, d):
        g.a(f"""s_lshl_b32 s{d}, s{S_L}, 19
        s_lshl_b32 s{d+1}, s{S_RB}, 14
        s_add_u32 s{d}, s{d}, s{d+1}
        s_add_u32 s{d}, s{d}, {STAT + (STAT_I if p is G3 else 0)}""")
    def job_stats(g, p):
        a = g.a; F = 64; U = 84; SQ = 90
        a(f"""v_bfe_u32 v{LV_T}, v0, 2, 2
        v_lshlrev_b32 v{LV_T}, 4, v{LV_T}
        v_lshl_add_u32 v{LV_T}, v0, 6, v{LV_T}
        s_add_u32 s{T}, s{S_LX}, {RES}
        v_add_u32 v{LV_T}, s{T}, v{LV_T}""")
        for i in range(4):
            a(f"v_xor_b32 v{LV_T+1}, {16*i}, v{LV_T}\nds_read_b128 {vr(F+4*i,4)}, v{LV_T+1}")
        for i in range(4): a(f"v_mov_b32 v{SQ+i}, 0")
        a("s_waitcnt lgkmcnt(0)")
        for i in range(16):
            u = U + 2*(i % 2)
            a(f"""v_lshlrev_b32 v{u}, 16, v{F+i}
            v_and_b32 v{u+1}, 0xffff0000, v{F+i}
            v_pk_add_f32 {vr(SQ,2)}, {vr(SQ,2)}, {vr(u,2)}
            v_pk_fma_f32 {vr(SQ+2,2)}, {vr(u,2)}, {vr(u,2)}, {vr(SQ+2,2)}""")
        g.stat_base(p, T)
        a(f"""v_add_f32 v{SQ}, v{SQ}, v{SQ+1}
        v_add_f32 v{SQ+2}, v{SQ+2}, v{SQ+3}
        v_and_b32 v{U}, 1, v0
        v_cmp_eq_u32 vcc, 0, v{U}
        v_add_f32_dpp v{SQ+1}, v{SQ}, v{SQ} quad_perm:[1,0,3,2] row_mask:0xf bank_mask:0xf
        v_add_f32_dpp v{SQ+3}, v{SQ+2}, v{SQ+2} quad_perm:[1,0,3,2] row_mask:0xf bank_mask:0xf
        s_lshl_b32 s{T+1}, s{S_CB}, 10
        s_add_u32 s{T}, s{T}, s{T+1}
        v_cndmask_b32 v{SQ}, v{SQ+3}, v{SQ+1}, vcc
        buffer_store_dword v{SQ}, v{LV_T4}, s[{SWS}:{SWS+3}], s{T} offen sc1""")
    def job_signal(g, p):
        a = g.a; D = a.uid("jsd"); B = a.uid("jsb")
        a(f"s_cmp_lg_u32 s{S_W}, 0\ns_cbranch_scc1 {D}")
        if p is G1:
            a(f"s_cmp_lg_u32 s{S_L}, 0\ns_cbranch_scc1 {B}")
            g.srd(SM, P_DBG, 256)
            a(f"""s_lshl_b32 s{T}, s{S_XCD}, 5
            v_mov_b32 v{LV_T}, s{S_BOOT}
            buffer_atomic_add v{LV_T}, v{LV_ONE}, s[{SM}:{SM+3}], s{T} offen sc1
            s_branch {D}""")
            a.label(B)
        a(f"""s_lshl_b32 s{T}, s{S_L}, 1
        s_add_u32 s{T}, s{T}, {1 if p is G3 else 0}
        v_mov_b32 v{LV_T}, s{T}
        s_lshl_b32 s{T}, s{S_RB}, 7
        s_lshl_b32 s{T+1}, s{S_CB}, 2
        s_add_u32 s{T}, s{T}, s{T+1}
        s_add_u32 s{T}, s{T}, {LDF}
        buffer_store_dword v{LV_T}, v{LV_ONE}, s[{SWS}:{SWS+3}], s{T} offen sc1""")
        if p is G3:
            a(f"""s_lshl_b32 s{T}, s{S_CB}, 7
            s_lshl_b32 s{T+1}, s{S_RB}, 2
            s_add_u32 s{T}, s{T}, s{T+1}
            s_add_u32 s{T}, s{T}, {COLL}
            buffer_store_dword v{LV_T}, v{LV_ONE}, s[{SWS}:{SWS+3}], s{T} offen sc1""")
        a.label(D)
    def job_poll_issue(g, p):
        a = g.a; B = a.uid("jpb"); D = a.uid("jpd")
        if p is G1:
            a(f"s_cmp_lg_u32 s{S_L}, 0\ns_cbranch_scc1 {B}")
            g.srd(SM, P_DBG, 256)
            a(f"buffer_load_dword v{LV_PV}, v{LV_L4}, s[{SM}:{SM+3}], 0 offen sc1\ns_branch {D}")
            a.label(B)
        a(f"buffer_load_dword v{LV_PV}, v{LV_PA}, s[{SWS}:{SWS+3}], 0 offen sc1")
        a.label(D)
    def job_gather(g, p):
        a = g.a; B = a.uid("jgb"); D = a.uid("jgd"); E = a.uid("jge")
        if p is G1:
            a(f"s_cmp_lg_u32 s{S_L}, 0\ns_cbranch_scc1 {B}")
            g.srd(SM, P_DBG, 256)
            a(f"s_mov_b32 s{S_TGT}, 32\ns_mov_b32 s{S_MASK}, 0x01010101\ns_mov_b32 s{S_MASK+1}, 0x01010101")
            g.poll(LV_L4, "0", LV_PV, srd=SM, first_done=True, andmask=63, acquire=False)
            a(f"""s_lshl_b32 s{T}, s{S_XCD}, 3
            s_lshl_b32 s{T+1}, s{S_BOOT}, 5
            v_readlane_b32 s{T+2}, v{LV_PV}, s{T}
            s_cmp_lg_u32 s{T+2}, s{T+1}
            s_cselect_b32 s{S_MODE}, 1, {1 if g.force_slow else 0}
            v_mov_b32 v{LV_T}, {L_MODE}
            v_mov_b32 v{LV_T+1}, s{S_MODE}
            ds_write_b32 v{LV_T}, v{LV_T+1}
            s_branch {D}""")
            a.label(B)
            a(f"s_mov_b32 s{S_TGT}, 2\ns_mov_b64 s[{S_MASK}:{S_MASK+1}], 0xffff")
        else:
            a(f"""s_lshl_b32 s{S_TGT}, s{S_L}, 1
            s_add_u32 s{S_TGT}, s{S_TGT}, 1
            s_cmp_eq_u32 s{S_L}, 0
            s_cselect_b32 s{S_MASK}, -1, 0xffff
            s_mov_b32 s{S_MASK+1}, 0""")
        g.poll(LV_PA, "0", LV_PV, first_done=True, acquire=False)
        a.label(D)
        g.stat_base(p, T)
        for i in range(16):
            if i % 4 == 0 and i: a(f"s_add_u32 s{T}, s{T}, 4096")
            a(f"buffer_load_dword v{64+i}, v{LV_T4}, s[{SWS}:{SWS+3}], s{T} offen offset:{1024*(i%4)} sc1")
        a(f"""s_cmp_lg_u32 s{S_L}, 0
        s_cbranch_scc1 {E}
        s_lshl_b32 s{T}, s{S_CB}, 14
        s_add_u32 s{T}, s{T}, {CSP + (CSP_I if p is G3 else 0)}""")
        for i in range(16):
            if i % 4 == 0 and i: a(f"s_add_u32 s{T}, s{T}, 4096")
            a(f"buffer_load_dword v{80+i}, v{LV_T4}, s[{SWS}:{SWS+3}], s{T} offen offset:{1024*(i%4)} sc1")
        if p is G3:
            g.srd(SM, P_B1, 3584*2)
            a(f"""s_cmp_eq_u32 s{S_W}, 1
            s_cselect_b32 s{T}, s{S_COL+1}, s{S_COL}
            s_cmp_eq_u32 s{S_W}, 2
            s_cselect_b32 s{T}, s{S_COL+2}, s{T}
            s_cmp_eq_u32 s{S_W}, 3
            s_cselect_b32 s{T}, s{S_COL+3}, s{T}
            v_lshlrev_b32 v{LV_T}, 1, v0
            buffer_load_ushort v96, v{LV_T}, s[{SM}:{SM+3}], s{T} offen""")
        a.label(E)
    def job_reduce(g, p):
        a = g.a; E = a.uid("jre")
        def tree(b):
            for st in (8, 4, 2):
                for i in range(0, st, 2): a(f"v_pk_add_f32 {vr(b+i,2)}, {vr(b+i,2)}, {vr(b+st+i,2)}")
            a(f"v_add_f32 v{b}, v{b}, v{b+1}")
        tree(64)
        a(f"""v_mul_f32 v64, {f2u(1/1024):#x}, v64
        v_and_b32 v70, 1, v0
        v_cmp_eq_u32 vcc, 0, v70
        v_mov_b32_dpp v65, v64 quad_perm:[0,0,2,2] row_mask:0xf bank_mask:0xf
        v_mov_b32_dpp v66, v64 quad_perm:[1,1,3,3] row_mask:0xf bank_mask:0xf
        v_fma_f32 v66, -v65, v65, v66
        v_max_f32 v66, 0, v66
        v_add_f32 v66, {f2u(1e-5):#x}, v66
        v_rsq_f32 v66, v66
        v_lshrrev_b32 v71, 1, v0
        v_lshlrev_b32 v71, 2, v71
        v_lshl_add_u32 v71, v70, 9, v71
        v_mul_f32 v65, -v65, v66
        s_lshl_b32 s{T}, s{S_W}, 7
        s_add_u32 s{T}, s{T}, {L_RSTD}
        v_add_u32 v71, s{T}, v71
        v_cndmask_b32 v65, v65, v66, vcc
        ds_write_b32 v71, v65
        s_cmp_lg_u32 s{S_L}, 0
        s_cbranch_scc1 {E}""")
        tree(80)
        a(f"v_add_u32 v71, {L_CSQ}, v{LV_T4}\nds_write_b32 v71, v80 offset:{0 if p is G1 else L_CS1 - L_CSQ}")
        if p is G3: a(f"v_lshlrev_b32 v96, 16, v96\nds_write_b32 v71, v96 offset:{L_B1 - L_CSQ}")
        a.label(E)
    def ln_jobs(g, p):
        return {(0, "post"): lambda: g.job_colsum(p), (1, "post"): lambda: g.job_stats(p), (4, "post"): lambda: g.job_signal(p),
                (11, "pre"): lambda: g.job_poll_issue(p), (12, "pre"): lambda: g.job_gather(p), (14, "post"): lambda: g.job_reduce(p)}

    def l_kv_gather(g):
        a = g.a; F = 64; Z = 128; S = 132; U = 140
        a(f"""s_add_u32 s{S_TGT}, s{S_L}, 1
        s_mov_b64 s[{S_MASK}:{S_MASK+1}], -1
        s_lshl_b32 s{T+4}, s{S_CB}, 8
        s_add_u32 s{T+4}, s{T+4}, {COLF}
        s_lshl_b32 s{T}, s{S_L}, 20
        s_lshl_b32 s{T+1}, s{S_CB}, 16
        s_add_u32 s{T}, s{T}, s{T+1}
        s_lshl_b32 s{T+1}, s{S_W}, 14
        s_add_u32 s{T}, s{T}, s{T+1}
        s_lshr_b32 s{T+2}, s{T}, 4
        s_add_u32 s{T}, s{T}, {KVP}
        s_add_u32 s{T+2}, s{T+2}, {ZP}
        v_and_b32 v{U}, 15, v0
        v_lshlrev_b32 v{U}, 6, v{U}
        v_and_b32 v{U+1}, 48, v0
        v_add_u32 v{U}, v{U}, v{U+1}""")
        g.poll(LV_L4, f"s{T+4}", LV_T, acquire=False)
        g.stamp("l", "kvflag")
        a(f"buffer_load_dwordx4 {vr(Z,4)}, v{U}, s[{SWS}:{SWS+3}], s{T+2} offen sc1")
        for i in range(16):
            if i % 4 == 0 and i: a(f"s_add_u32 s{T}, s{T}, 4096")
            a(f"buffer_load_dwordx4 {vr(F+4*i,4)}, v{LV_L16}, s[{SWS}:{SWS+3}], s{T} offen offset:{1024*(i%4)} sc1")
        a("s_waitcnt vmcnt(16)")
        for st in (8, 4, 2, 1):
            for i in range(4): a(f"v_add_f32_dpp v{Z+i}, v{Z+i}, v{Z+i} row_ror:{st} row_mask:0xf bank_mask:0xf")
        a(f"""v_cvt_pk_bf16_f32 v{Z}, v{Z}, v{Z+1}
        v_cvt_pk_bf16_f32 v{Z+1}, v{Z+2}, v{Z+3}
        s_lshr_b32 s{T}, s{S_W}, 1
        s_lshl_b32 s{T}, s{T}, 10
        s_and_b32 s{T+1}, s{S_W}, 1
        s_lshl_b32 s{T+1}, s{T+1}, 3
        s_add_u32 s{T}, s{T}, s{T+1}
        s_add_u32 s{T}, s{T}, {L_ZF}
        v_add_u32 v{U}, s{T}, v{LV_L16}
        ds_write_b64 v{U}, {vr(Z,2)}""")
        for i in range(16):
            a(f"s_waitcnt vmcnt({15-i})")
            for d in range(4):
                if i == 0:
                    a(f"v_lshlrev_b32 v{S+2*d}, 16, v{F+d}\nv_and_b32 v{S+2*d+1}, 0xffff0000, v{F+d}")
                else:
                    u = U + 2 + 2*(d % 2)
                    a(f"v_lshlrev_b32 v{u}, 16, v{F+4*i+d}\nv_and_b32 v{u+1}, 0xffff0000, v{F+4*i+d}\nv_pk_add_f32 {vr(S+2*d,2)}, {vr(S+2*d,2)}, {vr(u,2)}")
        for d in range(4): a(f"v_cvt_pk_bf16_f32 v{Z+d}, v{S+2*d}, v{S+2*d+1}")
        a(f"""s_add_u32 s{T}, s{S_LH}, {L_KVF}
        v_add_u32 v{U}, s{T}, v{LV_L16}
        ds_write_b128 v{U}, {vr(Z,4)}
        s_waitcnt lgkmcnt(0)
        s_barrier""")

    def loader(g):
        a = g.a; t0, t1, t2 = LV_T, LV_T+1, LV_T+2
        g.stamp("l", "start")
        a(f"""s_lshl_b32 s{S_LX}, s{S_W}, 12
        s_lshl_b32 s{S_LW}, s{S_W}, 11
        s_lshl_b32 s{S_LH}, s{S_W}, 10
        v_lshrrev_b32 v{t0}, 3, v0
        s_lshl_b32 s{T}, s{S_W}, 4
        v_add_u32 v{LV_KN}, s{T}, v{t0}
        v_and_b32 v{t2}, 7, v0
        v_and_b32 v{t1}, 2, v{t0}
        v_xor_b32 v{t1}, v{t1}, v{t2}
        v_lshlrev_b32 v{LV_CH}, 4, v{t1}
        s_lshl_b32 s{T}, s{S_W}, 5
        v_add_u32 v{t0}, s{T}, v{t0}
        v_lshlrev_b32 v{t0}, 11, v{t0}
        v_lshrrev_b32 v{t1}, 4, v0
        v_xor_b32 v{t1}, v{t1}, v{t2}
        v_lshl_add_u32 v{LV_X}, v{t1}, 4, v{t0}
        v_xor_b32 v{LV_X+1}, 64, v{LV_X}
        v_add_u32 v{LV_X+1}, {8*2048 - 1024}, v{LV_X+1}
        v_add_u32 v{LV_X+2}, {16*2048 - 2048}, v{LV_X}
        v_add_u32 v{LV_X+3}, {16*2048 - 2048}, v{LV_X+1}
        s_mov_b32 s{S_XSTR}, 128""")
        g.l_cols(G1); g.l_setup_w(G1, natural=True)
        a(f"s_lshl_b32 s{T}, s{S_RB}, 18\ns_waitcnt lgkmcnt(0)")
        g.srd(SX, P_X, 128*2048, T)
        g.srd(SW, P_WQKV, 1024*6144)
        g.l_line(G1, 0); g.l_issue_x(G1, 0); g.l_issue_w(G1, 0)
        a(f"s_lshl_b32 s{S_KX}, s{S_CB}, 7\ns_add_u32 m0, s{S_LX}, {RES}")
        for i in range(4): a(f"buffer_load_dwordx4 v{LV_X+i}, s[{SX}:{SX+3}], s{S_KX} offen offset:{1024*i} lds")
        g.l_line(G1, 1); g.l_issue_w(G1, 1)
        a(f"""s_lshr_b32 s{T}, s{S_W}, 1
        s_lshl_b32 s{T}, s{T}, 5
        s_and_b32 s{T+1}, s{S_W}, 1
        s_lshl_b32 s{T+1}, s{T+1}, 3
        s_add_u32 s{T}, s{T}, s{T+1}
        v_bfe_u32 v{t0}, v0, 3, 2
        v_lshrrev_b32 v{t1}, 5, v0
        v_lshl_add_u32 v{t0}, v{t1}, 4, v{t0}
        v_add_u32 v{LV_KF}, s{T}, v{t0}
        v_bfe_u32 v{t0}, v0, 2, 2
        v_lshl_add_u32 v{t0}, v{t1}, 2, v{t0}
        v_and_b32 v{t2}, 16, v0
        v_add3_u32 v{LV_KH}, v{t0}, v{t2}, s{T}
        v_lshlrev_b32 v{t1}, 1, v{t1}
        v_and_b32 v{t2}, 3, v0
        v_xor_b32 v{t1}, v{t1}, v{t2}
        v_lshlrev_b32 v{LV_CHH}, 4, v{t1}
        v_lshlrev_b32 v{LV_TC}, 3, v{t2}
        v_bfe_u32 v{LV_TS}, v0, 3, 2
        v_bfe_u32 v{t0}, v0, 2, 2
        v_lshrrev_b32 v{t1}, 4, v0
        v_lshl_add_u32 v{LV_TR}, v{t1}, 3, v{t0}
        v_lshlrev_b32 v{LV_L4}, 2, v0
        v_lshlrev_b32 v{LV_L16}, 4, v0
        s_lshl_b32 s{T}, s{S_W}, 8
        v_add_u32 v{LV_T4}, s{T}, v{LV_L4}
        v_cmp_eq_u32 vcc, 0, v0
        v_mov_b32 v{t0}, {WSZ}
        v_cndmask_b32 v{LV_ONE}, v{t0}, 0, vcc
        s_lshl_b32 s{T}, s{S_RB}, 7
        s_add_u32 s{T}, s{T}, {LDF}
        s_lshl_b32 s{T+1}, s{S_CB}, 7
        s_add_u32 s{T+1}, s{T+1}, {COLL - 64}
        v_mov_b32 v{t0}, s{T}
        v_mov_b32 v{t1}, s{T+1}
        v_cmp_gt_u32 vcc, 16, v0
        v_cndmask_b32 v{t0}, v{t1}, v{t0}, vcc
        v_add_u32 v{LV_PA}, v{t0}, v{LV_L4}
        s_getreg_b32 s{T}, hwreg(HW_REG_XCC_ID, 0, 4)
        s_and_b32 s{T}, s{T}, 7
        s_mul_i32 s{T+1}, s{T}, s{T}
        s_lshl_b32 s{T}, s{T}, 6
        s_lshl_b32 s{T+1}, s{T+1}, 14
        s_add_u32 s{S_BOOT}, s{T}, s{T+1}
        s_add_u32 s{S_BOOT}, s{S_BOOT}, 1""")
        a(f"""v_mov_b32 v{t0}, 0
        s_lshl_b32 s{T}, s{S_RB}, 8
        s_lshl_b32 s{T+1}, s{S_CB}, 4
        s_lshl_b32 s{T+2}, s{S_W}, 2
        s_add_u32 s{T+3}, s{T}, s{T+1}
        s_add_u32 s{T+3}, s{T+3}, s{T+2}
        buffer_store_dword v{t0}, v{LV_ONE}, s[{SWS}:{SWS+3}], s{T+3} offen sc1
        s_lshl_b32 s{T+3}, s{S_CB}, 8
        s_lshl_b32 s{T+4}, s{S_RB}, 4
        s_add_u32 s{T+3}, s{T+3}, s{T+4}
        s_add_u32 s{T+3}, s{T+3}, s{T+2}
        s_add_u32 s{T+3}, s{T+3}, {COLF}
        buffer_store_dword v{t0}, v{LV_ONE}, s[{SWS}:{SWS+3}], s{T+3} offen sc1
        s_lshl_b32 s{T}, s{S_RB}, 7
        s_lshl_b32 s{T+1}, s{S_CB}, 2
        s_add_u32 s{T}, s{T}, s{T+1}
        s_add_u32 s{T}, s{T}, {LDF}
        buffer_store_dword v{t0}, v{LV_ONE}, s[{SWS}:{SWS+3}], s{T} offen sc1
        s_lshl_b32 s{T}, s{S_CB}, 7
        s_lshl_b32 s{T+1}, s{S_RB}, 2
        s_add_u32 s{T}, s{T}, s{T+1}
        s_add_u32 s{T}, s{T}, {COLL}
        buffer_store_dword v{t0}, v{LV_ONE}, s[{SWS}:{SWS+3}], s{T} offen sc1""")
        g.l_issue_x(G1, 1)
        a(f"s_waitcnt vmcnt({4 + G1.PW + 4 + 4})\ns_branch L_l_g1b")
        a.label("L_l_layer")
        for s in range(2):
            g.l_line(G1, s, w=False); g.l_issue_x(G1, s)
        a("s_waitcnt vmcnt(4)")
        a.label("L_l_g1b")
        g.l_main(G1, g.ln_jobs(G1), q0=[0] + [-1]*50 + [1]*4)
        g.stamp("l", "g1end")
        a(f"v_add_u32 v{LV_X}, s{S_LX}, v{LV_L16}\ns_mov_b32 s{S_XSTR}, 16384")
        for i in range(1, 4): a(f"v_mov_b32 v{LV_X+i}, v{LV_X}")
        g.l_runahead(G2, P_WO, OB, ACT_L, 16*16384)
        a("s_barrier")
        g.l_kv_gather()
        g.stamp("l", "kvdone")
        g.l_wait_rows(1, True)
        g.stamp("l", "oflag")
        g.l_main(G2)
        g.l_runahead(G3, P_W1, X1B, ACT_L, 16*16384)
        g.l_wait_rows(3, False)
        g.stamp("l", "x1flag")
        g.l_main(G3, g.ln_jobs(G3))
        g.l_runahead(G4, P_W2, HB, H_L, H_RB)
        g.l_wait_rows(7, False)
        g.stamp("l", "hflag")
        g.l_main(G4)
        a(f"s_cmp_lg_u32 s{S_L}, 0\ns_cbranch_scc1 L_l_fin")
        g.l_runahead(G1, P_WQKV, X2B, 0, 16*16384)
        g.l_wait_rows(9, False)
        g.stamp("l", "x2flag")
        a(f"s_mov_b32 s{S_L}, 1\ns_mov_b32 s{S_FB}, 16\ns_branch L_l_layer")
        a.label("L_l_fin")
        g.finish("l")

    def c_main(g, p, reps):
        a = g.a; NB = p.NB; RW = 3 if NB == 6 else 4
        nwa = 3 if 64 in p.subt else 2
        def xr(par): return [f"ds_read_b128 {vr(XF + par*32 + mb*8 + kk*4, 4)}, v{V_XA+kk} offset:{mb*2048}" for mb in range(4) for kk in range(2)]
        def wr(nb):
            ri, off, w = p.nblk[nb]
            return [f"ds_read_b64_tr_b16 {vr(WF + (nb % RW)*8 + kk*4 + 2*h, 2)}, v{V_WA+ri} offset:{off + (32*kk + 4*h)*w}" for kk in range(2) for h in range(2)]
        def mf(par, nb):
            out = []
            for mb in range(4):
                for kk in range(2):
                    d = vr(ACC + 4*(nb*4 + mb), 4)
                    X, W = vr(XF + par*32 + mb*8 + kk*4, 4), vr(WF + (nb % RW)*8 + kk*4, 4)
                    A, B = (W, X) if p.swapped[nb] else (X, W)
                    out.append(f"v_mfma_f32_16x16x32_bf16 {d}, {A}, {B}, {d}")
            return out
        def inter(ms, rs):
            rs = list(rs)
            for m in ms:
                a(m)
                if rs: a(rs.pop(0))
            assert not rs
        for i in range(nwa): a(f"v_mov_b32 v{V_WA+i}, v{V_WA0+i}")
        for i in range(0, NB*16, 2): a(f"v_pk_mov_b32 {vr(ACC+i,2)}, 0, 0" if False else f"v_mov_b64 {vr(ACC+i,2)}, 0")
        a(f"s_mov_b32 s{S_CNT}, {reps}\ns_mov_b32 s{S_SLOT}, 0\ns_mov_b32 s{S_DLW}, {(-(p.NST-1)*p.stage) & 0xffffffff:#x}")
        a("s_waitcnt lgkmcnt(0)\ns_barrier")
        g.stamp("c", *(("b0", True) if p is G2 else (p.name + "b0",)))
        for r in wr(0) + xr(0) + wr(1): a(r)
        L = a.uid("cl")
        a(".p2align 3")
        a.label(L)
        for par in range(2):
            for nb in range(NB):
                if nb < NB - 2:
                    a("s_waitcnt lgkmcnt(4)")
                    ex = []
                    if nb == 0:
                        ex = [f"s_add_u32 s{S_SLOT}, s{S_SLOT}, 1\ns_cmp_eq_u32 s{S_SLOT}, {p.NST}",
                              f"s_cselect_b32 s{S_DLX}, s{S_DLW}, {p.stage}", f"s_cselect_b32 s{S_SLOT}, 0, s{S_SLOT}"]
                    if nb == NB - 3:
                        up = [f"v_add_u32 v{r}, s{S_DLX}, v{r}" for r in list(range(V_XA, V_XA+2)) + list(range(V_WA, V_WA+nwa))]
                        ex = ["\n".join(up[0:2]), "\n".join(up[2:4])] + up[4:]
                    inter(mf(par, nb), wr(nb + 2) + ex)
                elif nb == NB - 2:
                    a("s_waitcnt lgkmcnt(0)\ns_barrier")
                    nx = wr(0) + xr(1 - par) + wr(1)
                    inter(mf(par, nb), nx[:8])
                else:
                    nx = nx[8:]
                    if par == 1: nx[6] += f"\ns_sub_u32 s{S_CNT}, s{S_CNT}, 1\ns_cmp_lg_u32 s{S_CNT}, 0"
                    inter(mf(par, nb), nx)
        a(f"s_cbranch_scc1 {L}")
        a("s_waitcnt lgkmcnt(0)")
        g.stamp("c", *(("loop", True) if p is G2 else (p.name + "loop",)))

    def phi(g, t, u, dst):
        c = f"s[{S_C}:{S_C+1}]"
        return [f"v_pk_fma_f32 {vr(u,2)}, {vr(t,2)}, {c}, {c} op_sel:[0,0,1] op_sel_hi:[1,0,1]",
                f"v_max_f32 v{t}, s{S_C+2}, v{t}", f"v_max_f32 v{t+1}, s{S_C+2}, v{t+1}",
                f"v_exp_f32 v{u}, v{u} clamp", f"v_exp_f32 v{u+1}, v{u+1} clamp",
                f"v_pk_add_f32 {vr(t,2)}, {vr(t,2)}, {vr(u,2)}",
                f"v_cvt_pk_bf16_f32 v{dst}, v{t}, v{t+1}"]
    def zipemit(g, streams):
        streams = [list(s) for s in streams]
        while any(streams):
            for s in streams:
                if s: g.a(s.pop(0))

    def c_epi_g1(g):
        a = g.a
        acc = lambda nb, mb: ACC + 4*(nb*4 + mb)
        R, NM, CSN, RQ, CSQ_ = 16, 32, 48, 56, 64
        PK, VV, PQ, KV, U, ONE = 72, 88, 208, 224, 104, 248
        eps2 = f"s[{S_C+2}:{S_C+3}]"
        a(f"""s_mov_b32 s{S_C}, {f2u(LOG2E):#x}
        s_mov_b32 s{S_C+1}, {f2u(-EPS*LOG2E):#x}
        s_mov_b32 s{S_C+2}, {f2u(EPS):#x}
        s_mov_b32 s{S_C+3}, 0
        v_and_b32 v{U}, 48, v0
        v_and_b32 v{U+1}, 15, v0
        v_lshlrev_b32 v{U+1}, 2, v{U+1}
        s_lshl_b32 s{T}, s{S_WM}, 8
        s_add_u32 s{T}, s{T}, {L_RSTD}
        s_lshl_b32 s{T+1}, s{S_WN}, 7
        s_add_u32 s{T+1}, s{T+1}, {L_CSQ}
        v_add_u32 v{U+2}, s{T}, v{U}
        v_add_u32 v{U+3}, s{T+1}, v{U+1}
        v_add_u32 v{U+4}, s{T}, v{U+1}
        v_add_u32 v{U+5}, s{T+1}, v{U}
        v_mov_b32 v{U+6}, {L_MODE}""")
        for i in range(4): a(f"ds_read_b32 v{CSN+2*i}, v{U+3} offset:{256*(1 + i//2) + 64*(i%2)}")
        for mb in range(4):
            a(f"ds_read_b128 {vr(NM+4*mb,4)}, v{U+2} offset:{512 + 64*mb}\nds_read_b128 {vr(R+4*mb,4)}, v{U+2} offset:{64*mb}")
        a(f"ds_read_b32 v{U+7}, v{U+6}")
        a("s_waitcnt vmcnt(0) lgkmcnt(0)")
        for mb in range(4): a(f"ds_read2_b32 {vr(RQ+2*mb,2)}, v{U+4} offset0:{16*mb} offset1:{128 + 16*mb}")
        for b in range(2): a(f"ds_read_b128 {vr(CSQ_+4*b,4)}, v{U+5} offset:{64*b}")
        a(f"v_readfirstlane_b32 s{S_MODE}, v{U+7}")
        for i in range(4): a(f"v_mov_b32 v{ONE+i}, 0x3f803f80")
        for mb in range(4):
            st = []
            for b in range(2):
                for h in range(2):
                    t = acc(2+b, mb) + 2*h; u = U + 2*(2*b + h)
                    st.append([f"v_pk_fma_f32 {vr(u,2)}, {vr(NM+4*mb+2*h,2)}, {vr(CSN+2*b,2)}, {eps2} op_sel_hi:[1,0,0]",
                               f"v_pk_fma_f32 {vr(t,2)}, {vr(t,2)}, {vr(R+4*mb+2*h,2)}, {vr(u,2)}"]
                              + g.phi(t, u, PK + 8*b + 2*mb + h))
            g.zipemit(st)
            st = []
            for b in range(2):
                for h in range(2):
                    t = acc(4+b, mb) + 2*h; u = U + 2*(2*b + h)
                    st.append([f"v_pk_mul_f32 {vr(u,2)}, {vr(NM+4*mb+2*h,2)}, {vr(CSN+4+2*b,2)} op_sel_hi:[1,0]",
                               f"v_pk_fma_f32 {vr(t,2)}, {vr(t,2)}, {vr(R+4*mb+2*h,2)}, {vr(u,2)}",
                               f"v_cvt_pk_bf16_f32 v{VV + 8*b + 2*mb + h}, v{t}, v{t+1}"])
            g.zipemit(st)
            if mb % 2 == 1:
                u2 = mb // 2
                for eb in range(3):
                    for db in range(2):
                        d = vr(KV + 8*eb + 4*db, 4)
                        B = vr(VV + 8*eb + 4*u2, 4) if eb < 2 else vr(ONE, 4)
                        a(f"v_mfma_f32_16x16x32_bf16 {d}, {vr(PK + 8*db + 4*u2, 4)}, {B}, {'0' if u2 == 0 else d}")
        W1 = a.uid("kvw"); W2 = a.uid("kvx")
        a(f"""s_mul_i32 s{T}, s{S_W}, 3072
        s_add_u32 s{T}, s{T}, {L_XCH}
        s_xor_b32 s{T+1}, s{S_W}, 2
        s_mul_i32 s{T+1}, s{T+1}, 3072
        s_add_u32 s{T+1}, s{T+1}, {L_XCH}
        v_lshl_add_u32 v{U}, v0, 4, s{T}
        v_lshl_add_u32 v{U+1}, v0, 4, s{T+1}
        s_lshl_b32 s{T}, s{S_L}, 20
        s_lshl_b32 s{T+1}, s{S_CB}, 16
        s_add_u32 s{T}, s{T}, s{T+1}
        s_lshl_b32 s{T+1}, s{S_WN}, 15
        s_add_u32 s{T}, s{T}, s{T+1}
        s_lshl_b32 s{T+1}, s{S_WM}, 14
        s_add_u32 s{T}, s{T}, s{T+1}
        s_lshl_b32 s{T+1}, s{S_RB}, 10
        s_add_u32 s{T}, s{T}, s{T+1}
        s_lshr_b32 s{T+1}, s{T}, 4
        s_add_u32 s{T}, s{T}, {KVP}
        s_add_u32 s{T+1}, s{T+1}, {ZP}
        v_lshlrev_b32 v{U+2}, 4, v0
        v_and_b32 v{U+3}, 15, v0
        v_cmp_eq_u32 vcc, 0, v{U+3}
        v_mov_b32 v{U+3}, {WSZ}
        v_cndmask_b32 v{U+3}, v{U+3}, v0, vcc
        s_cmp_eq_u32 s{S_WM}, 0
        s_cbranch_scc0 {W1}""")
        for wm in range(2):
            if wm == 1: a.label(W1)
            keep = [KV + 8*wm, KV + 8*wm + 4, KV + 16 + 4*wm]
            send = [KV + 8*(1-wm), KV + 8*(1-wm) + 4, KV + 16 + 4*(1-wm)]
            for i in range(3): a(f"ds_write_b128 v{U}, {vr(send[i],4)} offset:{1024*i}")
            a("s_waitcnt lgkmcnt(0)\ns_barrier")
            for i in range(3): a(f"ds_read_b128 {vr(R+4*i,4)}, v{U+1} offset:{1024*i}")
            for i in range(3):
                a(f"s_waitcnt lgkmcnt({2-i})")
                for h in range(2): a(f"v_pk_add_f32 {vr(R+4*i+2*h,2)}, {vr(R+4*i+2*h,2)}, {vr(keep[i]+2*h,2)}")
            if wm == 0: a(f"s_branch {W2}")
        a.label(W2)
        for d in range(4): a(f"v_cvt_pk_bf16_f32 v{NM+d}, v{R+2*d}, v{R+2*d+1}")
        a(f"""buffer_store_dwordx4 {vr(NM,4)}, v{U+2}, s[{SWS}:{SWS+3}], s{T} offen sc1
        buffer_store_dwordx4 {vr(R+8,4)}, v{U+3}, s[{SWS}:{SWS+3}], s{T+1} offen sc1""")
        g.stamp("c", "kvst")
        for mb in range(4):
            st = []
            for b in range(2):
                for h in range(2):
                    t = acc(b, mb) + 2*h; u = U + 2*(2*b + h)
                    st.append([f"v_pk_fma_f32 {vr(u,2)}, {vr(CSQ_+4*b+2*h,2)}, {vr(RQ+2*mb,2)}, {eps2} op_sel:[0,1,0] op_sel_hi:[1,1,0]",
                               f"v_pk_fma_f32 {vr(t,2)}, {vr(t,2)}, {vr(RQ+2*mb,2)}, {vr(u,2)} op_sel_hi:[1,0,1]"]
                              + g.phi(t, u, PQ + 4*mb + 2*b + h))
            g.zipemit(st)
        a(f"""s_lshl_b32 s{T}, s{S_CB}, 8
        s_lshl_b32 s{T+1}, s{S_RB}, 4
        s_add_u32 s{T}, s{T}, s{T+1}
        s_lshl_b32 s{T+1}, s{S_W}, 2
        s_add_u32 s{T}, s{T}, s{T+1}
        s_add_u32 s{T}, s{T}, {COLF}
        s_add_u32 s{T+1}, s{S_L}, 1
        v_mov_b32 v{U}, s{T+1}
        s_waitcnt vmcnt(0)
        buffer_store_dword v{U}, v{V_ONE}, s[{SWS}:{SWS+3}], s{T} offen sc1
        s_lshl_b32 s{T}, s{S_WN}, 11
        s_add_u32 s{T}, s{T}, {L_KVF}
        v_lshl_add_u32 v{U+1}, v0, 4, s{T}
        s_lshl_b32 s{T}, s{S_WN}, 10
        s_add_u32 s{T}, s{T}, {L_ZF}
        v_lshl_add_u32 v{U+2}, v0, 4, s{T}
        s_lshl_b32 s{T}, s{S_L}, 22
        s_lshl_b32 s{T+1}, s{S_RB}, 18
        s_add_u32 s{T}, s{T}, s{T+1}
        s_lshl_b32 s{T+1}, s{S_CB}, 14
        s_add_u32 s{T}, s{T}, s{T+1}
        s_add_u32 s{T+2}, s{T}, {OB}
        s_add_u32 s{T+3}, s{T+2}, 4096""")
        g.stamp("c", "kvflag")
        a(f"""s_barrier
        ds_read_b128 {vr(R+8,4)}, v{U+2}
        ds_read_b128 {vr(R,4)}, v{U+1}
        ds_read_b128 {vr(R+4,4)}, v{U+1} offset:1024""")
        g.stamp("c", "bk2")
        a("s_waitcnt lgkmcnt(2)")
        for mb in range(4): a(f"v_mfma_f32_16x16x32_bf16 {vr(acc(2,mb),4)}, {vr(R+8,4)}, {vr(PQ+4*mb,4)}, 0")
        a("s_waitcnt lgkmcnt(0)")
        for mb in range(4):
            for eb in range(2): a(f"v_mfma_f32_16x16x32_bf16 {vr(acc(eb,mb),4)}, {vr(R+4*eb,4)}, {vr(PQ+4*mb,4)}, 0")
        for mb in range(4): a(f"v_add_f32 v{acc(2,mb)}, s{S_C+2}, v{acc(2,mb)}")
        for mb in range(4): a(f"v_rcp_f32 v{acc(2,mb)}, v{acc(2,mb)}")
        for mb in range(4):
            for eb in range(2):
                for h in range(2):
                    t = acc(eb, mb) + 2*h
                    a(f"v_pk_mul_f32 {vr(t,2)}, {vr(t,2)}, {vr(acc(2,mb),2)} op_sel_hi:[1,0]")
            for eb in range(2):
                for h in range(2):
                    t = acc(eb, mb) + 2*h
                    a(f"v_cvt_pk_bf16_f32 v{acc(3,mb) + 2*eb + h}, v{t}, v{t+1}")
            a(f"buffer_store_dwordx4 {vr(acc(3,mb),4)}, v{V_FS}, s[{SWS}:{SWS+3}], s{T+2+mb//2} offen offset:{2048*(mb%2)}")
        g.signal_row(1, U)
        g.stamp("c", "osig")

    def c_epi_g24(g):
        a = g.a
        acc = lambda nb, mb: ACC + 4*(nb*4 + mb)
        RS, BI, PP, U, XO = 16, 32, 48, 40, 80
        NB_ = a.uid("nob"); FIN = a.uid("fin")
        a(f"""s_lshl_b32 s{T}, s{S_L}, 1
        s_add_u32 s{T}, s{T}, s{S_G4}
        s_lshl_b32 s{T}, s{T}, 23
        s_add_u32 s{T}, s{T}, {XB}
        s_lshl_b32 s{T+1}, s2, 15
        s_lshl_b32 s{T+2}, s{S_W}, 13
        s_add_u32 s{T+1}, s{T+1}, s{T+2}
        s_xor_b32 s{T+2}, s{T+1}, {128 << 15}
        s_add_u32 s{T+5}, s{T}, s{T+1}
        s_add_u32 s{T+6}, s{T+5}, 4096
        s_add_u32 s{T+7}, s{T}, s{T+2}
        s_add_u32 s{T+8}, s{T+7}, 4096
        v_lshlrev_b32 v{U}, 4, v0
        s_mul_i32 s{T+9}, s{S_G4}, 6
        s_add_u32 s{T+9}, s{T+9}, 2""")
        for i in range(8):
            a(f"buffer_store_dwordx4 {vr(acc(2,0)+4*i,4)}, v{U}, s[{SWS}:{SWS+3}], s{T+5+i//4} offen offset:{1024*(i%4)}")
        for mb in range(4):
            for b in range(2): a(f"ds_read_b64 {vr(RS+4*mb+2*b,2)}, v{V_RES+b} offset:{2048*mb}")
        g.signal_row(f"s{T+9}", U+1)
        g.stamp("c", "psig", True)
        a(f"s_cmp_eq_u32 s{S_G4}, 0\ns_cbranch_scc1 {NB_}")
        for mb in range(4):
            for b in range(2):
                for h in range(2):
                    t = acc(b, mb) + 2*h
                    a(f"v_pk_add_f32 {vr(t,2)}, {vr(t,2)}, {vr(V_B2+4*b+2*h,2)}")
        a.label(NB_)
        a("s_waitcnt lgkmcnt(0)")
        for mb in range(4):
            st = []
            for b in range(2):
                for h in range(2):
                    t = acc(b, mb) + 2*h; u = BI + 2*(2*b+h); r = RS + 4*mb + 2*b + h
                    st.append([f"v_lshlrev_b32 v{u}, 16, v{r}", f"v_and_b32 v{u+1}, 0xffff0000, v{r}", f"v_pk_add_f32 {vr(t,2)}, {vr(t,2)}, {vr(u,2)}"])
            g.zipemit(st)
        a(f"""s_add_u32 s{S_TGT}, s{S_FB}, s{T+9}
        s_mov_b64 s[{S_MASK}:{S_MASK+1}], 1
        v_xor_b32 v{U+2}, 128, v{V_FLG}""")
        g.poll(U+2, "0", U+3)
        g.stamp("c", "pflag", True)
        for mb in range(4):
            for b in range(2):
                i = b*4 + mb
                a(f"buffer_load_dwordx4 {vr(PP+4*i,4)}, v{U}, s[{SWS}:{SWS+3}], s{T+7+i//4} offen offset:{1024*(i%4)} sc1")
        a(f"""s_lshl_b32 s{T}, s{S_L}, 22
        s_add_u32 s{T}, s{T}, {X1B}
        s_cmp_eq_u32 s{S_G4}, 0
        s_cselect_b32 s{T}, s{T}, {X2B}
        s_lshl_b32 s{T+1}, s{S_RB}, 18
        s_add_u32 s{T}, s{T}, s{T+1}
        s_lshl_b32 s{T+1}, s{S_CB}, 14
        s_add_u32 s{T+2}, s{T}, s{T+1}
        s_add_u32 s{T+3}, s{T+2}, 4096
        s_add_u32 s{T+9}, s{T+9}, 1
        s_and_b32 s{T+4}, s{S_G4}, s{S_L}
        s_cmp_lg_u32 s{T+4}, 0
        s_cselect_b32 s{T}, {WSZ}, 0
        v_add_u32 v{U+2}, s{T}, v{V_FS}""")
        for mb in range(4):
            a(f"s_waitcnt vmcnt({6 - mb})")
            for b in range(2):
                for h in range(2):
                    t = acc(b, mb) + 2*h
                    a(f"v_pk_add_f32 {vr(t,2)}, {vr(t,2)}, {vr(PP+4*(b*4+mb)+2*h,2)}")
            for b in range(2):
                for h in range(2):
                    t = acc(b, mb) + 2*h
                    a(f"v_cvt_pk_bf16_f32 v{XO+4*mb+2*b+h}, v{t}, v{t+1}")
            a(f"buffer_store_dwordx4 {vr(XO+4*mb,4)}, v{U+2}, s[{SWS}:{SWS+3}], s{T+2+mb//2} offen offset:{2048*(mb%2)}")
            for b in range(2): a(f"ds_write_b64 v{V_RES+b}, {vr(XO+4*mb+2*b,2)} offset:{2048*mb}")
        a(f"s_cmp_lg_u32 s{T+4}, 0\ns_cbranch_scc1 L_c_fin")
        g.signal_row(f"s{T+9}", U+1)
        g.stamp("c", "xsig", True)

    def c_epi_g3(g):
        a = g.a
        acc = lambda nb, mb: ACC + 4*(nb*4 + mb)
        CS, B1, RQ, U, HO = 16, 44, 72, 80, 224
        c = f"s[{S_C}:{S_C+1}]"
        a(f"""s_mov_b32 s{S_C}, {f2u(GC2):#x}
        s_mov_b32 s{S_C+1}, {f2u(GC1):#x}
        v_and_b32 v{U}, 48, v0
        v_and_b32 v{U+1}, 15, v0
        s_lshl_b32 s{T}, s{S_WM}, 8
        s_add_u32 s{T}, s{T}, {L_RSTD}
        v_lshl_add_u32 v{U+1}, v{U+1}, 2, s{T}
        s_lshl_b32 s{T+1}, s{S_WN}, 7
        s_add_u32 s{T+1}, s{T+1}, {L_CS1}
        v_add_u32 v{U+2}, s{T+1}, v{U}
        s_lshl_b32 s{T+1}, s{S_WN}, 6
        s_add_u32 s{T+1}, s{T+1}, {L_CS1 + 768}
        v_add_u32 v{U+3}, s{T+1}, v{U}""")
        for mb in range(4): a(f"ds_read2_b32 {vr(RQ+2*mb,2)}, v{U+1} offset0:{16*mb} offset1:{128 + 16*mb}")
        for nb in range(7):
            ad, off = (U+2, 256*(nb//2) + 64*(nb%2)) if nb < 6 else (U+3, 0)
            a(f"ds_read_b128 {vr(CS+4*nb,4)}, v{ad} offset:{off}\nds_read_b128 {vr(B1+4*nb,4)}, v{ad} offset:{off + L_B1 - L_CS1}")
            if nb == 3: a("s_waitcnt lgkmcnt(4)")
        a(f"""s_mul_i32 s{T}, s{S_L}, {H_L}
        s_mul_i32 s{T+1}, s{S_RB}, {H_RB}
        s_add_u32 s{T}, s{T}, s{T+1}
        s_add_u32 s{T}, s{T}, {HB}
        s_and_b32 s{T+1}, s{S_CB}, 7
        s_lshl_b32 s{T+1}, s{T+1}, 14
        s_add_u32 s{T}, s{T}, s{T+1}
        s_lshr_b32 s{T+1}, s{S_CB}, 3
        s_mul_i32 s{T+2}, s{T+1}, {24*16384}
        s_add_u32 s{T+2}, s{T+2}, s{T}
        s_add_u32 s{T+3}, s{T+2}, 4096
        s_lshl_b32 s{T+1}, s{T+1}, 10
        s_add_u32 s{T+4}, s{T}, s{T+1}
        s_add_u32 s{T+4}, s{T+4}, {48*16384}
        s_mul_i32 s{T+1}, s{S_WN}, 1016
        s_sub_u32 s{T+4}, s{T+4}, s{T+1}
        s_add_u32 s{T+5}, s{T+4}, 4096""")
        def gelu(nb, mb, h, u, dst):
            t = acc(nb, mb) + 2*h
            return [f"v_pk_fma_f32 {vr(u,2)}, {vr(CS+4*nb+2*h,2)}, {vr(RQ+2*mb,2)}, {vr(B1+4*nb+2*h,2)} op_sel:[0,1,0] op_sel_hi:[1,1,1]",
                    f"v_pk_fma_f32 {vr(t,2)}, {vr(t,2)}, {vr(RQ+2*mb,2)}, {vr(u,2)} op_sel_hi:[1,0,1]",
                    f"v_pk_mul_f32 {vr(u,2)}, {vr(t,2)}, {vr(t,2)}",
                    f"v_pk_fma_f32 {vr(u,2)}, {vr(u,2)}, {c}, {c} op_sel:[0,0,1] op_sel_hi:[1,0,1]",
                    f"v_pk_mul_f32 {vr(u,2)}, {vr(u,2)}, {vr(t,2)}",
                    f"v_exp_f32 v{u}, v{u}\nv_exp_f32 v{u+1}, v{u+1}",
                    f"v_pk_add_f32 {vr(u,2)}, {vr(u,2)}, 1.0 op_sel_hi:[1,0]",
                    f"v_rcp_f32 v{u}, v{u}\nv_rcp_f32 v{u+1}, v{u+1}",
                    f"v_pk_mul_f32 {vr(t,2)}, {vr(t,2)}, {vr(u,2)}",
                    f"v_cvt_pk_bf16_f32 v{dst}, v{t}, v{t+1}"]
        k = 0
        for t3 in range(3):
            if t3 == 1: a("s_waitcnt lgkmcnt(0)")
            for mb in range(4):
                o = HO + 4*(k % 4); k += 1
                g.zipemit([gelu(2*t3 + b, mb, h, U + 4 + 2*(2*b+h), o + 2*b + h) for b in range(2) for h in range(2)])
                a(f"buffer_store_dwordx4 {vr(o,4)}, v{V_FS}, s[{SWS}:{SWS+3}], s{T+2+mb//2} offen offset:{2048*(mb%2)}")
            if t3 < 2: a(f"s_add_u32 s{T+2}, s{T+2}, {8*16384}\ns_add_u32 s{T+3}, s{T+3}, {8*16384}")
        for m2 in range(2):
            o = HO + 4*(k % 4); k += 1
            g.zipemit([gelu(6, 2*m2 + b, h, U + 4 + 2*(2*b+h), o + 2*b + h) for b in range(2) for h in range(2)])
            for b in range(2):
                a(f"buffer_store_dwordx2 {vr(o+2*b,2)}, v{V_FS}, s[{SWS}:{SWS+3}], s{T+4+m2} offen offset:{2048*b}")
        g.signal_row(7, U)
        g.stamp("c", "hsig")

    def compute(g):
        a = g.a; t0, t1, t2, t3 = 16, 17, 18, 19
        a(".p2align 3")
        a.label("L_compute")
        g.stamp("c", "start")
        a(f"""s_getpc_b64 s[{T}:{T+1}]
        L_pc:
        s_sub_u32 s{T}, s{T}, L_pc-{NAME}
        s_subb_u32 s{T+1}, s{T+1}, 0
        s_lshr_b32 s{T+2}, s2, 3
        s_lshl_b32 s{T+2}, s{T+2}, 2
        s_add_u32 s{T+2}, s{T+2}, s{S_W}
        s_lshl_b32 s{T+2}, s{T+2}, 9
        v_and_b32 v{t0}, 3, v0
        v_lshl_add_u32 v{t0}, v{t0}, 7, s{T+2}
        v_min_u32 v{t0}, L_end-{NAME}, v{t0}
        global_load_dword v{V_B2}, v{t0}, s[{T}:{T+1}]""")
        a(f"""s_lshr_b32 s{S_WM}, s{S_W}, 1
        s_and_b32 s{S_WN}, s{S_W}, 1
        v_and_b32 v{t0}, 15, v0
        v_lshrrev_b32 v{t1}, 4, v0
        v_lshrrev_b32 v{t2}, 1, v{t0}
        v_xor_b32 v{t3}, v{t2}, v{t1}
        v_lshlrev_b32 v{t3}, 4, v{t3}
        v_lshl_add_u32 v{t3}, v{t0}, 7, v{t3}
        s_lshl_b32 s{T}, s{S_WM}, 13
        v_add_u32 v{V_XA}, s{T}, v{t3}
        v_xor_b32 v{V_XA+1}, 64, v{V_XA}
        v_lshl_add_u32 v{V_XA0}, v0, 4, s{T}
        s_lshl_b32 s{T+1}, s{S_WN}, 10
        v_add_u32 v{V_FS}, s{T+1}, v{V_XA0}
        s_lshl_b32 s{T+1}, s{S_WN}, 2
        v_lshrrev_b32 v{t3}, 5, v0
        v_add_u32 v{t3}, s{T+1}, v{t3}
        v_xor_b32 v{t3}, v{t3}, v{t2}
        v_lshlrev_b32 v{t3}, 4, v{t3}
        v_lshl_add_u32 v{t3}, v{t0}, 7, v{t3}
        v_and_b32 v{t2}, 1, v{t1}
        v_lshl_add_u32 v{t3}, v{t2}, 3, v{t3}
        s_add_u32 s{T}, s{T}, {RES}
        v_add_u32 v{V_RES}, s{T}, v{t3}
        v_xor_b32 v{V_RES+1}, 32, v{V_RES}
        v_bfe_u32 v{t0}, v0, 2, 2
        v_lshl_add_u32 v{t0}, v{t1}, 3, v{t0}
        v_bfe_u32 v{t2}, v0, 3, 2
        v_and_b32 v{t3}, 3, v0
        v_lshlrev_b32 v{t3}, 3, v{t3}
        s_lshl_b32 s{T}, s{S_WN}, 1
        v_xor_b32 v{V_WA0}, s{T}, v{t2}
        v_lshl_add_u32 v{V_WA0}, v{V_WA0}, 5, v{t3}
        v_lshl_add_u32 v{V_WA0}, v{t0}, 7, v{V_WA0}
        v_xor_b32 v{V_WA0+1}, 32, v{V_WA0}
        v_lshrrev_b32 v{t2}, 1, v{t2}
        v_xor_b32 v{t2}, s{S_WN}, v{t2}
        v_lshl_add_u32 v{t2}, v{t2}, 5, v{t3}
        v_lshl_add_u32 v{V_WA0+2}, v{t0}, 6, v{t2}
        v_cmp_eq_u32 vcc, 0, v0
        v_mov_b32 v{t0}, {WSZ}
        v_cndmask_b32 v{V_ONE}, v{t0}, 0, vcc
        s_lshl_b32 s{T}, s{S_RB}, 8
        s_lshl_b32 s{T+1}, s{S_CB}, 4
        s_add_u32 s{T}, s{T}, s{T+1}
        s_lshl_b32 s{T+1}, s{S_W}, 2
        s_add_u32 s{T}, s{T}, s{T+1}
        v_add_u32 v{V_FLG}, s{T}, v{V_ONE}""")
        a.label("L_c_layer")
        g.c_main(G1, 8)
        g.c_epi_g1()
        a(f"s_mov_b32 s{S_G4}, 0\ns_mov_b32 s{T+12}, 4")
        a.label("L_c_g24")
        a(f"v_mov_b32 v{V_XA}, v{V_XA0}\nv_add_u32 v{V_XA+1}, 1024, v{V_XA0}")
        g.c_main(G2, f"s{T+12}")
        g.c_epi_g24()
        a(f"""v_mov_b32 v{V_XA}, v{V_XA0}
        v_add_u32 v{V_XA+1}, 1024, v{V_XA0}
        s_cmp_eq_u32 s{S_G4}, 0
        s_cbranch_scc1 L_c_g3
        s_mov_b32 s{S_L}, 1
        s_mov_b32 s{S_FB}, 16
        s_branch L_c_layer""")
        a.label("L_c_g3")
        g.c_main(G3, 8)
        g.c_epi_g3()
        g.srd(SM, P_B2, 2048)
        a(f"""s_lshl_b32 s{T}, s{S_CB}, 7
        s_lshl_b32 s{T+1}, s{S_WN}, 6
        s_add_u32 s{T}, s{T}, s{T+1}
        v_lshrrev_b32 v16, 4, v0
        v_lshlrev_b32 v16, 3, v16
        buffer_load_dwordx2 v[18:19], v16, s[{SM}:{SM+3}], s{T} offen
        buffer_load_dwordx2 v[20:21], v16, s[{SM}:{SM+3}], s{T} offen offset:32
        s_mov_b32 s{S_G4}, 1
        s_mov_b32 s{T+12}, 14
        s_waitcnt vmcnt(0)""")
        for i in range(4): a(f"v_lshlrev_b32 v{V_B2+2*i}, 16, v{18+i}\nv_and_b32 v{V_B2+2*i+1}, 0xffff0000, v{18+i}")
        a("s_branch L_c_g24")
        a.label("L_c_fin")
        g.finish("c")

    def build(g):
        g.entry(); g.loader(); g.compute()
        g.a.label("L_end"); g.a("s_endpgm")
        rep = []
        lines = fixup.fix_hazards(g.a.lines, rep)
        lines = fixup.fix_align(lines)
        g.haz = rep
        hdr = open("cdna_kernels/" + NAME[:-7] + ".s.ref").read().split("; Override")[0]
        out = hdr + f"; @launch grid=(256,1,1) block=(512,1,1) lds={LDS_BYTES}\n"
        out += '.amdgcn_target "amdgcn-amd-amdhsa--gfx950"\n.text\n' + kernel_header(NAME) + "\n".join(lines) + "\n"
        out += '.fill 64, 4, 0xBF800000\n.section .rodata,"a"\n.p2align 6\n' + kernel_desc(NAME, 256, 256, 102)
        return out

V_FS, V_RES, V_XA, V_WA, V_XA0, V_WA0, V_ONE, V_FLG = 1, 2, 4, 6, 9, 10, 13, 14
XF, WF, ACC = 16, 80, 112
V_B2 = 240
LV_X, LV_W, LV_T = 4, 8, 16
LV_KN, LV_KF, LV_KH, LV_CH, LV_CHH, LV_TR, LV_TS, LV_TC, LV_L4, LV_L16, LV_T4, LV_ONE, LV_PA, LV_PV = range(24, 38)

if __name__ == "__main__":
    import argparse, json
    ap = argparse.ArgumentParser(); ap.add_argument("out"); ap.add_argument("--stamps", action="store_true"); ap.add_argument("--slow", action="store_true")
    ar_ = ap.parse_args()
    g = Gen(stamps=ar_.stamps, force_slow=ar_.slow)
    txt = g.build()
    open(ar_.out, "w").write(txt)
    json.dump(g.stn, open(ar_.out + ".stamps", "w"))
    print("hazard nops:", len(g.haz))
    for h in sorted(set(g.haz)):
        if " lds" not in h[1]: print("  ", h)
```

```python
import sys, struct, math
from asmlib import *
import fixup

NAME = "interleave_layers__linear_attn_block__dense_activation_gelu__prompt_kernel"
MB_ = 1 << 20
ROWF = 0; RXF = 4096
STAT = 1*MB_; STAT_I = 256*1024
CSP = 2*MB_; CSP_I = 256*1024
KVP = 3*MB_; KVP_L = 1*MB_
ZP = 5*MB_; ZP_L = 64*1024
XA = 8*MB_; XREM = 4*MB_
XB = 32*MB_; XB_I = 4*MB_
HB = 16*MB_; H_RB = 56*16384
TS = 128*MB_
WSZ = 256*MB_
RES = 135168
L_RSTD = RES + 16384; L_NMR = L_RSTD + 512
L_CSQ = L_NMR + 512; L_CS1 = L_CSQ + 1024; L_B1 = L_CS1 + 1024
L_B2 = L_B1 + 1024
L_MODE = L_B2 + 256
L_KVF = L_MODE + 64; L_ZF = L_KVF + 4096
LDS_BYTES = L_ZF + 2048
L_XCH = 16384
L_CW1 = 98304
assert LDS_BYTES <= 163840
XSZ = 16384
def f2u(x): return struct.unpack("<I", struct.pack("<f", x))[0]
LOG2E = 1.4426950408889634
EPS = 1e-6
GC1 = -2.0*math.sqrt(2.0/math.pi)*LOG2E
GC2 = GC1*0.044715
SPIN = 1 << 16
HOOKA = 2

S_RB, S_CB, S_XCD, S_W, S_L = 3, 4, 5, 6, 7
SX, SW, SWS, SM = 8, 12, 16, 20
P_X, P_WQKV, P_WO, P_W1, P_B1, P_W2, P_B2, P_OUT, P_DBG = 24, 26, 28, 32, 34, 36, 38, 40, 42
S_MODE, S_WM, S_WN, S_FB = 44, 45, 46, 47
T = 48
S_KX, S_KW, S_LX, S_LW, S_LH, S_LINE, S_CNT, S_SLOT, S_XSTR = 64, 65, 66, 67, 68, 69, 70, 71, 72
S_DLX, S_DLW = 73, 74
S_MASK = 76
S_PT = 78
S_COL = 80
S_TGT, S_SPIN, S_G4, S_BOOT = 84, 85, 86, 87
S_HOOK, S_ISS, S_JH = 75, 98, 99
S_TAB, S_J2, S_XREM = 100, 62, 63
S_C = 88
S_ST = 96
S_PFR, S_PFH, S_PFA, S_PFD = 88, 89, 90, 94
VST = 255

class Ph:
    def __init__(s, name, subt, NST, n, ldb, swapped):
        s.name, s.subt, s.NST, s.n, s.ldb, s.swapped = name, subt, NST, n, ldb, swapped
        s.woff = []; o = 0
        for w in subt: s.woff.append(o); o += 64*w
        if NST == 3: s.w0, s.wp, s.x0, s.xp = 0, 28672, 86016, 16384
        else: s.w0, s.wp, s.x0, s.xp = 0, 32768, 16384, 32768
        s.PW = sum(2 if w == 128 else 1 for w in subt); s.P = 4 + s.PW
        s.nblk = []
        for t, w in enumerate(subt):
            s.nblk += [(0, s.woff[t], w), (1, s.woff[t], w)] if w == 128 else [(2, s.woff[t], w)]
        s.NB = len(s.nblk)
G1 = Ph("g1", [128]*3, 3, 16, 6144, [True]*2 + [False]*4)
G3 = Ph("g3", [128]*3 + [64], 3, 16, 7168, [True]*7)
G2 = Ph("g2", [128]*2, 4, 8, 2048, [True]*4)
G4 = Ph("g4", [128]*2, 4, 28, 2048, [True]*4)

WPTR = {G1: P_WQKV, G2: P_WO, G3: P_W1, G4: P_W2}

class Gen:
    def __init__(g, stamps=False, force_slow=False, opt=None):
        g.opt = opt or {}; g.cold = []
        g.a = Asm(); g.stamps = stamps; g.force_slow = force_slow
        g.nst = {"c": 0, "l": 0}; g.stn = {"c": [], "l": []}
    def stamp(g, role, name, g24=False):
        if not g.stamps: return
        k = g.nst[role]; g.nst[role] += 2 if g24 else 1; assert g.nst[role] <= 32
        g.stn[role] += ["g2" + name, "g4" + name] if g24 else [name]
        g.a(f"""s_memrealtime s[{S_ST}:{S_ST+1}]
        s_lshl_b32 m0, s{S_L}, 5
        s_add_u32 m0, m0, {k}
        {f"s_add_u32 m0, m0, s{S_G4}" if g24 else ""}
        s_waitcnt lgkmcnt(0)
        v_writelane_b32 v{VST}, s{S_ST}, m0""")
    def srd(g, d, ptr, size, off_s=None):
        a = g.a
        if off_s is None: a(f"s_mov_b32 s{d}, s{ptr}\ns_mov_b32 s{d+1}, s{ptr+1}")
        else: a(f"s_add_u32 s{d}, s{ptr}, s{off_s}\ns_addc_u32 s{d+1}, s{ptr+1}, 0")
        a(f"s_mov_b32 s{d+2}, {size}\ns_mov_b32 s{d+3}, 0x20000")
    def poll(g, voff, soff, vt, srd=SWS, first_done=False, andmask=None, acquire=True):
        a = g.a; L = a.uid("poll"); C = a.uid("pollc"); D = a.uid("polld")
        a(f"s_mov_b32 s{S_SPIN}, {SPIN}")
        if first_done: a(f"s_branch {C}")
        a.label(L)
        a(f"buffer_load_dword v{vt}, v{voff}, s[{srd}:{srd+3}], {soff} offen sc1\ns_waitcnt vmcnt(0)")
        a.label(C)
        if andmask is not None:
            a(f"v_and_b32 v{vt+1}, {andmask}, v{vt}\nv_cmp_le_u32 vcc, s{S_TGT}, v{vt+1}")
        else:
            a(f"v_cmp_le_u32 vcc, s{S_TGT}, v{vt}")
        a(f"""s_andn2_b64 s[{S_PT}:{S_PT+1}], s[{S_MASK}:{S_MASK+1}], vcc
        s_cbranch_scc0 {D}
        s_sub_u32 s{S_SPIN}, s{S_SPIN}, 1
        s_cbranch_scc0 {L}""")
        a.label(D)
        if acquire:
            E = a.uid("polle")
            a(f"s_cmp_eq_u32 s{S_MODE}, 0\ns_cbranch_scc1 {E}\nbuffer_inv sc1\ns_waitcnt vmcnt(0)")
            a.label(E)
    def signal_row(g, code, vt, cnt=0):
        a = g.a; S = a.uid("sigs"); D = a.uid("sigd")
        a(f"""s_add_u32 s{T}, s{S_FB}, {code}
        v_mov_b32 v{vt}, s{T}
        s_cmp_eq_u32 s{S_MODE}, 0
        s_waitcnt vmcnt({cnt})
        s_cbranch_scc0 {S}
        buffer_store_dword v{vt}, v{V_FLG}, s[{SWS}:{SWS+3}], 0 offen""")
        a.label(D)
        g.cold.append(f"""{S}:
        s_waitcnt vmcnt(0)
        buffer_wbl2 sc1
        s_waitcnt vmcnt(0)
        buffer_store_dword v{vt}, v{V_FLG}, s[{SWS}:{SWS+3}], 0 offen sc1
        s_branch {D}""")
    def stores_by_mode(g, lines, sreg, val):
        a = g.a; S = a.uid("sms"); D = a.uid("smd")
        a(f"s_cmp_eq_u32 s{sreg}, {val}\ns_cbranch_scc0 {S}")
        for l in lines: a(l)
        a.label(D)
        g.cold.append(f"{S}:\n" + "\n".join(l + (" sc1" if l.startswith("buffer_store") else "") for l in lines) + f"\ns_branch {D}")
    def retry(g, L):
        a = g.a; D = a.uid("rtd")
        a(f"s_cbranch_vccz {D}\ns_sub_u32 s{S_SPIN}, s{S_SPIN}, 1\ns_cbranch_scc0 {L}")
        a.label(D)

    def entry(g):
        a = g.a
        a(f"""s_cmp_ge_u32 s2, 256
        s_cbranch_scc1 L_end
        s_load_dwordx16 s[24:39], s[0:1], 0
        s_load_dwordx4 s[40:43], s[0:1], 64
        s_load_dwordx2 s[{SWS}:{SWS+1}], s[0:1], 80
        v_lshrrev_b32 v1, 6, v0
        v_and_b32 v0, 63, v0
        v_readfirstlane_b32 s{S_W}, v1
        s_and_b32 s{S_XCD}, s2, 7
        s_lshr_b32 s{S_CB}, s2, 5
        s_and_b32 s{T}, s2, 1
        s_lshl_b32 s{T}, s{T}, 3
        s_add_u32 s{S_CB}, s{S_CB}, s{T}
        s_bfe_u32 s{S_RB}, s2, 0x20003
        s_and_b32 s{T}, s2, 6
        s_lshl_b32 s{T}, s{T}, 1
        s_add_u32 s{S_RB}, s{S_RB}, s{T}
        s_mov_b32 s{S_L}, 0
        s_mov_b32 s{S_FB}, 0
        s_mov_b32 s{S_MODE}, 1
        s_mov_b32 s{SWS+2}, {WSZ}
        s_mov_b32 s{SWS+3}, 0x20000
        v_mov_b32 v{VST}, 0
        s_cmp_ge_u32 s{S_W}, 4
        s_cbranch_scc0 L_compute
        s_sub_u32 s{S_W}, s{S_W}, 4""")

    def finish(g, role):
        a = g.a
        wv = 0 if role == "c" else 4
        a(f"""s_lshl_b32 s{T}, s{S_RB}, 18
        s_lshl_b32 s{T+1}, s{S_CB}, 7
        s_add_u32 s{T+1}, s{T+1}, s{T}
        s_add_u32 s{T+2}, s{S_W}, {wv}
        s_lshl_b32 s{T+3}, s{T+2}, 15
        s_add_u32 s{T+1}, s{T+1}, s{T+3}
        s_lshl_b32 s{T+2}, s{T+2}, 11
        s_add_u32 s{T+2}, s{T+2}, {RES}""")
        g.srd(SM, P_OUT, 2048*2048)
        a(f"""v_lshrrev_b32 v20, 3, v0
        v_and_b32 v21, 7, v0
        v_lshlrev_b32 v22, 11, v20
        v_lshl_add_u32 v22, v21, 4, v22
        v_lshrrev_b32 v23, 4, v0
        v_xor_b32 v21, v21, v23
        v_lshlrev_b32 v21, 4, v21
        v_lshl_add_u32 v21, v20, 7, v21
        v_add_u32 v21, s{T+2}, v21
        v_xor_b32 v20, 64, v21
        v_add_u32 v23, 16384, v22
        s_waitcnt lgkmcnt(0)
        s_barrier
        ds_read_b128 v[24:27], v21
        ds_read_b128 v[28:31], v20 offset:1024
        s_waitcnt lgkmcnt(1)
        buffer_store_dwordx4 v[24:27], v22, s[{SM}:{SM+3}], s{T+1} offen
        s_waitcnt lgkmcnt(0)
        buffer_store_dwordx4 v[28:31], v23, s[{SM}:{SM+3}], s{T+1} offen""")
        if g.stamps:
            a("s_waitcnt vmcnt(0)")
            g.stamp(role, "end")
            a(f"""s_lshl_b32 s{T}, s2, 3
            s_add_u32 s{T}, s{T}, s{S_W}
            s_add_u32 s{T}, s{T}, {wv}
            s_lshl_b32 s{T}, s{T}, 8
            s_add_u32 s{T}, s{T}, {TS}
            v_lshlrev_b32 v20, 2, v0
            buffer_store_dword v{VST}, v20, s[{SWS}:{SWS+3}], s{T} offen""")
        a("s_endpgm")

    def l_setup_w(g, p, natural=False):
        a = g.a; t0, t1, t2 = LV_T, LV_T+1, LV_T+2
        a(f"s_mov_b32 s{T+1}, {p.ldb}")
        krow = LV_KN if natural else LV_KF
        a(f"""v_mul_lo_u32 v{t0}, v{krow}, s{T+1}
        v_add_u32 v{t0}, v{t0}, v{LV_CH}
        v_xor_b32 v{t1}, 64, v{t0}
        v_add_u32 v{t1}, {(8 if natural else 4)*p.ldb - 1024}, v{t1}""")
        r = LV_W
        for t, w in enumerate(p.subt):
            if w == 128:
                a(f"v_add_u32 v{r}, s{S_COL+t}, v{t0}\nv_add_u32 v{r+1}, s{S_COL+t}, v{t1}"); r += 2
            else:
                a(f"v_mul_lo_u32 v{t2}, v{LV_KH}, s{T+1}\nv_add3_u32 v{r}, v{t2}, v{LV_CHH}, s{S_COL+t}"); r += 1
    def l_issue_x(g, p, slot):
        a = g.a
        if slot is None: a(f"s_add_u32 m0, s{S_DLX}, {p.x0}")
        else: a(f"s_add_u32 m0, s{S_LX}, {p.x0 + slot*p.xp}")
        for i in range(4):
            a(f"buffer_load_dwordx4 v{LV_X+i}, s[{SX}:{SX+3}], s{S_KX} offen offset:{1024*i} sc1 lds")
    def l_issue_w(g, p, slot, at=None):
        a = g.a; r = LV_W
        for t, w in enumerate(p.subt):
            base = S_LW if w == 128 else S_LH
            if slot is None: a(f"s_add_u32 m0, s{S_DLW}, {p.woff[t]}")
            else: a(f"s_add_u32 m0, s{base}, {(p.w0 + slot*p.wp if at is None else at) + p.woff[t]}")
            for q in range(2 if w == 128 else 1):
                a(f"buffer_load_dwordx4 v{r}, s[{SW}:{SW+3}], s{S_KW} offen offset:{1024*q} lds"); r += 1
    def kpos(g, p, d, i, add=0):
        a = g.a
        if p in (G1, G3): a(f"s_bfe_u32 s{d}, s{S_TAB + i//8}, {(4 << 16) | (4*(i % 8)):#x}")
        elif i is None:
            src = S_CNT
            if add: a(f"s_add_u32 s{T+1}, s{S_CNT}, {add}"); src = T+1
            a(f"s_add_u32 s{d}, s{S_J2}, s{src}\ns_and_b32 s{d}, s{d}, 7\ns_and_b32 s{T+1}, s{src}, 24\ns_add_u32 s{d}, s{d}, s{T+1}")
        elif i < 24:
            a(f"s_add_u32 s{d}, s{S_J2}, {i}\ns_and_b32 s{d}, s{d}, 7")
            if i & 24: a(f"s_add_u32 s{d}, s{d}, {i & 24}")
        else: a(f"s_add_u32 s{d}, s{S_J2}, {2*i}\ns_and_b32 s{d}, s{d}, 6")
    def wrow(g, p, d, i):
        a = g.a
        a(f"s_lshl_b32 s{d}, s{d}, 6")
        if p in (G1, G3): return
        a(f"s_and_b32 s{T+1}, s{S_CB}, 8")
        if p is G2: a(f"s_lshl_b32 s{T+1}, s{T+1}, 6\ns_add_u32 s{d}, s{d}, s{T+1}")
        elif i is None or i < 24: a(f"s_mul_i32 s{T+1}, s{T+1}, 192\ns_add_u32 s{d}, s{d}, s{T+1}")
        else: a(f"""s_lshl_b32 s{T+1}, s{T+1}, 2
            s_add_u32 s{d}, s{d}, s{T+1}
            s_add_u32 s{d}, s{d}, {48*64}""")
    def l_line(g, p, i, x=True, w=True):
        a = g.a
        g.kpos(p, S_LINE, i)
        if x:
            if p in (G1, G3):
                a(f"s_mul_i32 s{S_KX}, s{S_LINE}, s{S_XSTR}")
                if i >= 8: a(f"s_add_u32 s{S_KX}, s{S_KX}, s{S_XREM}")
            elif i is None or i < 24:
                a(f"s_and_b32 s{T+1}, s{S_CB}, 8\ns_mul_i32 s{T+1}, s{T+1}, 3\ns_add_u32 s{S_KX}, s{S_LINE}, s{T+1}\ns_lshl_b32 s{S_KX}, s{S_KX}, 14")
            else:
                a(f"s_and_b32 s{T+1}, s{S_CB}, 8\ns_add_u32 s{S_KX}, s{S_LINE}, s{T+1}\ns_lshl_b32 s{S_KX}, s{S_KX}, 13\ns_add_u32 s{S_KX}, s{S_KX}, {48*16384}")
        if w:
            g.wrow(p, S_LINE, i)
            if p is G4 and i is not None and i >= 24:
                a(f"s_and_b32 s{T+1}, s{S_W}, 2\ns_lshl_b32 s{T+1}, s{T+1}, 4\ns_add_u32 s{S_LINE}, s{S_LINE}, s{T+1}")
            a(f"s_mul_i32 s{S_KW}, s{S_LINE}, {p.ldb}")
    def tab_first(g):
        g.a(f"""s_mov_b32 s{T}, 0x76543210
        s_mov_b32 s{T+1}, 0xfedcba98
        s_lshl_b32 s{T+4}, s{S_J2}, 3
        s_lshr_b64 s[{S_TAB}:{S_TAB+1}], s[{T}:{T+1}], s{T+4}
        s_sub_u32 s{T+4}, 64, s{T+4}
        s_lshl_b64 s[{T}:{T+1}], s[{T}:{T+1}], s{T+4}
        s_or_b64 s[{S_TAB}:{S_TAB+1}], s[{S_TAB}:{S_TAB+1}], s[{T}:{T+1}]
        s_and_b32 s{T}, s{S_RB}, 3
        s_mul_i32 s{T}, s{T}, 0x1111
        s_xor_b32 s{S_TAB}, s{S_TAB}, s{T}""")
    def tab_local(g):
        g.a(f"""s_mov_b32 s{T}, 0x76543210
        s_mov_b32 s{T+1}, 0x76543210
        s_lshl_b32 s{T+4}, s{S_J2}, 2
        s_lshr_b64 s[{T}:{T+1}], s[{T}:{T+1}], s{T+4}
        s_cmp_ge_u32 s{S_CB}, 8
        s_cselect_b32 s{T+1}, 0x88888888, 0
        s_or_b32 s{S_TAB}, s{T}, s{T+1}
        s_xor_b32 s{S_TAB+1}, s{S_TAB}, 0x88888888""")
    def l_cols(g, p):
        a = g.a
        if p is G1:
            a(f"s_lshl_b32 s{S_COL}, s{S_CB}, 7\ns_add_u32 s{S_COL+1}, s{S_COL}, 2048\ns_add_u32 s{S_COL+2}, s{S_COL}, 4096")
        elif p is G3:
            a(f"""s_and_b32 s{T}, s{S_CB}, 7
            s_lshl_b32 s{T}, s{T}, 7
            s_lshr_b32 s{T+1}, s{S_CB}, 3
            s_mul_i32 s{S_COL}, s{T+1}, 3072
            s_add_u32 s{S_COL}, s{S_COL}, s{T}
            s_add_u32 s{S_COL+1}, s{S_COL}, 1024
            s_add_u32 s{S_COL+2}, s{S_COL}, 2048
            s_lshl_b32 s{T+1}, s{T+1}, 6
            s_add_u32 s{S_COL+3}, s{T}, s{T+1}
            s_add_u32 s{S_COL+3}, s{S_COL+3}, 6144""")
        else:
            a(f"s_lshl_b32 s{S_COL}, s{S_CB}, 7\ns_xor_b32 s{S_COL+1}, s{S_COL}, 1024")
    def l_next_setup(g, p):
        g.srd(SW, WPTR[p], {G1: 1024*6144, G2: 1024*2048, G3: 1024*7168, G4: 3584*2048}[p])
        g.l_cols(p); g.l_setup_w(p)
    def l_next_w(g, p, s):
        g.l_line(p, s, x=False); g.l_issue_w(p, s)
    def l_xsrd(g, xbase, xrb, extra=0):
        g.a(f"s_mul_i32 s{T}, s{S_RB}, {xrb}\ns_add_u32 s{T}, s{T}, {xbase}")
        g.srd(SX, SWS, xrb + extra, T)
    def l_touch(g, v):
        g.a(f"buffer_load_dword v{LV_DUM}, v{v}, s[{SWS}:{SWS+3}], 0 offen sc1")
    def l_pf(g, p, i, wait=True):
        if not g.opt.get("pf", 1): return
        a = g.a; wp = WPTR[p]
        g.kpos(p, T, i, add=2); g.wrow(p, T, i)
        a(f"s_add_u32 s{T}, s{T}, s{S_PFR}")
        if p is G4 and i is not None and i >= 24: a(f"s_and_b32 s{T+1}, s{S_PFR}, 32\ns_add_u32 s{T}, s{T}, s{T+1}")
        a(f"s_mul_i32 s{T}, s{T}, {p.ldb}\ns_add_u32 s{T}, s{T}, s{S_PFH}")
        if wait and g.opt.get("pfwait", 0): a("s_waitcnt lgkmcnt(0)")
        a(f"s_add_u32 s{S_PFA}, s{wp}, s{T}\ns_addc_u32 s{S_PFA+1}, s{wp+1}, 0")
        if p is G3: a(f"s_load_dword s{S_PFD}, s[{S_PFA}:{S_PFA+1}], {51*128}")
        if p in (G1, G3):
            a(f"""s_and_b32 s{T}, s{S_CB}, 8
            s_mul_i32 s{T}, s{T}, {128 if p is G1 else 384}
            s_add_u32 s{S_PFA+2}, s{S_PFA}, s{T}
            s_addc_u32 s{S_PFA+3}, s{S_PFA+1}, 0""")
            for t in range(3): a(f"s_load_dword s{S_PFD}, s[{S_PFA+2}:{S_PFA+3}], {384 + t*(2048 if p is G1 else 1024)}")
        else:
            for o in (384, 1408): a(f"s_load_dword s{S_PFD}, s[{S_PFA}:{S_PFA+1}], {o}")
    def rows_target(g, code, own=True):
        g.a(f"""s_add_u32 s{S_TGT}, s{S_FB}, {code}
        s_cmp_{'ge' if own else 'lt'}_u32 s{S_CB}, 8
        s_cselect_b32 s{S_MASK}, 0, -1
        s_cselect_b32 s{S_MASK+1}, -1, 0""")
    def l_wait_rows(g, code):
        g.rows_target(code)
        g.poll(LV_PA, "0", LV_PV)
    def l_main(g, p, jobs=None, q0=None, nxt=None, cond_nxt=None):
        a = g.a; N, n = p.NST, p.n
        jobs = jobs or {}
        if q0 is None:
            q = []
            for s in range(N - 1):
                g.l_line(p, s, w=False); g.l_issue_x(p, s); q += [s]*4
        else: q = list(q0)
        def wait(s):
            last = max(i for i, t in enumerate(q) if t == s)
            assert len(q) - 1 - last <= 63
            a(f"s_waitcnt vmcnt({len(q) - 1 - last})")
            nc = q[last:].count(-2)
            if nc:
                S = a.uid("wc")
                a(f"s_cmp_eq_u32 s{S_L}, 0\ns_cbranch_scc1 {S}\ns_waitcnt vmcnt({len(q) - 1 - last - nc})")
                a.label(S)
        if N == 3: ra = {n: [1, 2, 0]}
        else:
            e = g.opt.get("early", 3)
            ra = {n - e: [0], n - e + 1: [1]} if e else {n: [0, 1]}
        def runahead(s):
            if s not in ra and s != n: return
            if cond_nxt:
                S = a.uid("ra"); a(f"s_cmp_lg_u32 s{S_L}, 0\ns_cbranch_scc1 {S}")
            if s == min(ra): g.l_next_setup(nxt)
            for t in ra.get(s, []):
                g.l_next_w(nxt, t)
                q.extend([-2 if cond_nxt else -1]*nxt.PW)
            if s == n:
                g.l_pf(nxt, nxt.NST - 1); g.l_pf(nxt, nxt.NST, False)
            if cond_nxt: a.label(S)
        s = 0
        while s < n:
            if p is G4 and s == 6:
                L = a.uid("g4l")
                a(f"s_mov_b32 s{S_CNT}, 9\ns_mov_b32 s{S_SLOT}, {1*p.wp}")
                a.label(L)
                a(f"s_add_u32 s{S_DLX}, s{S_LX}, s{S_SLOT}\ns_add_u32 s{S_DLW}, s{S_LW}, s{S_SLOT}")
                g.l_line(p, None)
                a(f"s_waitcnt vmcnt({p.P*(N-2)})\ns_barrier")
                g.l_issue_x(p, None); g.l_issue_w(p, None)
                g.l_pf(p, None)
                a(f"""s_add_u32 s{S_SLOT}, s{S_SLOT}, {p.wp}
                s_and_b32 s{S_SLOT}, s{S_SLOT}, {N*p.wp - 1}
                s_add_u32 s{S_CNT}, s{S_CNT}, 1
                s_cmp_lt_u32 s{S_CNT}, 22
                s_cbranch_scc1 {L}""")
                for i in range(9, 22): q += [i]*p.P
                s = 19
                continue
            i = s + N - 1
            if i < n: g.l_line(p, i)
            wait(s); a("s_barrier")
            if g.opt.get("stepst") == p.name: g.stamp("l", f"s{s}")
            if (s, "pre") in jobs: jobs[(s, "pre")](q)
            if i < n:
                g.l_issue_x(p, i % N); g.l_issue_w(p, i % N); q += [i]*p.P
            if i + 2 < n: g.l_pf(p, i + 2)
            elif N == 4 and i + 2 - n < 2 and g.opt.get("pfn", 1): g.l_pf(nxt, i + 2 - n)
            if (s, "post") in jobs: jobs[(s, "post")](q)
            runahead(s)
            s += 1
        a("s_waitcnt lgkmcnt(0)\ns_barrier")
        if (n, "pre") in jobs: jobs[(n, "pre")](q)
        runahead(n)
        if (n, "post") in jobs: jobs[(n, "post")](q)

    def job_colsum(g, p):
        a = g.a; D = a.uid("csd"); Hf = a.uid("csh"); St = a.uid("css")
        F, A0, ONE, U = 16, 48, 64, 68
        a(f"s_cmp_lg_u32 s{S_L}, 0\ns_cbranch_scc1 {D}")
        for i in range(4): a(f"v_mov_b32 v{ONE+i}, 0x3f803f80")
        a(f"s_cmp_eq_u32 s{S_W}, 3\ns_cbranch_scc1 {Hf}")
        a(f"""s_lshl_b32 s{T}, s{S_W}, 13
        s_lshl_b32 s{T+1}, s{S_WN}, 6
        v_xor_b32 v{U}, s{T+1}, v{V_WA0}
        s_add_u32 s{T}, s{T}, {L_CW1 if p is G3 else 0}
        v_add_u32 v{U}, s{T}, v{U}""")
        def blk(nseg, w):
            for seg in range(nseg):
                a(f"v_xor_b32 v{U+1}, {32*seg}, v{U}")
                for kk in range(2):
                    for h in range(2):
                        a(f"ds_read_b64_tr_b16 {vr(F+seg*8+kk*4+h*2,2)}, v{U+1} offset:{(32*kk+4*h)*w}")
            for seg in range(nseg):
                a(f"s_waitcnt lgkmcnt({4*(nseg-1-seg)})")
                for kk in range(2):
                    a(f"v_mfma_f32_16x16x32_bf16 {vr(A0+4*seg,4)}, {vr(ONE,4)}, {vr(F+seg*8+kk*4,4)}, {'0' if kk == 0 else vr(A0+4*seg,4)}")
        blk(4, 128)
        if p is G3:
            a(f"s_branch {St}")
            a.label(Hf)
            a(f"""v_xor_b32 v{U}, 32, v{V_WA0+2}
            v_add_u32 v{U}, {L_CW1 + p.woff[3]}, v{U}
            v_mov_b32 v{A0+8}, 0
            v_mov_b32 v{A0+12}, 0""")
            blk(2, 64)
            a.label(St)
        a(f"""s_lshl_b32 s{T}, s{S_CB}, 14
        s_lshl_b32 s{T+1}, s{S_RB}, 10
        s_add_u32 s{T}, s{T}, s{T+1}
        s_lshl_b32 s{T+1}, s{S_W}, 8
        s_add_u32 s{T}, s{T}, s{T+1}
        s_add_u32 s{T}, s{T}, {CSP + (CSP_I if p is G3 else 0)}
        v_lshlrev_b32 v{U}, 2, v0
        v_cmp_gt_u32 vcc, 16, v0
        s_nop 3
        v_cndmask_b32 v{A0}, v{A0+4}, v{A0}, vcc
        v_cmp_gt_u32 vcc, 48, v0
        v_cndmask_b32 v{A0+8}, v{A0+12}, v{A0+8}, vcc
        v_cmp_gt_u32 vcc, 32, v0
        v_cndmask_b32 v{V_CS}, v{A0+8}, v{A0}, vcc
        buffer_store_dword v{V_CS}, v{U}, s[{SWS}:{SWS+3}], s{T} offen sc1""")
        if p is G1:
            a.label(Hf)
            a(f"v_lshlrev_b32 v{U}, 2, v0\nbuffer_store_dword v{V_SS}, v{U}, s[{SWS}:{SWS+3}], s{T+13} offen sc1")
            g.clear_xb(U, 0)
        a.label(D)
    def job_stats(g, inst, store=True):
        a = g.a; F = 16; U = 32; SQ = 36
        a(f"""v_bfe_u32 v{U}, v0, 2, 2
        v_lshlrev_b32 v{U}, 4, v{U}
        v_lshl_add_u32 v{U}, v0, 6, v{U}
        s_lshl_b32 s{T}, s{S_W}, 12
        s_add_u32 s{T}, s{T}, {RES}
        v_add_u32 v{U}, s{T}, v{U}""")
        for i in range(4):
            a(f"v_xor_b32 v{U+1}, {16*i}, v{U}\nds_read_b128 {vr(F+4*i,4)}, v{U+1}")
        for i in range(4): a(f"v_mov_b32 v{SQ+i}, 0")
        a(f"""s_mov_b32 s{T+2}, 0x3f803f80
        s_lshl_b32 s{T}, {inst}, 18
        s_lshl_b32 s{T+1}, s{S_RB}, 14
        s_add_u32 s{T}, s{T}, s{T+1}
        s_lshl_b32 s{T+1}, s{S_CB}, 10
        s_add_u32 s{T}, s{T}, s{T+1}
        s_lshl_b32 s{T+1}, s{S_W}, 8
        s_add_u32 s{T}, s{T}, s{T+1}
        s_add_u32 s{T}, s{T}, {STAT}""")
        for i in range(16):
            if i % 4 == 0: a(f"s_waitcnt lgkmcnt({3 - i//4})")
            a(f"v_dot2c_f32_bf16 v{SQ + i%2}, s{T+2}, v{F+i}\nv_dot2c_f32_bf16 v{SQ + 2 + i%2}, v{F+i}, v{F+i}")
        a(f"""v_and_b32 v{U}, 1, v0
        v_cmp_eq_u32 vcc, 0, v{U}
        v_lshlrev_b32 v{U}, 2, v0
        v_add_f32 v{SQ}, v{SQ}, v{SQ+1}
        v_add_f32 v{SQ+2}, v{SQ+2}, v{SQ+3}
        v_add_f32_dpp v{SQ+1}, v{SQ}, v{SQ} quad_perm:[1,0,3,2] row_mask:0xf bank_mask:0xf
        v_add_f32_dpp v{SQ+3}, v{SQ+2}, v{SQ+2} quad_perm:[1,0,3,2] row_mask:0xf bank_mask:0xf
        v_cndmask_b32 v{V_SS}, v{SQ+3}, v{SQ+1}, vcc""")
        if store: a(f"buffer_store_dword v{V_SS}, v{U}, s[{SWS}:{SWS+3}], s{T} offen sc1")
        else: a(f"s_mov_b32 s{T+13}, s{T}")
    def job_boot_issue(g, q):
        a = g.a; D = a.uid("jpd")
        a(f"s_cmp_lg_u32 s{S_L}, 0\ns_cbranch_scc1 {D}")
        g.srd(SM, P_DBG, 256)
        a(f"buffer_load_dword v{LV_PV}, v{LV_L4}, s[{SM}:{SM+3}], 0 offen sc1")
        a.label(D); q.append(-2)
    def gather_loads(g, p):
        a = g.a; E = a.uid("jge")
        a(f"""s_lshl_b32 s{T}, s{S_L}, 19
        s_lshl_b32 s{T+1}, s{S_RB}, 14
        s_add_u32 s{T}, s{T}, s{T+1}
        s_add_u32 s{T}, s{T}, {STAT + (STAT_I if p is G3 else 0)}""")
        for i in range(16):
            if i % 4 == 0 and i: a(f"s_add_u32 s{T}, s{T}, 4096")
            a(f"buffer_load_dword v{64+i}, v{LV_T4}, s[{SWS}:{SWS+3}], s{T} offen offset:{1024*(i%4)} sc1")
        a(f"""s_cmp_lg_u32 s{S_L}, 0
        s_cbranch_scc1 {E}
        s_lshl_b32 s{T}, s{S_CB}, 14
        s_add_u32 s{T}, s{T}, {CSP + (CSP_I if p is G3 else 0)}""")
        for i in range(16):
            if i % 4 == 0 and i: a(f"s_add_u32 s{T}, s{T}, 4096")
            a(f"buffer_load_dword v{80+i}, v{LV_T4}, s[{SWS}:{SWS+3}], s{T} offen offset:{1024*(i%4)} sc1")
        a.label(E)
    def job_gather(g, p, q):
        a = g.a; D = a.uid("jgd")
        a(f"s_cmp_lg_u32 s{S_L}, 0\ns_cbranch_scc1 {D}")
        if p is G1:
            g.srd(SM, P_DBG, 256)
            a(f"s_mov_b32 s{S_TGT}, 32\ns_mov_b32 s{S_MASK}, 0x01010101\ns_mov_b32 s{S_MASK+1}, 0x01010101")
            g.poll(LV_L4, "0", LV_PV, srd=SM, first_done=True, andmask=63, acquire=False)
            a(f"""s_lshl_b32 s{T}, s{S_XCD}, 3
            s_lshl_b32 s{T+1}, s{S_BOOT}, 5
            v_readlane_b32 s{T+2}, v{LV_PV}, s{T}
            s_cmp_lg_u32 s{T+2}, s{T+1}
            s_cselect_b32 s{S_MODE}, 1, {1 if g.force_slow else 0}
            v_mov_b32 v{LV_T}, {L_MODE}
            v_mov_b32 v{LV_T+1}, s{S_MODE}
            ds_write_b32 v{LV_T}, v{LV_T+1}""")
        else:
            g.srd(SM, P_B1, 3584*2)
            a(f"""s_cmp_eq_u32 s{S_W}, 1
            s_cselect_b32 s{T}, s{S_COL+1}, s{S_COL}
            s_cmp_eq_u32 s{S_W}, 2
            s_cselect_b32 s{T}, s{S_COL+2}, s{T}
            s_cmp_eq_u32 s{S_W}, 3
            s_cselect_b32 s{T}, s{S_COL+3}, s{T}
            v_lshlrev_b32 v{LV_T}, 1, v0
            buffer_load_ushort v96, v{LV_T}, s[{SM}:{SM+3}], s{T} offen""")
            g.srd(SM, P_B2, 2048)
            a(f"s_lshl_b32 s{T}, s{S_CB}, 7\nbuffer_load_ushort v97, v{LV_T}, s[{SM}:{SM+3}], s{T} offen")
            q += [-2]*2
        a.label(D)
        g.gather_loads(p)
        q += [-1]*16 + [-2]*16
    def job_reduce(g, p, q, wt):
        a = g.a; E = a.uid("jre"); R = a.uid("jrr"); C = a.uid("jrc"); N0 = a.uid("jrn")
        def tree(b):
            for st in (8, 4, 2):
                for i in range(0, st, 2): a(f"v_pk_add_f32 {vr(b+i,2)}, {vr(b+i,2)}, {vr(b+st+i,2)}")
            a(f"v_add_f32 v{b}, v{b}, v{b+1}")
        C0 = a.uid("jr0")
        a(f"s_mov_b32 s{S_SPIN}, {SPIN}\ns_waitcnt vmcnt({wt})\ns_cmp_eq_u32 s{S_L}, 0\ns_cbranch_scc1 {C}\ns_branch {C0}")
        a.label(R)
        g.gather_loads(p)
        a.label(C0)
        a("s_waitcnt vmcnt(0)")
        a.label(C)
        tree(64)
        a(f"v_mov_b32 v98, v64\ns_cmp_lg_u32 s{S_L}, 0\ns_cbranch_scc1 {N0}")
        tree(80)
        if p is G3: a("v_mov_b32 v98, v80")
        a.label(N0)
        a("v_cmp_u_f32 vcc, v64, v98")
        g.retry(R)
        a(f"""v_mul_f32 v64, {f2u(1/1024):#x}, v64
        v_and_b32 v70, 1, v0
        v_cmp_eq_u32 vcc, 0, v70
        v_mov_b32_dpp v65, v64 quad_perm:[0,0,2,2] row_mask:0xf bank_mask:0xf
        v_mov_b32_dpp v66, v64 quad_perm:[1,1,3,3] row_mask:0xf bank_mask:0xf
        v_fma_f32 v66, -v65, v65, v66
        v_max_f32 v66, 0, v66
        v_add_f32 v66, {f2u(1e-5):#x}, v66
        v_rsq_f32 v66, v66
        v_lshrrev_b32 v71, 1, v0
        v_lshlrev_b32 v71, 2, v71
        v_lshl_add_u32 v71, v70, 9, v71
        v_mul_f32 v65, -v65, v66
        s_lshl_b32 s{T}, s{S_W}, 7
        s_add_u32 s{T}, s{T}, {L_RSTD}
        v_add_u32 v71, s{T}, v71
        v_cndmask_b32 v65, v65, v66, vcc
        ds_write_b32 v71, v65
        s_cmp_lg_u32 s{S_L}, 0
        s_cbranch_scc1 {E}""")
        a(f"v_add_u32 v71, {L_CSQ}, v{LV_T4}\nds_write_b32 v71, v80 offset:{0 if p is G1 else L_CS1 - L_CSQ}")
        if p is G3:
            a(f"""v_lshlrev_b32 v96, 16, v96
            ds_write_b32 v71, v96 offset:{L_B1 - L_CSQ}
            v_lshlrev_b32 v97, 16, v97
            v_add_u32 v71, {L_B2}, v{LV_L4}
            ds_write_b32 v71, v97""")
        a.label(E)
    def job_junk(g, k, q):
        a = g.a; D = a.uid("jk")
        a(f"s_cmp_lg_u32 s{S_L}, 0\ns_cbranch_scc1 {D}")
        n = 2
        if k < 6:
            a(f"s_add_u32 s{T}, s{S_JH}, {(k//2)*8*16384 + (k%2)*2048}")
        elif k == 6:
            a(f"""s_mul_i32 s{T}, s{S_RB}, {H_RB}
            s_lshr_b32 s{T+1}, s{S_CB}, 1
            s_lshl_b32 s{T+1}, s{T+1}, 14
            s_add_u32 s{T}, s{T}, s{T+1}
            s_and_b32 s{T+1}, s{S_CB}, 1
            s_lshl_b32 s{T+1}, s{T+1}, 10
            s_add_u32 s{T}, s{T}, s{T+1}
            s_add_u32 s{T}, s{T}, s{S_LX}
            s_add_u32 s{T}, s{T}, {HB + 48*16384}""")
        elif k < 9:
            a(f"""s_lshl_b32 s{T}, s{S_RB}, 18
            s_lshl_b32 s{T+1}, s{S_CB}, 14
            s_add_u32 s{T}, s{T}, s{T+1}
            s_add_u32 s{T}, s{T}, s{S_LX}
            s_add_u32 s{T}, s{T}, {XA + (k-7)*2048}""")
        else:
            a(f"s_lshl_b32 s{T}, s2, 14\ns_add_u32 s{T}, s{T}, s{S_LX}\ns_add_u32 s{T}, s{T}, {XB + (k-9)*2048}")
        for i in range(n):
            a(f"buffer_store_dwordx4 v[{LV_X}:{LV_X+3}], v{LV_L16}, s[{SWS}:{SWS+3}], s{T} offen offset:{(2048 if k == 6 else 1024)*i}")
        a.label(D); q += [-2]*n
    def job_trickle(g, items):
        a = g.a; D = a.uid("jt")
        a(f"s_cmp_lg_u32 s{S_L}, 0\ns_cbranch_scc1 {D}\ns_lshl_b32 s{T}, s2, 2\ns_add_u32 s{T}, s{T}, s{S_W}")
        cur = None
        for ptr, sec in items:
            if ptr != cur:
                cur = ptr
                a(f"""s_mul_i32 s{T+1}, s{T}, {2048 if ptr == P_WO else 7168}
                s_add_u32 s{S_PFA}, s{ptr}, s{T+1}
                s_addc_u32 s{S_PFA+1}, s{ptr+1}, 0""")
            a(f"s_load_dword s{S_PFD}, s[{S_PFA}:{S_PFA+1}], {64*sec}")
        a.label(D)
    def job_wtouch(g, ptr, first, q):
        a = g.a; D = a.uid("jw")
        per = 2048 if ptr == P_WO else 7168
        a(f"s_cmp_lg_u32 s{S_L}, 0\ns_cbranch_scc1 {D}")
        g.srd(SM, ptr, 1024*per)
        a(f"""s_lshl_b32 s{T}, s2, 2
        s_add_u32 s{T}, s{T}, s{S_W}
        s_mul_i32 s{T}, s{T}, {per}
        s_add_u32 s{T}, s{T}, {128*first}
        v_min_u32 v{LV_T}, {per//128 - 1 - first}, v0
        v_lshlrev_b32 v{LV_T}, 7, v{LV_T}
        buffer_load_dword v{LV_DUM}, v{LV_T}, s[{SM}:{SM+3}], s{T} offen""")
        a.label(D); q.append(-2)
    def job_cw1(g):
        a = g.a; D = a.uid("cw")
        a(f"s_cmp_lg_u32 s{S_L}, 0\ns_cbranch_scc1 {D}")
        g.l_next_setup(G3)
        a(f"s_mul_i32 s{S_KW}, s{S_RB}, {64*G3.ldb}")
        g.l_issue_w(G3, 0, at=L_CW1)
        a.label(D)
    def ln_jobs(g, p):
        a = g.a
        gs = g.opt.get("gstep", (14, "pre"))
        J = {}
        def add(key, fn): J.setdefault(key, []).append(fn)
        add(gs, lambda q: g.job_gather(p, q))
        def rp(q):
            a(f"s_movk_i32 s{T}, {RXF}\nbuffer_load_dword v{LV_PV}, v{LV_PA}, s[{SWS}:{SWS+3}], s{T} offen sc1"); q.append(6)
        def rc(q):
            D = a.uid("rc")
            if p is G1: a(f"s_cmp_eq_u32 s{S_L}, 0\ns_cbranch_scc1 {D}")
            g.rows_target(3 if p is G3 else -7, own=False)
            a(f"s_movk_i32 s{T+4}, {RXF}")
            g.poll(LV_PA, f"s{T+4}", LV_PV, first_done=True, acquire=False)
            a.label(D)
            g.stamp("l", p.name + "rem")
        add((5, "pre"), rp); add((6, "pre"), rc)
        ntr = g.opt.get("tr1" if p is G1 else "tr3", 4); t0 = g.opt.get("tr0", 2) if p is G1 else 0
        secs = ([(P_WO, k) for k in range(32)] if p is G1 else []) + [(P_W1 if p is G1 else P_W2, k) for k in range(112)]
        for st in range(t0, 14):
            it, secs = secs[:ntr], secs[ntr:]
            if it: add((st, "post"), lambda q, it=it: g.job_trickle(it))
        rest = {}
        for ptr, k in secs: rest.setdefault(ptr, k // 2)
        if not g.opt.get("wt", 1): rest = {}
        for ptr, first in rest.items(): add((14, "post"), lambda q, ptr=ptr, first=first: g.job_wtouch(ptr, first, q))
        add((15, "post"), lambda q: g.job_reduce(p, q, len(rest)))
        if p is G1:
            add((gs[0] - 2, "pre"), g.job_boot_issue)
            for i, k in enumerate(g.opt.get("junk", [])): add((i + 1, "post"), lambda q, k=k: g.job_junk(k, q))
            add((16, "pre"), lambda q: g.job_cw1())
        return {k: (lambda q, v=v: [f(q) for f in v]) for k, v in J.items()}

    def l_kv_gather(g):
        a = g.a; F = 64; Z = 128; S = 132; U = 140
        P = a.uid("kvp"); R = a.uid("kvr"); A = a.uid("kva")
        a(f"""s_lshl_b32 s{T}, s{S_L}, 20
        s_lshl_b32 s{T+1}, s{S_CB}, 16
        s_add_u32 s{T}, s{T}, s{T+1}
        s_lshl_b32 s{T+1}, s{S_W}, 14
        s_add_u32 s{T}, s{T}, s{T+1}
        s_lshr_b32 s{T+4}, s{T}, 4
        s_add_u32 s{T}, s{T}, {KVP}
        s_add_u32 s{T+1}, s{T}, 4096
        s_add_u32 s{T+2}, s{T}, 8192
        s_add_u32 s{T+3}, s{T}, 12288
        s_add_u32 s{T+4}, s{T+4}, {ZP}
        v_and_b32 v{U}, 15, v0
        v_lshlrev_b32 v{U}, 6, v{U}
        v_and_b32 v{U+1}, 48, v0
        v_add_u32 v{U}, v{U}, v{U+1}
        s_mov_b32 s{T+8}, 0x3f80
        s_mov_b32 s{T+9}, 0x3f800000
        s_mov_b32 s{S_SPIN}, {SPIN}""")
        a.label(R)
        a(f"s_mov_b32 s{S_ISS}, 0")
        a.label(P)
        a(f"""buffer_load_dwordx4 {vr(Z,4)}, v{U}, s[{SWS}:{SWS+3}], s{T+4} offen sc1
        s_waitcnt vmcnt(0)
        v_max3_u32 v{U+1}, v{Z}, v{Z+1}, v{Z+2}
        v_max_u32 v{U+1}, v{U+1}, v{Z+3}
        v_cmp_ne_u32 vcc, -1, v{U+1}
        s_and_b32 s{T+5}, vcc_lo, vcc_hi
        s_lshr_b32 s{T+6}, s{T+5}, 16
        s_and_b32 s{T+5}, s{T+5}, s{T+6}
        s_sub_u32 s{S_SPIN}, s{S_SPIN}, 1
        s_cselect_b32 s{T+5}, 0xffff, s{T+5}
        s_cselect_b32 s{S_SPIN}, 0, s{S_SPIN}
        s_andn2_b32 s{T+6}, s{T+5}, s{S_ISS}
        s_cbranch_scc0 {P}
        s_mov_b32 s{S_ISS}, s{T+5}""")
        for i in range(16):
            K = a.uid("kvs")
            a(f"""s_bitcmp1_b32 s{T+6}, {i}
            s_cbranch_scc0 {K}
            buffer_load_dwordx4 {vr(F+4*i,4)}, v{LV_L16}, s[{SWS}:{SWS+3}], s{T+i//4} offen offset:{1024*(i%4)} sc1""")
            a.label(K)
        a(f"s_cmp_lg_u32 s{S_ISS}, 0xffff\ns_cbranch_scc1 {P}")
        g.stamp("l", "kvflag")
        for st in (8, 4, 2, 1):
            for i in range(4): a(f"v_add_f32_dpp v{Z+i}, v{Z+i}, v{Z+i} row_ror:{st} row_mask:0xf bank_mask:0xf")
        a(f"""v_cvt_pk_bf16_f32 v{Z}, v{Z}, v{Z+1}
        v_cvt_pk_bf16_f32 v{Z+1}, v{Z+2}, v{Z+3}
        s_lshr_b32 s{T+5}, s{S_W}, 1
        s_lshl_b32 s{T+5}, s{T+5}, 10
        s_and_b32 s{T+6}, s{S_W}, 1
        s_lshl_b32 s{T+6}, s{T+6}, 3
        s_add_u32 s{T+5}, s{T+5}, s{T+6}
        s_add_u32 s{T+5}, s{T+5}, {L_ZF}
        v_add_u32 v{U+1}, s{T+5}, v{LV_L16}
        ds_write_b64 v{U+1}, {vr(Z,2)}
        s_add_u32 s{T+5}, s{S_LH}, {L_KVF}
        v_add_u32 v{U+1}, s{T+5}, v{LV_L16}""")
        for d in range(0, 8, 2): a(f"v_mov_b64 {vr(S+d,2)}, 0")
        a("s_waitcnt vmcnt(0)")
        for i in range(16):
            for d in range(4):
                a(f"v_dot2c_f32_bf16 v{S+2*d}, s{T+8}, v{F+4*i+d}\nv_dot2c_f32_bf16 v{S+2*d+1}, s{T+9}, v{F+4*i+d}")
        for d in range(4): a(f"v_cvt_pk_bf16_f32 v{U+4+d}, v{S+2*d}, v{S+2*d+1}")
        a(f"""v_add_f32 v{S}, v{S}, v{S+2}
        v_add_f32 v{S+4}, v{S+4}, v{S+6}
        ds_write_b128 v{U+1}, {vr(U+4,4)}
        v_cmp_u_f32 vcc, v{S}, v{S+4}""")
        g.retry(R)
        a("s_waitcnt lgkmcnt(0)\ns_barrier")

    def boot_val(g):
        g.a(f"""s_getreg_b32 s{T}, hwreg(HW_REG_XCC_ID, 0, 4)
        s_and_b32 s{T}, s{T}, 7
        s_mul_i32 s{T+1}, s{T}, s{T}
        s_lshl_b32 s{T}, s{T}, 6
        s_lshl_b32 s{T+1}, s{T+1}, 14
        s_add_u32 s{S_BOOT}, s{T}, s{T+1}
        s_add_u32 s{S_BOOT}, s{S_BOOT}, 1""")
    def loader(g):
        a = g.a; t0, t1, t2 = LV_T, LV_T+1, LV_T+2
        g.stamp("l", "start")
        a(f"""s_lshl_b32 s{S_LX}, s{S_W}, 12
        s_lshl_b32 s{S_LW}, s{S_W}, 11
        s_lshl_b32 s{S_LH}, s{S_W}, 10
        v_lshrrev_b32 v{t0}, 3, v0
        s_lshl_b32 s{T}, s{S_W}, 4
        v_add_u32 v{LV_KN}, s{T}, v{t0}
        v_and_b32 v{t2}, 7, v0
        v_and_b32 v{t1}, 2, v{t0}
        v_xor_b32 v{t1}, v{t1}, v{t2}
        v_lshlrev_b32 v{LV_CH}, 4, v{t1}
        s_lshl_b32 s{T}, s{S_W}, 5
        v_add_u32 v{t0}, s{T}, v{t0}
        v_lshlrev_b32 v{t0}, 11, v{t0}
        v_lshrrev_b32 v{t1}, 4, v0
        v_xor_b32 v{t1}, v{t1}, v{t2}
        v_lshl_add_u32 v{LV_X}, v{t1}, 4, v{t0}
        v_xor_b32 v{LV_X+1}, 64, v{LV_X}
        v_add_u32 v{LV_X+1}, {8*2048 - 1024}, v{LV_X+1}
        v_add_u32 v{LV_X+2}, {16*2048 - 2048}, v{LV_X}
        v_add_u32 v{LV_X+3}, {16*2048 - 2048}, v{LV_X+1}
        s_mov_b32 s{S_XSTR}, 128
        s_mov_b32 s{S_XREM}, 0
        s_and_b32 s{S_J2}, s2, 6""")
        g.tab_first()
        g.l_cols(G1); g.l_setup_w(G1, natural=True)
        a(f"s_lshl_b32 s{T}, s{S_RB}, 18\ns_waitcnt lgkmcnt(0)")
        g.srd(SX, P_X, 128*2048, T)
        g.srd(SW, P_WQKV, 1024*6144)
        g.stamp("l", "karg")
        g.l_line(G1, 0); g.l_issue_x(G1, 0); g.l_issue_w(G1, 0)
        g.stamp("l", "iss0")
        g.l_line(G1, 1); g.l_issue_w(G1, 1); g.l_issue_x(G1, 1)
        a(f"""s_lshr_b32 s{T}, s{S_W}, 1
        s_lshl_b32 s{T}, s{T}, 5
        s_and_b32 s{T+1}, s{S_W}, 1
        s_lshl_b32 s{T+1}, s{T+1}, 3
        s_add_u32 s{T}, s{T}, s{T+1}
        v_bfe_u32 v{t0}, v0, 3, 2
        v_lshrrev_b32 v{t1}, 5, v0
        v_lshl_add_u32 v{t0}, v{t1}, 4, v{t0}
        v_add_u32 v{LV_KF}, s{T}, v{t0}
        v_bfe_u32 v{t0}, v0, 2, 2
        v_lshl_add_u32 v{t0}, v{t1}, 2, v{t0}
        v_and_b32 v{t2}, 16, v0
        v_add3_u32 v{LV_KH}, v{t0}, v{t2}, s{T}
        v_lshlrev_b32 v{t1}, 1, v{t1}
        v_and_b32 v{t2}, 3, v0
        v_xor_b32 v{t1}, v{t1}, v{t2}
        v_lshlrev_b32 v{LV_CHH}, 4, v{t1}
        v_lshlrev_b32 v{LV_L4}, 2, v0
        v_lshlrev_b32 v{LV_L16}, 4, v0
        s_lshl_b32 s{T}, s{S_W}, 8
        v_add_u32 v{LV_T4}, s{T}, v{LV_L4}
        s_lshl_b32 s{T}, s{S_RB}, 8
        v_add_u32 v{LV_PA}, s{T}, v{LV_L4}
        s_mul_i32 s{T}, s{S_RB}, {H_RB}
        s_and_b32 s{T+1}, s{S_CB}, 8
        s_lshl_b32 s{T+1}, s{T+1}, 1
        s_add_u32 s{T+1}, s{T+1}, s{S_CB}
        s_lshl_b32 s{T+1}, s{T+1}, 14
        s_add_u32 s{T}, s{T}, s{T+1}
        s_add_u32 s{T}, s{T}, {HB}
        s_add_u32 s{S_JH}, s{T}, s{S_LX}
        s_lshr_b32 s{S_PFR}, s2, 3
        s_lshl_b32 s{S_PFR}, s{S_PFR}, 1
        s_lshr_b32 s{T}, s{S_W}, 1
        s_add_u32 s{S_PFR}, s{S_PFR}, s{T}
        s_and_b32 s{S_PFH}, s{S_W}, 1
        s_lshl_b32 s{S_PFH}, s{S_PFH}, 6""")
        g.boot_val()
        g.l_pf(G1, 2); g.l_pf(G1, 3, False)
        a(f"s_waitcnt vmcnt({G1.P})")
        g.stamp("l", "land0")
        a("s_branch L_l_g1b")
        a.label("L_l_layer")
        for s in range(2):
            g.l_line(G1, s, w=False); g.l_issue_x(G1, s)
        a("s_waitcnt vmcnt(4)")
        a.label("L_l_g1b")
        g.l_main(G1, g.ln_jobs(G1), q0=[0] + [-1]*50 + [1]*4, nxt=G2)
        g.stamp("l", "g1end")
        a(f"v_add_u32 v{LV_X}, s{S_LX}, v{LV_L16}\ns_mov_b32 s{S_XSTR}, 16384\ns_mov_b32 s{S_XREM}, {XREM if g.opt.get('dual', 0) else 0}")
        g.tab_local()
        for i in range(1, 4): a(f"v_mov_b32 v{LV_X+i}, v{LV_X}")
        g.l_xsrd(HB, H_RB)
        a("s_barrier")
        g.l_kv_gather()
        g.stamp("l", "kvdone")
        g.l_wait_rows(1)
        g.stamp("l", "oflag")
        g.l_main(G2, nxt=G3)
        g.l_xsrd(XA, 16*16384, XREM)
        a("s_barrier")
        g.l_wait_rows(3)
        g.stamp("l", "x1flag")
        g.l_main(G3, g.ln_jobs(G3), nxt=G4)
        g.l_xsrd(HB, H_RB)
        g.l_wait_rows(5)
        g.stamp("l", "hflag")
        def hp(q): a(f"buffer_load_dword v{LV_PV}, v{LV_PA}, s[{SWS}:{SWS+3}], 0 offen sc1"); q.append(5)
        def hc(q): g.rows_target(7); g.poll(LV_PA, "0", LV_PV, first_done=True); g.stamp("l", "hall")
        j4 = {(4, "pre"): hp, (5, "pre"): hc}
        g.l_main(G4, j4, nxt=G1, cond_nxt=True)
        a(f"s_cmp_lg_u32 s{S_L}, 0\ns_cbranch_scc1 L_l_fin")
        g.l_xsrd(XA, 16*16384, XREM)
        a("s_barrier")
        g.l_wait_rows(9)
        g.stamp("l", "x2flag")
        a(f"s_mov_b32 s{S_L}, 1\ns_mov_b32 s{S_FB}, 16\ns_branch L_l_layer")
        a.label("L_l_fin")
        g.finish("l")

    def c_main(g, p, reps):
        a = g.a; NB = p.NB; RW = 3 if NB == 6 else 4
        nwa = 3 if 64 in p.subt else 2
        def xr(par): return [f"ds_read_b128 {vr(XF + par*32 + mb*8 + kk*4, 4)}, v{V_XA+kk} offset:{mb*2048}" for mb in range(4) for kk in range(2)]
        def wr(nb):
            ri, off, w = p.nblk[nb]
            return [f"ds_read_b64_tr_b16 {vr(WF + (nb % RW)*8 + kk*4 + 2*h, 2)}, v{V_WA+ri} offset:{off + (32*kk + 4*h)*w}" for kk in range(2) for h in range(2)]
        def mf(par, nb):
            out = []
            for mb in range(4):
                for kk in range(2):
                    d = vr(ACC + 4*(nb*4 + mb), 4)
                    X, W = vr(XF + par*32 + mb*8 + kk*4, 4), vr(WF + (nb % RW)*8 + kk*4, 4)
                    A, B = (W, X) if p.swapped[nb] else (X, W)
                    out.append(f"v_mfma_f32_16x16x32_bf16 {d}, {A}, {B}, {d}")
            return out
        def inter(ms, rs):
            rs = list(rs)
            for m in ms:
                a(m)
                if rs: a(rs.pop(0))
            assert not rs
        for i in range(nwa): a(f"v_mov_b32 v{V_WA+i}, v{V_WA0+i}")
        for i in range(0, NB*16, 2): a(f"v_pk_mov_b32 {vr(ACC+i,2)}, 0, 0" if False else f"v_mov_b64 {vr(ACC+i,2)}, 0")
        a(f"s_mov_b32 s{S_CNT}, {reps}\ns_mov_b32 s{S_SLOT}, 0\ns_mov_b32 s{S_KX}, {(-(p.NST-1)*p.xp) & 0xffffffff:#x}\ns_mov_b32 s{S_KW}, {(-(p.NST-1)*p.wp) & 0xffffffff:#x}")
        a("s_waitcnt lgkmcnt(0)\ns_barrier")
        g.stamp("c", *(("b0", True) if p is G2 else (p.name + "b0",)))
        if p is G1: g.job_colsum(G1)
        for r in wr(0) + xr(0) + wr(1): a(r)
        L = a.uid("cl")
        a(".p2align 3")
        a.label(L)
        for par in range(2):
            for nb in range(NB):
                if nb < NB - 2:
                    a("s_waitcnt lgkmcnt(4)")
                    ex = []
                    if nb == 0:
                        ex = [f"s_add_u32 s{S_SLOT}, s{S_SLOT}, 1\ns_cmp_eq_u32 s{S_SLOT}, {p.NST}",
                              f"s_cselect_b32 s{S_DLX}, s{S_KX}, {p.xp}", f"s_cselect_b32 s{S_DLW}, s{S_KW}, {p.wp}", f"s_cselect_b32 s{S_SLOT}, 0, s{S_SLOT}"]
                    if nb == NB - 3:
                        up = [f"v_add_u32 v{r}, s{S_DLX}, v{r}" for r in range(V_XA, V_XA+2)] + [f"v_add_u32 v{r}, s{S_DLW}, v{r}" for r in range(V_WA, V_WA+nwa)]
                        ex = ["\n".join(up[0:2]), "\n".join(up[2:4])] + up[4:]
                    inter(mf(par, nb), wr(nb + 2) + ex)
                elif nb == NB - 2:
                    a("s_waitcnt lgkmcnt(0)\ns_barrier")
                    nx = wr(0) + xr(1 - par) + wr(1)
                    inter(mf(par, nb), nx[:8])
                else:
                    nx = nx[8:]
                    if par == 1: nx[6] += f"\ns_sub_u32 s{S_CNT}, s{S_CNT}, 1\ns_cmp_lg_u32 s{S_CNT}, 0"
                    inter(mf(par, nb), nx)
        a(f"s_cbranch_scc1 {L}")
        if p in (G1, G3):
            HA, HB_, HC = a.uid("hka"), a.uid("hkb"), a.uid("hkc")
            a(f"s_cmp_lg_u32 s{S_HOOK}, 0\ns_cbranch_scc1 {HA if p is G1 else HC}")
            g.cold.append(f"""{HC}:
            s_mov_b32 s{S_HOOK}, 0
            s_mov_b32 s{S_CNT}, 7
            s_add_u32 s{T}, s{S_FB}, {3 if p is G3 else -7}
            v_mov_b32 v{V_HK}, s{T}
            s_movk_i32 s{T}, {RXF}
            s_waitcnt vmcnt(0)
            buffer_store_dword v{V_HK}, v{V_FLG}, s[{SWS}:{SWS+3}], s{T} offen sc1
            s_branch {L}""")
        if p is G1:
            g.cold.append(f"""{HA}:
            s_cmp_eq_u32 s{S_HOOK}, 3
            s_cbranch_scc1 {HC}
            s_cmp_eq_u32 s{S_HOOK}, 1
            s_cbranch_scc1 {HB_}
            s_mov_b32 s{S_HOOK}, 1
            s_mov_b32 s{S_CNT}, 1
            s_waitcnt vmcnt(0)
            s_branch {L}
            {HB_}:
            s_mov_b32 s{S_HOOK}, 0
            s_mov_b32 s{S_CNT}, {8 - 1 - HOOKA}
            s_cmp_lg_u32 s{S_W}, 0
            s_cbranch_scc1 {L}
            s_mov_b32 s{SM}, s{P_DBG}
            s_mov_b32 s{SM+1}, s{P_DBG+1}
            s_mov_b32 s{SM+2}, 256
            s_mov_b32 s{SM+3}, 0x20000
            s_lshl_b32 s{T}, s{S_XCD}, 5
            v_mov_b32 v{V_HK}, s{S_BOOT}
            buffer_atomic_add v{V_HK}, v{V_ONE}, s[{SM}:{SM+3}], s{T} offen sc1
            s_branch {L}""")
        if p is G2:
            D = a.uid("hkd")
            a(f"s_cmp_eq_u32 s{S_HOOK}, 0\ns_cbranch_scc1 {D}\ns_mov_b32 s{S_CNT}, s{S_HOOK}\ns_mov_b32 s{S_HOOK}, 0")
            g.signal_row(7, V_HK)
            a(f"s_branch {L}")
            a.label(D)
        a("s_waitcnt lgkmcnt(0)")
        g.stamp("c", *(("loop", True) if p is G2 else (p.name + "loop",)))

    def phi(g, t, u, dst):
        c = f"s[{S_C}:{S_C+1}]"
        return [f"v_pk_fma_f32 {vr(u,2)}, {vr(t,2)}, {c}, {c} op_sel:[0,0,1] op_sel_hi:[1,0,1]",
                f"v_max_f32 v{t}, s{S_C+2}, v{t}", f"v_max_f32 v{t+1}, s{S_C+2}, v{t+1}",
                f"v_exp_f32 v{u}, v{u} clamp", f"v_exp_f32 v{u+1}, v{u+1} clamp",
                f"v_pk_add_f32 {vr(t,2)}, {vr(t,2)}, {vr(u,2)}",
                f"v_cvt_pk_bf16_f32 v{dst}, v{t}, v{t+1}"]
    def zipemit(g, streams):
        streams = [list(s) for s in streams]
        while any(streams):
            for s in streams:
                if s: g.a(s.pop(0))

    def clear_kv(g, layer, t0):
        g.a(f"""v_lshlrev_b32 v{t0}, 4, v0
        v_and_b32 v{t0+1}, 15, v0
        v_lshlrev_b32 v{t0+1}, 2, v{t0+1}
        s_lshl_b32 s{T}, s{S_CB}, 16
        s_lshl_b32 s{T+1}, s{S_RB}, 10
        s_add_u32 s{T}, s{T}, s{T+1}
        s_lshl_b32 s{T+1}, s{S_W}, 14
        s_add_u32 s{T}, s{T}, s{T+1}
        s_lshr_b32 s{T+1}, s{T}, 4
        s_add_u32 s{T}, s{T}, {KVP + layer*KVP_L}
        s_add_u32 s{T+1}, s{T+1}, {ZP + layer*ZP_L}
        buffer_store_dwordx4 {vr(V_SEN,4)}, v{t0}, s[{SWS}:{SWS+3}], s{T} offen sc1
        buffer_store_dword v{V_SEN}, v{t0+1}, s[{SWS}:{SWS+3}], s{T+1} offen sc1""")
    def clear_xb(g, t0, inst):
        g.a(f"""v_mov_b64 {vr(V_SEN,2)}, -1
        v_mov_b64 {vr(V_SEN+2,2)}, -1
        v_lshlrev_b32 v{t0}, 4, v0
        s_lshl_b32 s{T}, s2, 14
        s_lshl_b32 s{T+1}, s{S_W}, 12
        s_add_u32 s{T}, s{T}, s{T+1}
        s_add_u32 s{T}, s{T}, {XB + inst*XB_I}""")
        for mb in range(4): g.a(f"buffer_store_dwordx4 {vr(V_SEN,4)}, v{t0}, s[{SWS}:{SWS+3}], s{T} offen offset:{1024*mb} sc1")
    def c_epi_g1(g):
        a = g.a
        acc = lambda nb, mb: ACC + 4*(nb*4 + mb)
        R, NM, CSN, RQ, CSQ_ = 16, 32, 48, 56, 64
        PK, VV, PQ, KV, U, ONE = 72, 88, 208, 224, 104, 248
        eps2 = f"s[{S_C+2}:{S_C+3}]"
        a(f"""s_mov_b32 s{S_C}, {f2u(LOG2E):#x}
        s_mov_b32 s{S_C+1}, {f2u(-EPS*LOG2E):#x}
        s_mov_b32 s{S_C+2}, {f2u(EPS):#x}
        s_mov_b32 s{S_C+3}, 0
        v_and_b32 v{U}, 48, v0
        v_and_b32 v{U+1}, 15, v0
        v_lshlrev_b32 v{U+1}, 2, v{U+1}
        s_lshl_b32 s{T}, s{S_WM}, 8
        s_add_u32 s{T}, s{T}, {L_RSTD}
        s_lshl_b32 s{T+1}, s{S_WN}, 7
        s_add_u32 s{T+1}, s{T+1}, {L_CSQ}
        v_add_u32 v{U+2}, s{T}, v{U}
        v_add_u32 v{U+3}, s{T+1}, v{U+1}
        v_add_u32 v{U+4}, s{T}, v{U+1}
        v_add_u32 v{U+5}, s{T+1}, v{U}
        v_mov_b32 v{U+6}, {L_MODE}""")
        for i in range(4): a(f"ds_read_b32 v{CSN+2*i}, v{U+3} offset:{256*(1 + i//2) + 64*(i%2)}")
        for mb in range(4):
            a(f"ds_read_b128 {vr(NM+4*mb,4)}, v{U+2} offset:{512 + 64*mb}\nds_read_b128 {vr(R+4*mb,4)}, v{U+2} offset:{64*mb}")
        a(f"ds_read_b32 v{U+7}, v{U+6}")
        a("s_waitcnt vmcnt(0) lgkmcnt(0)")
        for mb in range(4): a(f"ds_read2_b32 {vr(RQ+2*mb,2)}, v{U+4} offset0:{16*mb} offset1:{128 + 16*mb}")
        for b in range(2): a(f"ds_read_b128 {vr(CSQ_+4*b,4)}, v{U+5} offset:{64*b}")
        a(f"v_readfirstlane_b32 s{S_MODE}, v{U+7}")
        for i in range(4): a(f"v_mov_b32 v{ONE+i}, 0x3f803f80")
        for mb in range(4):
            st = []
            for b in range(2):
                for h in range(2):
                    t = acc(2+b, mb) + 2*h; u = U + 2*(2*b + h)
                    st.append([f"v_pk_fma_f32 {vr(u,2)}, {vr(NM+4*mb+2*h,2)}, {vr(CSN+2*b,2)}, {eps2} op_sel_hi:[1,0,0]",
                               f"v_pk_fma_f32 {vr(t,2)}, {vr(t,2)}, {vr(R+4*mb+2*h,2)}, {vr(u,2)}"]
                              + g.phi(t, u, PK + 8*b + 2*mb + h))
            g.zipemit(st)
            st = []
            for b in range(2):
                for h in range(2):
                    t = acc(4+b, mb) + 2*h; u = U + 2*(2*b + h)
                    st.append([f"v_pk_mul_f32 {vr(u,2)}, {vr(NM+4*mb+2*h,2)}, {vr(CSN+4+2*b,2)} op_sel_hi:[1,0]",
                               f"v_pk_fma_f32 {vr(t,2)}, {vr(t,2)}, {vr(R+4*mb+2*h,2)}, {vr(u,2)}",
                               f"v_cvt_pk_bf16_f32 v{VV + 8*b + 2*mb + h}, v{t}, v{t+1}"])
            g.zipemit(st)
            if mb % 2 == 1:
                u2 = mb // 2
                for eb in range(3):
                    for db in range(2):
                        d = vr(KV + 8*eb + 4*db, 4)
                        B = vr(VV + 8*eb + 4*u2, 4) if eb < 2 else vr(ONE, 4)
                        a(f"v_mfma_f32_16x16x32_bf16 {d}, {vr(PK + 8*db + 4*u2, 4)}, {B}, {'0' if u2 == 0 else d}")
        W1 = a.uid("kvw"); W2 = a.uid("kvx")
        a(f"""s_mul_i32 s{T}, s{S_W}, 3072
        s_add_u32 s{T}, s{T}, {L_XCH}
        s_xor_b32 s{T+1}, s{S_W}, 2
        s_mul_i32 s{T+1}, s{T+1}, 3072
        s_add_u32 s{T+1}, s{T+1}, {L_XCH}
        v_lshl_add_u32 v{U}, v0, 4, s{T}
        v_lshl_add_u32 v{U+1}, v0, 4, s{T+1}
        s_lshl_b32 s{T}, s{S_L}, 20
        s_lshl_b32 s{T+1}, s{S_CB}, 16
        s_add_u32 s{T}, s{T}, s{T+1}
        s_lshl_b32 s{T+1}, s{S_WN}, 15
        s_add_u32 s{T}, s{T}, s{T+1}
        s_lshl_b32 s{T+1}, s{S_WM}, 14
        s_add_u32 s{T}, s{T}, s{T+1}
        s_lshl_b32 s{T+1}, s{S_RB}, 10
        s_add_u32 s{T}, s{T}, s{T+1}
        s_lshr_b32 s{T+1}, s{T}, 4
        s_add_u32 s{T}, s{T}, {KVP}
        s_add_u32 s{T+1}, s{T+1}, {ZP}
        v_lshlrev_b32 v{U+2}, 4, v0
        v_and_b32 v{U+3}, 15, v0
        v_cmp_eq_u32 vcc, 0, v{U+3}
        v_mov_b32 v{U+3}, {WSZ}
        v_cndmask_b32 v{U+3}, v{U+3}, v0, vcc
        s_cmp_eq_u32 s{S_WM}, 0
        s_cbranch_scc0 {W1}""")
        for wm in range(2):
            if wm == 1: a.label(W1)
            keep = [KV + 8*wm, KV + 8*wm + 4, KV + 16 + 4*wm]
            send = [KV + 8*(1-wm), KV + 8*(1-wm) + 4, KV + 16 + 4*(1-wm)]
            for i in range(3): a(f"ds_write_b128 v{U}, {vr(send[i],4)} offset:{1024*i}")
            a("s_waitcnt lgkmcnt(0)\ns_barrier")
            for i in range(3): a(f"ds_read_b128 {vr(R+4*i,4)}, v{U+1} offset:{1024*i}")
            for i in range(3):
                a(f"s_waitcnt lgkmcnt({2-i})")
                for h in range(2): a(f"v_pk_add_f32 {vr(R+4*i+2*h,2)}, {vr(R+4*i+2*h,2)}, {vr(keep[i]+2*h,2)}")
            if wm == 0: a(f"s_branch {W2}")
        a.label(W2)
        for d in range(4): a(f"v_cvt_pk_bf16_f32 v{NM+d}, v{R+2*d}, v{R+2*d+1}")
        a(f"""buffer_store_dwordx4 {vr(NM,4)}, v{U+2}, s[{SWS}:{SWS+3}], s{T} offen sc1
        buffer_store_dwordx4 {vr(R+8,4)}, v{U+3}, s[{SWS}:{SWS+3}], s{T+1} offen sc1""")
        g.stamp("c", "kvst")
        for mb in range(4):
            st = []
            for b in range(2):
                for h in range(2):
                    t = acc(b, mb) + 2*h; u = U + 2*(2*b + h)
                    st.append([f"v_pk_fma_f32 {vr(u,2)}, {vr(CSQ_+4*b+2*h,2)}, {vr(RQ+2*mb,2)}, {eps2} op_sel:[0,1,0] op_sel_hi:[1,1,0]",
                               f"v_pk_fma_f32 {vr(t,2)}, {vr(t,2)}, {vr(RQ+2*mb,2)}, {vr(u,2)} op_sel_hi:[1,0,1]"]
                              + g.phi(t, u, PQ + 4*mb + 2*b + h))
            g.zipemit(st)
        NC = a.uid("ncl")
        g.clear_xb(U, 1)
        a(f"s_cmp_lg_u32 s{S_L}, 0\ns_cbranch_scc1 {NC}")
        g.clear_xb(U, 2)
        g.clear_kv(1, U)
        a(f"v_lshlrev_b32 v{U}, 2, v0")
        for i in range(1, 4):
            a(f"s_add_u32 s{T}, s{T+13}, {i*STAT_I}\nbuffer_store_dword v{V_SEN}, v{U}, s[{SWS}:{SWS+3}], s{T} offen sc1")
        a.label(NC)
        a(f"""s_lshl_b32 s{T}, s{S_WN}, 11
        s_add_u32 s{T}, s{T}, {L_KVF}
        v_lshl_add_u32 v{U+1}, v0, 4, s{T}
        s_lshl_b32 s{T}, s{S_WN}, 10
        s_add_u32 s{T}, s{T}, {L_ZF}
        v_lshl_add_u32 v{U+2}, v0, 4, s{T}
        s_mul_i32 s{T}, s{S_RB}, {H_RB}
        s_and_b32 s{T+1}, s{S_CB}, 8
        s_lshl_b32 s{T+1}, s{T+1}, 1
        s_add_u32 s{T+1}, s{T+1}, s{S_CB}
        s_lshl_b32 s{T+1}, s{T+1}, 14
        s_add_u32 s{T}, s{T}, s{T+1}
        s_add_u32 s{T+2}, s{T}, {HB}
        s_add_u32 s{T+3}, s{T+2}, 4096""")
        g.stamp("c", "kvflag")
        a(f"""s_barrier
        ds_read_b128 {vr(R+8,4)}, v{U+2}
        ds_read_b128 {vr(R,4)}, v{U+1}
        ds_read_b128 {vr(R+4,4)}, v{U+1} offset:1024""")
        g.stamp("c", "bk2")
        a("s_waitcnt lgkmcnt(2)")
        for mb in range(4): a(f"v_mfma_f32_16x16x32_bf16 {vr(acc(2,mb),4)}, {vr(R+8,4)}, {vr(PQ+4*mb,4)}, 0")
        a("s_waitcnt lgkmcnt(0)")
        for mb in range(4):
            for eb in range(2): a(f"v_mfma_f32_16x16x32_bf16 {vr(acc(eb,mb),4)}, {vr(R+4*eb,4)}, {vr(PQ+4*mb,4)}, 0")
        for mb in range(4): a(f"v_add_f32 v{acc(2,mb)}, s{S_C+2}, v{acc(2,mb)}")
        for mb in range(4): a(f"v_rcp_f32 v{acc(2,mb)}, v{acc(2,mb)}")
        ln = []
        for mb in range(4):
            for eb in range(2):
                for h in range(2):
                    t = acc(eb, mb) + 2*h
                    ln.append(f"v_pk_mul_f32 {vr(t,2)}, {vr(t,2)}, {vr(acc(2,mb),2)} op_sel_hi:[1,0]")
            for eb in range(2):
                for h in range(2):
                    t = acc(eb, mb) + 2*h
                    ln.append(f"v_cvt_pk_bf16_f32 v{acc(3,mb) + 2*eb + h}, v{t}, v{t+1}")
            ln.append(f"buffer_store_dwordx4 {vr(acc(3,mb),4)}, v{V_FS}, s[{SWS}:{SWS+3}], s{T+2+mb//2} offen offset:{2048*(mb%2)}")
        if g.opt.get("osc", 1): g.stores_by_mode(ln, S_L, 1)
        else:
            for l in ln: a(l)
        g.signal_row(1, U)
        g.stamp("c", "osig")
        g.job_colsum(G3)

    def c_epi_g24(g):
        a = g.a
        acc = lambda nb, mb: ACC + 4*(nb*4 + mb)
        RS, BI, U, PP, SD, XO, B2 = 16, 32, 40, 48, 64, 80, 96
        dual = g.opt.get("dual", 0)
        NB_ = a.uid("nob"); PL = a.uid("xpl"); PC = a.uid("xpc")
        a(f"""s_lshl_b32 s{T+1}, s2, 14
        s_lshl_b32 s{T+2}, s{S_W}, 12
        s_add_u32 s{T+1}, s{T+1}, s{T+2}
        s_xor_b32 s{T+2}, s{T+1}, {1 << 14}
        s_lshl_b32 s{T}, s{S_L}, 23
        s_cmp_eq_u32 s{S_G4}, 0
        s_cselect_b32 s{T}, s{T}, {XB_I}
        s_add_u32 s{T}, s{T}, {XB}
        s_add_u32 s{T+7}, s{T+1}, s{T}
        s_add_u32 s{T+5}, s{T+2}, s{T}
        v_lshlrev_b32 v{U}, 4, v0
        s_lshl_b32 s{T}, s{S_WN}, 7
        s_add_u32 s{T}, s{T}, {L_B2}
        v_and_b32 v{U+1}, 48, v0
        v_add_u32 v{U+1}, s{T}, v{U+1}""")
        ln = []
        for mb in range(4):
            for b in range(2):
                for h in range(2):
                    t = acc(2+b, mb) + 2*h
                    ln.append(f"v_cvt_pk_bf16_f32 v{SD+4*mb+2*b+h}, v{t}, v{t+1}")
            ln.append(f"buffer_store_dwordx4 {vr(SD+4*mb,4)}, v{U}, s[{SWS}:{SWS+3}], s{T+5} offen offset:{1024*mb} sc1")
        for l in ln: a(l)
        for mb in range(4):
            for b in range(2): a(f"ds_read_b64 {vr(RS+4*mb+2*b,2)}, v{V_RES+b} offset:{2048*mb}")
        for b in range(2): a(f"ds_read_b128 {vr(B2+4*b,4)}, v{U+1} offset:{64*b}")
        g.stamp("c", "psig", True)
        lds = [f"buffer_load_dwordx4 {vr(PP+4*mb,4)}, v{U}, s[{SWS}:{SWS+3}], s{T+7} offen offset:{1024*mb} sc1" for mb in range(4)]
        a(f"""s_lshl_b32 s{T+1}, s{S_RB}, 18
        s_lshl_b32 s{T+2}, s{S_CB}, 14
        s_add_u32 s{T+2}, s{T+2}, s{T+1}
        s_add_u32 s{T+2}, s{T+2}, {XA}
        s_add_u32 s{T+3}, s{T+2}, 4096
        s_mul_i32 s{T+9}, s{S_G4}, 6
        s_add_u32 s{T+9}, s{T+9}, 3
        s_and_b32 s{T+4}, s{S_G4}, s{S_L}
        s_cselect_b32 s{T}, {WSZ}, 0
        v_add_u32 v{U+2}, s{T}, v{V_FS}
        s_mov_b32 s{S_SPIN}, {SPIN}
        s_waitcnt lgkmcnt(0)""")
        for mb in range(4):
            st = []
            for b in range(2):
                for h in range(2):
                    t = acc(b, mb) + 2*h; u = BI + 2*(2*b+h); r = RS + 4*mb + 2*b + h
                    st.append([f"v_lshlrev_b32 v{u}, 16, v{r}", f"v_and_b32 v{u+1}, 0xffff0000, v{r}", f"v_pk_add_f32 {vr(t,2)}, {vr(t,2)}, {vr(u,2)}"])
            g.zipemit(st)
        xw = g.opt.get("xbwait", 0)
        if not xw:
            for l in lds: a(l)
        a(f"s_cmp_eq_u32 s{S_G4}, 0\ns_cbranch_scc1 {NB_ if xw else PC}")
        for mb in range(4):
            for b in range(2):
                for h in range(2):
                    t = acc(b, mb) + 2*h
                    a(f"v_pk_add_f32 {vr(t,2)}, {vr(t,2)}, {vr(B2+4*b+2*h,2)}")
        if xw:
            a.label(NB_)
            for mb in range(4): a(f"s_waitcnt vmcnt(3)\n" + lds[mb])
        a(f"s_branch {PC}")
        a.label(PL)
        for l in lds: a(l)
        a.label(PC)
        for mb in range(4):
            a(f"s_waitcnt vmcnt({3-mb})")
            p0 = PP + 4*mb
            if mb == 0: a(f"v_max3_u32 v{U+3}, v{p0}, v{p0+1}, v{p0+2}\nv_max_u32 v{U+3}, v{U+3}, v{p0+3}")
            else: a(f"v_max3_u32 v{U+3}, v{U+3}, v{p0}, v{p0+1}\nv_max3_u32 v{U+3}, v{U+3}, v{p0+2}, v{p0+3}")
        a(f"v_cmp_eq_u32 vcc, -1, v{U+3}")
        g.retry(PL)
        g.stamp("c", "pflag", True)
        for mb in range(4):
            st = []
            for b in range(2):
                for h in range(2):
                    t = acc(b, mb) + 2*h; u = BI + 2*(2*b+h); r = PP + 4*mb + 2*b + h
                    st.append([f"v_lshlrev_b32 v{u}, 16, v{r}", f"v_and_b32 v{u+1}, 0xffff0000, v{r}", f"v_pk_add_f32 {vr(t,2)}, {vr(t,2)}, {vr(u,2)}",
                               f"v_cvt_pk_bf16_f32 v{XO+4*mb+2*b+h}, v{t}, v{t+1}"])
            g.zipemit(st)
            a(f"buffer_store_dwordx4 {vr(XO+4*mb,4)}, v{U+2}, s[{SWS}:{SWS+3}], s{T+2+mb//2} offen offset:{2048*(mb%2)}{'' if dual else ' sc1'}")
            for b in range(2): a(f"ds_write_b64 v{V_RES+b}, {vr(XO+4*mb+2*b,2)} offset:{2048*mb}")
        a(f"s_cmp_lg_u32 s{T+4}, 0\ns_cbranch_scc1 L_c_fin")
        g.signal_row(f"s{T+9}", U+1)
        if not dual: a(f"s_movk_i32 s{T}, {RXF}\nbuffer_store_dword v{U+1}, v{V_FLG}, s[{SWS}:{SWS+3}], s{T} offen sc1")
        g.stamp("c", "xsig", True)
        a(f"s_add_u32 s{T+2}, s{T+2}, {XREM}\ns_add_u32 s{T+3}, s{T+3}, {XREM}")
        rst = [f"buffer_store_dwordx4 {vr(XO+4*mb,4)}, v{V_FS}, s[{SWS}:{SWS+3}], s{T+4+mb//2} offen offset:{2048*(mb%2)} sc1" for mb in range(4)]
        a(f"s_mov_b64 s[{T+4}:{T+5}], s[{T+2}:{T+3}]")
        a("s_waitcnt lgkmcnt(0)\ns_barrier")
        a(f"s_lshl_b32 s{T+10}, s{S_L}, 1\ns_add_u32 s{T+10}, s{T+10}, s{S_G4}\ns_add_u32 s{T+10}, s{T+10}, 1")
        g.job_stats(f"s{T+10}")
        if dual:
            for l in rst: a(l)

    def c_epi_g3(g):
        a = g.a
        acc = lambda nb, mb: ACC + 4*(nb*4 + mb)
        CS, B1, RQ, U, HO = 16, 44, 72, 80, 224
        c = f"s[{S_C}:{S_C+1}]"
        a(f"""s_mov_b32 s{S_C}, {f2u(GC2):#x}
        s_mov_b32 s{S_C+1}, {f2u(GC1):#x}
        v_and_b32 v{U}, 48, v0
        v_and_b32 v{U+1}, 15, v0
        s_lshl_b32 s{T}, s{S_WM}, 8
        s_add_u32 s{T}, s{T}, {L_RSTD}
        v_lshl_add_u32 v{U+1}, v{U+1}, 2, s{T}
        s_lshl_b32 s{T+1}, s{S_WN}, 7
        s_add_u32 s{T+1}, s{T+1}, {L_CS1}
        v_add_u32 v{U+2}, s{T+1}, v{U}
        s_lshl_b32 s{T+1}, s{S_WN}, 6
        s_add_u32 s{T+1}, s{T+1}, {L_CS1 + 768}
        v_add_u32 v{U+3}, s{T+1}, v{U}""")
        for mb in range(4): a(f"ds_read2_b32 {vr(RQ+2*mb,2)}, v{U+1} offset0:{16*mb} offset1:{128 + 16*mb}")
        for nb in range(7):
            ad, off = (U+2, 256*(nb//2) + 64*(nb%2)) if nb < 6 else (U+3, 0)
            a(f"ds_read_b128 {vr(CS+4*nb,4)}, v{ad} offset:{off}\nds_read_b128 {vr(B1+4*nb,4)}, v{ad} offset:{off + L_B1 - L_CS1}")
            if nb == 3: a("s_waitcnt lgkmcnt(4)")
        a(f"""s_mul_i32 s{T}, s{S_RB}, {H_RB}
        s_add_u32 s{T}, s{T}, {HB}
        s_and_b32 s{T+1}, s{S_CB}, 7
        s_lshl_b32 s{T+1}, s{T+1}, 14
        s_add_u32 s{T}, s{T}, s{T+1}
        s_lshr_b32 s{T+1}, s{S_CB}, 3
        s_mul_i32 s{T+2}, s{T+1}, {24*16384}
        s_add_u32 s{T+2}, s{T+2}, s{T}
        s_add_u32 s{T+3}, s{T+2}, 4096
        s_mul_i32 s{T+4}, s{S_RB}, {H_RB}
        s_lshr_b32 s{T+1}, s{S_CB}, 1
        s_lshl_b32 s{T+1}, s{T+1}, 14
        s_add_u32 s{T+4}, s{T+4}, s{T+1}
        s_and_b32 s{T+1}, s{S_CB}, 1
        s_lshl_b32 s{T+1}, s{T+1}, 10
        s_add_u32 s{T+4}, s{T+4}, s{T+1}
        s_add_u32 s{T+4}, s{T+4}, {HB + 48*16384}
        s_mul_i32 s{T+1}, s{S_WN}, 1016
        s_sub_u32 s{T+4}, s{T+4}, s{T+1}
        s_add_u32 s{T+5}, s{T+4}, 4096""")
        def gelu(nb, mb, h, u, dst):
            t = acc(nb, mb) + 2*h
            return [f"v_pk_fma_f32 {vr(u,2)}, {vr(CS+4*nb+2*h,2)}, {vr(RQ+2*mb,2)}, {vr(B1+4*nb+2*h,2)} op_sel:[0,1,0] op_sel_hi:[1,1,1]",
                    f"v_pk_fma_f32 {vr(t,2)}, {vr(t,2)}, {vr(RQ+2*mb,2)}, {vr(u,2)} op_sel_hi:[1,0,1]",
                    f"v_pk_mul_f32 {vr(u,2)}, {vr(t,2)}, {vr(t,2)}",
                    f"v_pk_fma_f32 {vr(u,2)}, {vr(u,2)}, {c}, {c} op_sel:[0,0,1] op_sel_hi:[1,0,1]",
                    f"v_pk_mul_f32 {vr(u,2)}, {vr(u,2)}, {vr(t,2)}",
                    f"v_exp_f32 v{u}, v{u}\nv_exp_f32 v{u+1}, v{u+1}",
                    f"v_pk_add_f32 {vr(u,2)}, {vr(u,2)}, 1.0 op_sel_hi:[1,0]",
                    f"v_rcp_f32 v{u}, v{u}\nv_rcp_f32 v{u+1}, v{u+1}",
                    f"v_pk_mul_f32 {vr(t,2)}, {vr(t,2)}, {vr(u,2)}",
                    f"v_cvt_pk_bf16_f32 v{dst}, v{t}, v{t+1}"]
        k = 0; hfl = g.opt.get("hfl", "")
        for t3 in range(3):
            if t3 == 1: a("s_waitcnt lgkmcnt(0)")
            for mb in range(4):
                o = HO + 4*(k % 4); k += 1
                g.zipemit([gelu(2*t3 + b, mb, h, U + 4 + 2*(2*b+h), o + 2*b + h) for b in range(2) for h in range(2)])
                a(f"buffer_store_dwordx4 {vr(o,4)}, v{V_FS}, s[{SWS}:{SWS+3}], s{T+2+mb//2} offen offset:{2048*(mb%2)}{hfl if t3 else ''}")
                if (t3, mb) == (1, g.opt.get("h0sig", 1)):
                    g.signal_row(5, V_HK, mb + 1)
                    g.stamp("c", "h0sig")
            if t3 < 2: a(f"s_add_u32 s{T+2}, s{T+2}, {8*16384}\ns_add_u32 s{T+3}, s{T+3}, {8*16384}")
        for m2 in range(2):
            o = HO + 4*(k % 4); k += 1
            g.zipemit([gelu(6, 2*m2 + b, h, U + 4 + 2*(2*b+h), o + 2*b + h) for b in range(2) for h in range(2)])
            for b in range(2):
                a(f"buffer_store_dwordx2 {vr(o+2*b,2)}, v{V_FS}, s[{SWS}:{SWS+3}], s{T+4+m2} offen offset:{2048*b}{hfl}")
        g.stamp("c", "hsig")

    def compute(g):
        a = g.a; t0, t1, t2, t3 = 16, 17, 18, 19
        a(".p2align 3")
        a.label("L_compute")
        g.stamp("c", "start")
        a(f"""s_getpc_b64 s[{T}:{T+1}]
        L_pc:
        s_sub_u32 s{T}, s{T}, L_pc-{NAME}
        s_subb_u32 s{T+1}, s{T+1}, 0
        s_lshr_b32 s{T+2}, s2, 3
        s_lshl_b32 s{T+2}, s{T+2}, 2
        s_add_u32 s{T+2}, s{T+2}, s{S_W}
        s_lshl_b32 s{T+2}, s{T+2}, 9
        v_and_b32 v{t0}, 3, v0
        v_lshl_add_u32 v{t0}, v{t0}, 7, s{T+2}
        v_min_u32 v{t0}, L_end-{NAME}, v{t0}
        global_load_dword v{V_HK}, v{t0}, s[{T}:{T+1}]""")
        a(f"""s_lshr_b32 s{S_WM}, s{S_W}, 1
        s_and_b32 s{S_WN}, s{S_W}, 1
        v_and_b32 v{t0}, 15, v0
        v_lshrrev_b32 v{t1}, 4, v0
        v_lshrrev_b32 v{t2}, 1, v{t0}
        v_xor_b32 v{t3}, v{t2}, v{t1}
        v_lshlrev_b32 v{t3}, 4, v{t3}
        v_lshl_add_u32 v{t3}, v{t0}, 7, v{t3}
        s_lshl_b32 s{T}, s{S_WM}, 13
        v_add_u32 v{V_XA}, s{T}, v{t3}
        v_add_u32 v{V_XA}, {G1.x0}, v{V_XA}
        v_xor_b32 v{V_XA+1}, 64, v{V_XA}
        v_lshl_add_u32 v{V_XA0}, v0, 4, s{T}
        s_lshl_b32 s{T+1}, s{S_WN}, 10
        v_add_u32 v{V_FS}, s{T+1}, v{V_XA0}
        s_lshl_b32 s{T+1}, s{S_WN}, 2
        v_lshrrev_b32 v{t3}, 5, v0
        v_add_u32 v{t3}, s{T+1}, v{t3}
        v_xor_b32 v{t3}, v{t3}, v{t2}
        v_lshlrev_b32 v{t3}, 4, v{t3}
        v_lshl_add_u32 v{t3}, v{t0}, 7, v{t3}
        v_and_b32 v{t2}, 1, v{t1}
        v_lshl_add_u32 v{t3}, v{t2}, 3, v{t3}
        s_add_u32 s{T}, s{T}, {RES}
        v_add_u32 v{V_RES}, s{T}, v{t3}
        v_xor_b32 v{V_RES+1}, 32, v{V_RES}
        v_bfe_u32 v{t0}, v0, 2, 2
        v_lshl_add_u32 v{t0}, v{t1}, 3, v{t0}
        v_bfe_u32 v{t2}, v0, 3, 2
        v_and_b32 v{t3}, 3, v0
        v_lshlrev_b32 v{t3}, 3, v{t3}
        s_lshl_b32 s{T}, s{S_WN}, 1
        v_xor_b32 v{V_WA0}, s{T}, v{t2}
        v_lshl_add_u32 v{V_WA0}, v{V_WA0}, 5, v{t3}
        v_lshl_add_u32 v{V_WA0}, v{t0}, 7, v{V_WA0}
        v_xor_b32 v{V_WA0+1}, 32, v{V_WA0}
        v_lshrrev_b32 v{t2}, 1, v{t2}
        v_xor_b32 v{t2}, s{S_WN}, v{t2}
        v_lshl_add_u32 v{t2}, v{t2}, 5, v{t3}
        v_lshl_add_u32 v{V_WA0+2}, v{t0}, 6, v{t2}
        v_cmp_eq_u32 vcc, 0, v0
        v_mov_b32 v{t0}, {WSZ}
        v_cndmask_b32 v{V_ONE}, v{t0}, 0, vcc
        s_lshl_b32 s{T}, s{S_RB}, 8
        s_lshl_b32 s{T+1}, s{S_CB}, 4
        s_add_u32 s{T}, s{T}, s{T+1}
        s_lshl_b32 s{T+1}, s{S_W}, 2
        s_add_u32 s{T}, s{T}, s{T+1}
        v_add_u32 v{V_FLG}, s{T}, v{V_ONE}""")
        a(f"""v_lshrrev_b32 v{t0}, 3, v0
        s_lshl_b32 s{T}, s{S_W}, 5
        v_add_u32 v{t0}, s{T}, v{t0}
        v_lshlrev_b32 v{t0}, 11, v{t0}
        v_lshrrev_b32 v{t1}, 4, v0
        v_and_b32 v{t2}, 7, v0
        v_xor_b32 v{t1}, v{t1}, v{t2}
        v_lshl_add_u32 v20, v{t1}, 4, v{t0}
        v_xor_b32 v21, 64, v20
        v_add_u32 v21, {8*2048 - 1024}, v21
        v_add_u32 v22, {16*2048 - 2048}, v20
        v_add_u32 v23, {16*2048 - 2048}, v21
        s_lshl_b32 s{T}, s{S_RB}, 18
        s_lshl_b32 s{T+1}, s{S_W}, 12
        s_add_u32 m0, s{T+1}, {RES}
        s_lshl_b32 s{T+2}, s{S_CB}, 7
        s_waitcnt lgkmcnt(0)""")
        g.srd(SX, P_X, 128*2048, T)
        for i in range(4): a(f"buffer_load_dwordx4 v{20+i}, s[{SX}:{SX+3}], s{T+2} offen offset:{1024*i} lds")
        a(f"""v_mov_b64 {vr(V_SEN,2)}, -1
        v_mov_b64 {vr(V_SEN+2,2)}, -1
        v_mov_b32 v{V_CS}, 0
        s_movk_i32 s{T+3}, {RXF}
        buffer_store_dword v{V_CS}, v{V_FLG}, s[{SWS}:{SWS+3}], 0 offen sc1
        buffer_store_dword v{V_CS}, v{V_FLG}, s[{SWS}:{SWS+3}], s{T+3} offen sc1
        v_lshlrev_b32 v{t1}, 2, v0
        s_lshl_b32 s{T}, s{S_CB}, 14
        s_lshl_b32 s{T+1}, s{S_RB}, 10
        s_add_u32 s{T}, s{T}, s{T+1}
        s_lshl_b32 s{T+2}, s{S_W}, 8
        s_add_u32 s{T}, s{T}, s{T+2}
        s_add_u32 s{T}, s{T}, {CSP + CSP_I}
        buffer_store_dword v{V_SEN}, v{t1}, s[{SWS}:{SWS+3}], s{T} offen sc1""")
        g.clear_kv(0, t0)
        g.boot_val()
        a("s_waitcnt vmcnt(5)")
        g.job_stats(0, store=False)
        a(f"s_mov_b32 s{S_HOOK}, 2\ns_mov_b32 s{T+12}, {HOOKA}")
        g.stamp("c", "init")
        a.label("L_c_layer")
        g.c_main(G1, f"s{T+12}")
        g.c_epi_g1()
        a(f"s_mov_b32 s{S_G4}, 0\ns_mov_b32 s{T+12}, 4")
        a.label("L_c_g24")
        a(f"v_add_u32 v{V_XA}, {G2.x0}, v{V_XA0}\nv_add_u32 v{V_XA+1}, {G2.x0 + 1024}, v{V_XA0}")
        g.c_main(G2, f"s{T+12}")
        g.c_epi_g24()
        a(f"""v_add_u32 v{V_XA}, {G1.x0}, v{V_XA0}
        v_add_u32 v{V_XA+1}, {G1.x0 + 1024}, v{V_XA0}
        s_cmp_eq_u32 s{S_G4}, 0
        s_cbranch_scc1 L_c_g3
        s_mov_b32 s{S_L}, 1
        s_mov_b32 s{S_FB}, 16
        s_mov_b32 s{T+12}, {1 if g.opt.get("dual", 0) else 8}
        s_mov_b32 s{S_HOOK}, {3 if g.opt.get("dual", 0) else 0}
        s_branch L_c_layer""")
        a.label("L_c_g3")
        if g.opt.get("dual", 0): a(f"s_mov_b32 s{S_HOOK}, 3")
        g.c_main(G3, 1 if g.opt.get("dual", 0) else 8)
        g.c_epi_g3()
        a(f"s_mov_b32 s{S_G4}, 1\ns_mov_b32 s{T+12}, 1\ns_mov_b32 s{S_HOOK}, 13\ns_branch L_c_g24")
        a.label("L_c_fin")
        g.finish("c")

    def build(g):
        g.entry(); g.loader(); g.compute()
        for c in g.cold: g.a(c)
        g.a.label("L_end"); g.a("s_endpgm")
        rep = []
        lines = fixup.fix_hazards(g.a.lines, rep)
        lines = fixup.fix_align(lines)
        g.haz = rep
        hdr = open("cdna_kernels/" + NAME[:-7] + ".s.ref").read().split("; Override")[0]
        out = hdr + f"; @launch grid=(256,1,1) block=(512,1,1) lds={LDS_BYTES}\n"
        out += '.amdgcn_target "amdgcn-amd-amdhsa--gfx950"\n.text\n' + kernel_header(NAME) + "\n".join(lines) + "\n"
        out += '.fill 64, 4, 0xBF800000\n.section .rodata,"a"\n.p2align 6\n' + kernel_desc(NAME, 256, 256, 102)
        return out

V_FS, V_RES, V_XA, V_WA, V_XA0, V_WA0, V_ONE, V_FLG = 1, 2, 4, 6, 9, 10, 13, 14
XF, WF, ACC = 16, 80, 112
V_CS, V_SS, V_HK, V_SEN = 252, 253, 254, 244
LV_X, LV_W, LV_T = 4, 8, 16
LV_KN, LV_KF, LV_KH, LV_CH, LV_CHH, LV_T1, LV_T2, LV_DUM, LV_L4, LV_L16, LV_T4, LV_PA, LV_PV = range(24, 37)

if __name__ == "__main__":
    import argparse, json
    ap = argparse.ArgumentParser(); ap.add_argument("out"); ap.add_argument("--stamps", action="store_true"); ap.add_argument("--slow", action="store_true"); ap.add_argument("--opt", default="{}")
    ar_ = ap.parse_args()
    g = Gen(stamps=ar_.stamps, force_slow=ar_.slow, opt=eval(ar_.opt))
    txt = g.build()
    open(ar_.out, "w").write(txt)
    json.dump(g.stn, open(ar_.out + ".stamps", "w"))
    print("hazard nops:", len(g.haz))
    for h in sorted(set(g.haz)):
        if " lds" not in h[1]: print("  ", h)
```

```python
import sys, struct, math, os
from asmlib import *
import fixup

NAME = "interleave_layers__linear_attn_block__dense_activation_gelu__prompt_kernel"
MB_ = 1 << 20
ROWF = 0; RXF = 4096
STAT = 1*MB_; STAT_I = 256*1024
CSP = 2*MB_; CSP_I = 256*1024
KVP = 3*MB_; KVP_L = 1*MB_
ZP = 5*MB_; ZP_L = 64*1024
XA = 8*MB_
XB = 16*MB_
SKIP = int(os.environ.get('SKIP', 1))
LT = 15 if SKIP else 14; TL = 1 << LT; LK = 14 if SKIP else 10; KS = 1 << LK
HB = 32*MB_; H_RB = 56*TL
TS = 128*MB_
WSZ = 256*MB_
RES = 135168
L_RSTD = RES + 16384; L_NMR = L_RSTD + 512
L_CSQ = L_NMR + 512; L_CS1 = L_CSQ + 1024; L_B1 = L_CS1 + 1024
L_B2 = L_B1 + 1024
L_MODE = L_B2 + 256
L_KVF = L_MODE + 64; L_ZF = L_KVF + 4096
LDS_BYTES = L_ZF + 2048
L_XCH = 16384
assert LDS_BYTES <= 163840
XSZ = 16384
def f2u(x): return struct.unpack("<I", struct.pack("<f", x))[0]
LOG2E = 1.4426950408889634
EPS = 1e-6
GC1 = -2.0*math.sqrt(2.0/math.pi)*LOG2E
GC2 = GC1*0.044715
SPIN = 1 << 16
HOOKA = 1

S_RB, S_CB, S_XCD, S_W, S_L = 3, 4, 5, 6, 7
SX, SW, SWS, SM = 8, 12, 16, 20
P_X, P_WQKV, P_WO, P_W1, P_B1, P_W2, P_B2, P_OUT, P_DBG = 24, 26, 28, 32, 34, 36, 38, 40, 42
S_MODE, S_WM, S_WN, S_FB = 44, 45, 46, 47
T = 48
S_KX, S_KW, S_LX, S_LW, S_LH, S_LINE, S_CNT, S_SLOT, S_XSTR = 64, 65, 66, 67, 68, 69, 70, 71, 72
S_DLX, S_DLW = 73, 74
S_MASK = 76
S_PT = 78
S_COL = 80
S_TGT, S_SPIN, S_G4, S_BOOT = 84, 85, 86, 87
S_HOOK, S_ISS, S_JH = 75, 98, 99
S_TAB, S_J2, S_K24 = 100, 62, 63
S_C = 88
S_ST = 96
S_PFR, S_PFH, S_PFA, S_PFD = 88, 89, 90, 94
VST = 255

class Ph:
    def __init__(s, name, subt, NST, n, ldb, swapped):
        s.name, s.subt, s.NST, s.n, s.ldb, s.swapped = name, subt, NST, n, ldb, swapped
        s.woff = []; o = 0
        for w in subt: s.woff.append(o); o += 64*w
        if NST == 3: s.w0, s.wp, s.x0, s.xp = 0, 28672, 86016, 16384
        else: s.w0, s.wp, s.x0, s.xp = 0, 32768, 16384, 32768
        s.PW = sum(2 if w == 128 else 1 for w in subt); s.P = 4 + s.PW
        s.nblk = []
        for t, w in enumerate(subt):
            s.nblk += [(0, s.woff[t], w), (1, s.woff[t], w)] if w == 128 else [(2, s.woff[t], w)]
        s.NB = len(s.nblk)
G1 = Ph("g1", [128]*3, 3, 16, 6144, [True]*2 + [False]*4)
G3 = Ph("g3", [128]*3 + [64], 3, 16, 7168, [True]*7)
G2 = Ph("g2", [128], 4, 16, 2048, [True]*2)
G4 = Ph("g4", [128]*2, 4, 32, 2048, [True]*4)
def nsub(p, i): return 1 if (p is G4 and i >= 24) else len(p.subt)

WPTR = {G1: P_WQKV, G2: P_WO, G3: P_W1, G4: P_W2}
PFD = {G1: 2, G2: 3, G3: 2, G4: 3}

class Gen:
    def __init__(g, stamps=False, force_slow=False, opt=None):
        g.opt = opt or {}; g.cold = []
        g.a = Asm(); g.stamps = stamps; g.force_slow = force_slow
        g.nst = {"c": 0, "l": 0}; g.stn = {"c": [], "l": []}
    def stamp(g, role, name, g24=False):
        if not g.stamps: return
        if g.opt.get("minst") and not (name in ("start", "end") or (role == "c" and (name.endswith("b0") or name.endswith("loop")))): return
        k = g.nst[role]; g.nst[role] += 2 if g24 else 1; assert g.nst[role] <= 32
        g.stn[role] += ["g2" + name, "g4" + name] if g24 else [name]
        g.a(f"""s_memrealtime s[{S_ST}:{S_ST+1}]
        s_lshl_b32 m0, s{S_L}, 5
        s_add_u32 m0, m0, {k}
        {f"s_add_u32 m0, m0, s{S_G4}" if g24 else ""}
        s_waitcnt lgkmcnt(0)
        v_writelane_b32 v{VST}, s{S_ST}, m0""")
    def srd(g, d, ptr, size, off_s=None):
        a = g.a
        if off_s is None: a(f"s_mov_b32 s{d}, s{ptr}\ns_mov_b32 s{d+1}, s{ptr+1}")
        else: a(f"s_add_u32 s{d}, s{ptr}, s{off_s}\ns_addc_u32 s{d+1}, s{ptr+1}, 0")
        a(f"s_mov_b32 s{d+2}, {size}\ns_mov_b32 s{d+3}, 0x20000")
    def poll(g, voff, soff, vt, srd=SWS, first_done=False, andmask=None, acquire=True):
        a = g.a; L = a.uid("poll"); C = a.uid("pollc"); D = a.uid("polld")
        a(f"s_mov_b32 s{S_SPIN}, {SPIN}")
        if first_done: a(f"s_branch {C}")
        a.label(L)
        a(f"buffer_load_dword v{vt}, v{voff}, s[{srd}:{srd+3}], {soff} offen sc1\ns_waitcnt vmcnt(0)")
        a.label(C)
        if andmask is not None:
            a(f"v_and_b32 v{vt+1}, {andmask}, v{vt}\nv_cmp_le_u32 vcc, s{S_TGT}, v{vt+1}")
        else:
            a(f"v_cmp_le_u32 vcc, s{S_TGT}, v{vt}")
        a(f"""s_andn2_b64 s[{S_PT}:{S_PT+1}], s[{S_MASK}:{S_MASK+1}], vcc
        s_cbranch_scc0 {D}
        s_sub_u32 s{S_SPIN}, s{S_SPIN}, 1
        s_cbranch_scc0 {L}""")
        a.label(D)
        if acquire:
            E = a.uid("polle")
            a(f"s_cmp_eq_u32 s{S_MODE}, 0\ns_cbranch_scc1 {E}\nbuffer_inv sc1\ns_waitcnt vmcnt(0)")
            a.label(E)
    def signal_row(g, code, vt, cnt=0):
        a = g.a; S = a.uid("sigs"); D = a.uid("sigd")
        a(f"""s_add_u32 s{T}, s{S_FB}, {code}
        v_mov_b32 v{vt}, s{T}
        s_cmp_eq_u32 s{S_MODE}, 0
        s_waitcnt vmcnt({cnt})
        s_cbranch_scc0 {S}
        buffer_store_dword v{vt}, v{V_FLG}, s[{SWS}:{SWS+3}], 0 offen""")
        a.label(D)
        g.cold.append(f"""{S}:
        s_waitcnt vmcnt(0)
        buffer_wbl2 sc1
        s_waitcnt vmcnt(0)
        buffer_store_dword v{vt}, v{V_FLG}, s[{SWS}:{SWS+3}], 0 offen sc1
        s_branch {D}""")
    def stores_by_mode(g, lines, sreg, val):
        a = g.a; S = a.uid("sms"); D = a.uid("smd")
        a(f"s_cmp_eq_u32 s{sreg}, {val}\ns_cbranch_scc0 {S}")
        for l in lines: a(l)
        a.label(D)
        g.cold.append(f"{S}:\n" + "\n".join(l + (" sc1" if l.startswith("buffer_store") else "") for l in lines) + f"\ns_branch {D}")
    def retry(g, L):
        a = g.a; D = a.uid("rtd")
        a(f"s_cbranch_vccz {D}\ns_sub_u32 s{S_SPIN}, s{S_SPIN}, 1\ns_cbranch_scc0 {L}")
        a.label(D)

    def entry(g):
        a = g.a
        a(f"""s_cmp_ge_u32 s2, 256
        s_cbranch_scc1 L_end
        s_load_dwordx16 s[24:39], s[0:1], 0
        s_load_dwordx4 s[40:43], s[0:1], 64
        s_load_dwordx2 s[{SWS}:{SWS+1}], s[0:1], 80
        v_lshrrev_b32 v1, 6, v0
        v_and_b32 v0, 63, v0
        v_readfirstlane_b32 s{S_W}, v1
        s_and_b32 s{S_XCD}, s2, 7
        s_lshr_b32 s{S_CB}, s2, 5
        s_and_b32 s{T}, s2, 1
        s_lshl_b32 s{T}, s{T}, 3
        s_add_u32 s{S_CB}, s{S_CB}, s{T}
        s_bfe_u32 s{S_RB}, s2, 0x20003
        s_and_b32 s{T}, s2, 6
        s_lshl_b32 s{T}, s{T}, 1
        s_add_u32 s{S_RB}, s{S_RB}, s{T}
        s_mov_b32 s{S_L}, 0
        s_mov_b32 s{S_FB}, 0
        s_mov_b32 s{S_MODE}, 1
        s_mov_b32 s{SWS+2}, {WSZ}
        s_mov_b32 s{SWS+3}, 0x20000
        v_mov_b32 v{VST}, 0
        s_cmp_ge_u32 s{S_W}, 4
        s_cbranch_scc0 L_compute
        s_sub_u32 s{S_W}, s{S_W}, 4""")

    def finish(g, role):
        a = g.a
        wv = 0 if role == "c" else 4
        a(f"""s_lshl_b32 s{T}, s{S_RB}, 18
        s_lshl_b32 s{T+1}, s{S_CB}, 7
        s_add_u32 s{T+1}, s{T+1}, s{T}
        s_add_u32 s{T+2}, s{S_W}, {wv}
        s_lshl_b32 s{T+3}, s{T+2}, 15
        s_add_u32 s{T+1}, s{T+1}, s{T+3}
        s_lshl_b32 s{T+2}, s{T+2}, 11
        s_add_u32 s{T+2}, s{T+2}, {RES}""")
        g.srd(SM, P_OUT, 2048*2048)
        a(f"""v_lshrrev_b32 v20, 3, v0
        v_and_b32 v21, 7, v0
        v_lshlrev_b32 v22, 11, v20
        v_lshl_add_u32 v22, v21, 4, v22
        v_lshrrev_b32 v23, 4, v0
        v_xor_b32 v21, v21, v23
        v_lshlrev_b32 v21, 4, v21
        v_lshl_add_u32 v21, v20, 7, v21
        v_add_u32 v21, s{T+2}, v21
        v_xor_b32 v20, 64, v21
        v_add_u32 v23, 16384, v22
        s_waitcnt lgkmcnt(0)
        s_barrier
        ds_read_b128 v[24:27], v21
        ds_read_b128 v[28:31], v20 offset:1024
        s_waitcnt lgkmcnt(1)
        buffer_store_dwordx4 v[24:27], v22, s[{SM}:{SM+3}], s{T+1} offen
        s_waitcnt lgkmcnt(0)
        buffer_store_dwordx4 v[28:31], v23, s[{SM}:{SM+3}], s{T+1} offen""")
        if g.stamps:
            a("s_waitcnt vmcnt(0)")
            g.stamp(role, "end")
            a(f"""s_lshl_b32 s{T}, s2, 3
            s_add_u32 s{T}, s{T}, s{S_W}
            s_add_u32 s{T}, s{T}, {wv}
            s_lshl_b32 s{T}, s{T}, 8
            s_add_u32 s{T}, s{T}, {TS}
            v_lshlrev_b32 v20, 2, v0
            buffer_store_dword v{VST}, v20, s[{SWS}:{SWS+3}], s{T} offen""")
        a("s_endpgm")

    def l_setup_w(g, p, natural=False):
        a = g.a; t0, t1, t2 = LV_T, LV_T+1, LV_T+2
        a(f"s_mov_b32 s{T+1}, {p.ldb}")
        krow = LV_KN if natural else LV_KF
        a(f"""v_mul_lo_u32 v{t0}, v{krow}, s{T+1}
        v_add_u32 v{t0}, v{t0}, v{LV_CH}
        v_xor_b32 v{t1}, 64, v{t0}
        v_add_u32 v{t1}, {(8 if natural else 4)*p.ldb - 1024}, v{t1}""")
        r = LV_W
        for t, w in enumerate(p.subt):
            if w == 128:
                a(f"v_add_u32 v{r}, s{S_COL+t}, v{t0}\nv_add_u32 v{r+1}, s{S_COL+t}, v{t1}"); r += 2
            else:
                a(f"v_mul_lo_u32 v{t2}, v{LV_KH}, s{T+1}\nv_add3_u32 v{r}, v{t2}, v{LV_CHH}, s{S_COL+t}"); r += 1
    def l_issue_x(g, p, i):
        a = g.a
        a(f"s_add_u32 m0, s{S_LX}, {p.x0 + (i % p.NST)*p.xp}")
        for k in range(4):
            a(f"buffer_load_dwordx4 v{LV_X+k}, s[{SX}:{SX+3}], s{S_KX} offen offset:{1024*k} sc1 lds")
        return 4
    def l_issue_w(g, p, i):
        a = g.a; r = LV_W
        for t, w in enumerate(p.subt[:nsub(p, i)]):
            wb = ((i % 8) >> 1)*p.wp + (i & 1)*8192 if (p is G2 and g.opt.get("w8", 1)) else p.w0 + (i % p.NST)*p.wp
            a(f"s_add_u32 m0, s{S_LW if w == 128 else S_LH}, {wb + p.woff[t]}")
            for q in range(2 if w == 128 else 1):
                a(f"buffer_load_dwordx4 v{r}, s[{SW}:{SW+3}], s{S_KW} offen offset:{1024*q} lds"); r += 1
        return r - LV_W
    def kline(g, p, d, i):
        a = g.a
        if p is not G4: a(f"s_bfe_u32 s{d}, s{S_TAB + i//8}, {(4 << 16) | (4*(i % 8)):#x}")
        elif i < 16:
            a(f"s_add_u32 s{d}, s{S_J2}, {i}\ns_and_b32 s{d}, s{d}, 7\ns_add_u32 s{d}, s{d}, s{S_K24}")
            if i & 8: a(f"s_add_u32 s{d}, s{d}, 8")
        else:
            a(f"s_add_u32 s{d}, s{S_J2}, {2*i}\ns_and_b32 s{d}, s{d}, 6")
            if 20 <= i < 24: return
            a(f"s_lshr_b32 s{d}, s{d}, 1")
            if i < 28: a(f"s_add_u32 s{d}, s{d}, s{S_K24}\ns_add_u32 s{d}, s{d}, {20 if i < 20 else 16}")
            else: a(f"s_sub_u32 s{d}, s{d}, s{S_K24}\ns_add_u32 s{d}, s{d}, 40")
    def wrow(g, p, d, i):
        a = g.a
        a(f"s_lshl_b32 s{d}, s{d}, 6")
        if p is G4 and 20 <= i < 24:
            a(f"s_and_b32 s{T+1}, s{S_CB}, 8\ns_lshl_b32 s{T+1}, s{T+1}, 2\ns_add_u32 s{d}, s{d}, s{T+1}\ns_add_u32 s{d}, s{d}, {48*64}")
    def l_line(g, p, i, x=True, w=True):
        a = g.a
        g.kline(p, S_LINE, i)
        virt = p is G4 and 20 <= i < 24
        if x:
            if p is G1: a(f"s_mul_i32 s{S_KX}, s{S_LINE}, s{S_XSTR}")
            elif p is G2: a(f"s_and_b32 s{T+1}, s{S_LINE}, 8\ns_lshl_b32 s{T+1}, s{T+1}, 1\ns_add_u32 s{S_KX}, s{S_LINE}, s{T+1}\ns_lshl_b32 s{S_KX}, s{S_KX}, {LT}")
            elif virt: a(f"s_and_b32 s{T+1}, s{S_CB}, 8\ns_add_u32 s{S_KX}, s{S_LINE}, s{T+1}\ns_lshl_b32 s{S_KX}, s{S_KX}, {LT-1}\ns_add_u32 s{S_KX}, s{S_KX}, {48*TL}")
            else: a(f"s_lshl_b32 s{S_KX}, s{S_LINE}, {LT}")
        if w:
            g.wrow(p, S_LINE, i)
            if virt: a(f"s_and_b32 s{T+1}, s{S_W}, 2\ns_lshl_b32 s{T+1}, s{T+1}, 4\ns_add_u32 s{S_LINE}, s{S_LINE}, s{T+1}")
            a(f"s_mul_i32 s{S_KW}, s{S_LINE}, {p.ldb}")
    def tab_first(g):
        g.a(f"""s_mov_b32 s{T}, 0x76543210
        s_mov_b32 s{T+1}, 0xfedcba98
        s_lshl_b32 s{T+4}, s{S_J2}, 3
        s_lshr_b64 s[{S_TAB}:{S_TAB+1}], s[{T}:{T+1}], s{T+4}
        s_sub_u32 s{T+4}, 64, s{T+4}
        s_lshl_b64 s[{T}:{T+1}], s[{T}:{T+1}], s{T+4}
        s_or_b64 s[{S_TAB}:{S_TAB+1}], s[{S_TAB}:{S_TAB+1}], s[{T}:{T+1}]
        s_and_b32 s{T}, s{S_RB}, 3
        s_mul_i32 s{T}, s{T}, 0x1111
        s_xor_b32 s{S_TAB}, s{S_TAB}, s{T}""")
    def tab_local(g):
        g.a(f"""s_mov_b32 s{T}, 0x76543210
        s_mov_b32 s{T+1}, 0x76543210
        s_lshl_b32 s{T+4}, s{S_J2}, 2
        s_lshr_b64 s[{T}:{T+1}], s[{T}:{T+1}], s{T+4}
        s_cmp_ge_u32 s{S_CB}, 8
        s_cselect_b32 s{T+1}, 0x88888888, 0
        s_or_b32 s{S_TAB}, s{T}, s{T+1}
        s_xor_b32 s{S_TAB+1}, s{S_TAB}, 0x88888888""")
    def l_cols(g, p):
        a = g.a
        if p is G1:
            a(f"s_lshl_b32 s{S_COL}, s{S_CB}, 7\ns_add_u32 s{S_COL+1}, s{S_COL}, 2048\ns_add_u32 s{S_COL+2}, s{S_COL}, 4096")
        elif p is G3:
            a(f"""s_and_b32 s{T}, s{S_CB}, 7
            s_lshl_b32 s{T}, s{T}, 7
            s_lshr_b32 s{T+1}, s{S_CB}, 3
            s_mul_i32 s{S_COL}, s{T+1}, 3072
            s_add_u32 s{S_COL}, s{S_COL}, s{T}
            s_add_u32 s{S_COL+1}, s{S_COL}, 1024
            s_add_u32 s{S_COL+2}, s{S_COL}, 2048
            s_lshl_b32 s{T+1}, s{T+1}, 6
            s_add_u32 s{S_COL+3}, s{T}, s{T+1}
            s_add_u32 s{S_COL+3}, s{S_COL+3}, 6144""")
        else:
            a(f"s_lshl_b32 s{S_COL}, s{S_CB}, 7\ns_xor_b32 s{S_COL+1}, s{S_COL}, 1024")
    def l_next_setup(g, p):
        g.srd(SW, WPTR[p], {G1: 1024*6144, G2: 1024*2048, G3: 1024*7168, G4: 3584*2048}[p])
        g.l_cols(p); g.l_setup_w(p)
    def l_xsrd(g, xbase, xrb):
        g.a(f"s_mul_i32 s{T}, s{S_RB}, {xrb}\ns_add_u32 s{T}, s{T}, {xbase}")
        g.srd(SX, SWS, xrb, T)
    def l_pf(g, p, i):
        a = g.a; wp = WPTR[p]
        g.kline(p, T, i); g.wrow(p, T, i)
        a(f"s_add_u32 s{T}, s{T}, s{S_PFR}")
        if p is G4 and 20 <= i < 24: a(f"s_and_b32 s{T+1}, s{S_PFR}, 32\ns_add_u32 s{T}, s{T}, s{T+1}")
        a(f"s_mul_i32 s{T}, s{T}, {p.ldb}\ns_add_u32 s{T}, s{T}, s{S_PFH}")
        if p is G3 or nsub(p, i) == 2:
            a(f"s_add_u32 s{S_PFA}, s{wp}, s{T}\ns_addc_u32 s{S_PFA+1}, s{wp+1}, 0")
            for o in ([51*128] if p is G3 else [384, 1408]): a(f"s_load_dword s{S_PFD}, s[{S_PFA}:{S_PFA+1}], {o}")
        if nsub(p, i) != 2:
            a(f"""s_and_b32 s{T+1}, s{S_CB}, 8
            s_mul_i32 s{T+1}, s{T+1}, {384 if p is G3 else 128}
            s_add_u32 s{T}, s{T}, s{T+1}
            s_add_u32 s{S_PFA+2}, s{wp}, s{T}
            s_addc_u32 s{S_PFA+3}, s{wp+1}, 0""")
            for t in range(min(3, nsub(p, i))): a(f"s_load_dword s{S_PFD}, s[{S_PFA+2}:{S_PFA+3}], {384 + t*(2048 if p is G1 else 1024)}")
    def rows_target(g, code, own=True):
        g.a(f"""s_add_u32 s{S_TGT}, s{S_FB}, {code}
        s_cmp_{'ge' if own else 'lt'}_u32 s{S_CB}, 8
        s_cselect_b32 s{S_MASK}, 0, -1
        s_cselect_b32 s{S_MASK+1}, -1, 0""")
    def l_wait_rows(g, code):
        g.rows_target(code)
        g.poll(LV_PA, "0", LV_PV)
    def flag_jobs(g, add, s_issue, s_check, code, own, name, skip_l0=False):
        a = g.a; so = "0" if own else f"s{T+4}"
        def issue(q):
            if not own: a(f"s_movk_i32 s{T+4}, {RXF}")
            a(f"buffer_load_dword v{LV_PV}, v{LV_PA}, s[{SWS}:{SWS+3}], {so} offen sc1"); q.append(s_check)
        def check(q):
            D = a.uid("fc")
            if skip_l0: a(f"s_cmp_eq_u32 s{S_L}, 0\ns_cbranch_scc1 {D}")
            g.rows_target(code, own)
            if not own: a(f"s_movk_i32 s{T+4}, {RXF}")
            g.poll(LV_PA, so, LV_PV, first_done=True, acquire=own)
            a.label(D)
            g.stamp("l", name)
        add((s_issue, "pre"), issue); add((s_check, "pre"), check)
    def l_main(g, p, q0=None, nxt=None, cond_nxt=None):
        a = g.a; N, n = p.NST, p.n
        jobs = g.jobs(p)
        def run(key):
            for f in jobs.get(key, []): f(q)
        if q0 is None:
            q = []
            for s in range(N - 1):
                g.l_line(p, s, w=False); q += [s]*g.l_issue_x(p, s)
        else: q = list(q0)
        w8 = p is G2 and g.opt.get("w8", 1)
        fill = g.opt.get("fill", 1) and q0 is None
        if fill:
            g.l_line(p, N - 1); q += [N - 1]*(g.l_issue_x(p, N - 1) + (0 if w8 else g.l_issue_w(p, N - 1)))
        def wait(s):
            last = max(i for i, t in enumerate(q) if t == s)
            assert len(q) - 1 - last <= 63
            a(f"s_waitcnt vmcnt({len(q) - 1 - last})")
            nc = q[last:].count(-2)
            if nc:
                S = a.uid("wc")
                a(f"s_cmp_eq_u32 s{S_L}, 0\ns_cbranch_scc1 {S}\ns_waitcnt vmcnt({len(q) - 1 - last - nc})")
                a.label(S)
        g.qwait = wait
        if N == 3: ra = {n: list(range(g.opt.get("w8a", 4))) if (nxt is G2 and g.opt.get("w8", 1)) else [1, 2, 0]}
        else:
            e = g.opt.get("early", 3)
            ra = {n - e: [0], n - e + 1: [1]} if e else {n: [0, 1]}
        def runahead(s):
            if s not in ra and s != n: return
            if cond_nxt:
                S = a.uid("ra"); a(f"s_cmp_lg_u32 s{S_L}, 0\ns_cbranch_scc1 {S}")
            if s == min(ra): g.l_next_setup(nxt)
            for t in ra.get(s, []):
                g.l_line(nxt, t, x=False)
                q.extend([-2 if cond_nxt else -1]*g.l_issue_w(nxt, t))
            if s == n:
                k0 = 8 if (nxt is G2 and g.opt.get("w8", 1)) else nxt.NST - 1
                for k in range(k0, max(k0, nxt.NST - 1 + PFD[nxt])): g.l_pf(nxt, k)
            if cond_nxt: a.label(S)
        for s in range(n):
            i = s + N - 1
            skip = s == 0 and (fill or (p is G1 and g.opt.get("fill", 1)))
            if i < n and not skip: g.l_line(p, i, w=not (w8 and i < 8))
            wait(s); a("s_barrier")
            if g.opt.get("stepst") == p.name and s < 16: g.stamp("l", f"s{s}")
            run((s, "pre"))
            if skip and p is G1:
                S = a.uid("f0"); a(f"s_cmp_lg_u32 s{S_L}, 0\ns_cbranch_scc1 {S}")
                g.l_line(p, i); q += [i]*(g.l_issue_x(p, i) + g.l_issue_w(p, i))
                a.label(S)
            if i < n and not skip: q += [i]*(g.l_issue_x(p, i) + (0 if (w8 and i < 8) else g.l_issue_w(p, i)))
            k = i + PFD[p]
            if k < n:
                if not (w8 and k < 8): g.l_pf(p, k)
            elif N == 4 and k - n < 2: g.l_pf(nxt, k - n)
            run((s, "post"))
            runahead(s)
        a("s_waitcnt lgkmcnt(0)\ns_barrier")
        run((n, "pre"))
        runahead(n)
        run((n, "post"))

    def job_colsum(g, p, s, u, q):
        a = g.a; D = a.uid("csd"); Hf = a.uid("csh"); St = a.uid("css")
        F, A0, ONE, U = 64, 96, 112, LV_T
        base = p.w0 + (s % p.NST)*p.wp
        if u is None: a(f"s_cmp_lg_u32 s{S_L}, 0\ns_cbranch_scc1 {D}")
        else: a(f"s_and_b32 s{T}, s{S_RB}, 3\ns_add_u32 s{T}, s{T}, s{S_FB}\ns_cmp_lg_u32 s{T}, {u}\ns_cbranch_scc1 {D}")
        for i in range(4): a(f"v_mov_b32 v{ONE+i}, 0x3f803f80")
        if p is G3: a(f"s_cmp_eq_u32 s{S_W}, 3\ns_cbranch_scc1 {Hf}")
        a(f"s_lshl_b32 s{T}, s{S_W}, 13\ns_add_u32 s{T}, s{T}, {base}\nv_add_u32 v{U}, s{T}, v{LV_TRF}")
        def blk(nseg, w):
            for seg in range(nseg):
                a(f"v_xor_b32 v{U+1}, {32*seg}, v{U}")
                for kk in range(2):
                    for h in range(2):
                        a(f"ds_read_b64_tr_b16 {vr(F+seg*8+kk*4+h*2,2)}, v{U+1} offset:{(32*kk+4*h)*w}")
            a("s_waitcnt lgkmcnt(0)")
            for seg in range(nseg):
                for kk in range(2):
                    a(f"v_mfma_f32_16x16x32_bf16 {vr(A0+4*seg,4)}, {vr(ONE,4)}, {vr(F+seg*8+kk*4,4)}, {'0' if kk == 0 else vr(A0+4*seg,4)}")
        blk(4, 128)
        if p is G3:
            a(f"s_branch {St}")
            a.label(Hf)
            a(f"v_add_u32 v{U}, {base + p.woff[3]}, v{LV_TRH}\nv_mov_b32 v{A0+8}, 0\nv_mov_b32 v{A0+12}, 0")
            blk(2, 64)
            a.label(St)
        a(f"""s_lshl_b32 s{T}, s{S_CB}, 14
        s_lshl_b32 s{T+1}, s{S_RB}, 10
        s_add_u32 s{T}, s{T}, s{T+1}
        s_add_u32 s{T}, s{T}, {CSP + (CSP_I if p is G3 else 0)}
        v_cmp_gt_u32 vcc, 16, v0
        s_nop 5
        v_cndmask_b32 v{A0}, v{A0+4}, v{A0}, vcc
        v_cmp_gt_u32 vcc, 48, v0
        v_cndmask_b32 v{A0+8}, v{A0+12}, v{A0+8}, vcc
        v_cmp_gt_u32 vcc, 32, v0
        v_cndmask_b32 v{A0}, v{A0+8}, v{A0}, vcc
        buffer_store_dword v{A0}, v{LV_T4}, s[{SWS}:{SWS+3}], s{T} offen sc1""")
        a.label(D)
        if u is None: q.append(-2)
    def job_stats(g, inst, store=True):
        a = g.a; F = 16; U = 32; SQ = 36
        a(f"""v_bfe_u32 v{U}, v0, 2, 2
        v_lshlrev_b32 v{U}, 4, v{U}
        v_lshl_add_u32 v{U}, v0, 6, v{U}
        s_lshl_b32 s{T}, s{S_W}, 12
        s_add_u32 s{T}, s{T}, {RES}
        v_add_u32 v{U}, s{T}, v{U}""")
        for i in range(4):
            a(f"v_xor_b32 v{U+1}, {16*i}, v{U}\nds_read_b128 {vr(F+4*i,4)}, v{U+1}")
        for i in range(4): a(f"v_mov_b32 v{SQ+i}, 0")
        a(f"""s_mov_b32 s{T+2}, 0x3f803f80
        s_lshl_b32 s{T}, {inst}, 18
        s_lshl_b32 s{T+1}, s{S_RB}, 14
        s_add_u32 s{T}, s{T}, s{T+1}
        s_lshl_b32 s{T+1}, s{S_CB}, 10
        s_add_u32 s{T}, s{T}, s{T+1}
        s_lshl_b32 s{T+1}, s{S_W}, 8
        s_add_u32 s{T}, s{T}, s{T+1}
        s_add_u32 s{T}, s{T}, {STAT}""")
        for i in range(16):
            if i % 4 == 0: a(f"s_waitcnt lgkmcnt({3 - i//4})")
            a(f"v_dot2c_f32_bf16 v{SQ + i%2}, s{T+2}, v{F+i}\nv_dot2c_f32_bf16 v{SQ + 2 + i%2}, v{F+i}, v{F+i}")
        a(f"""v_and_b32 v{U}, 1, v0
        v_cmp_eq_u32 vcc, 0, v{U}
        v_lshlrev_b32 v{U}, 2, v0
        v_add_f32 v{SQ}, v{SQ}, v{SQ+1}
        v_add_f32 v{SQ+2}, v{SQ+2}, v{SQ+3}
        v_add_f32_dpp v{SQ+1}, v{SQ}, v{SQ} quad_perm:[1,0,3,2] row_mask:0xf bank_mask:0xf
        v_add_f32_dpp v{SQ+3}, v{SQ+2}, v{SQ+2} quad_perm:[1,0,3,2] row_mask:0xf bank_mask:0xf
        v_cndmask_b32 v{V_SS}, v{SQ+3}, v{SQ+1}, vcc""")
        if store: a(f"buffer_store_dword v{V_SS}, v{U}, s[{SWS}:{SWS+3}], s{T} offen sc1")
        else: a(f"s_mov_b32 s{T+13}, s{T}")
    def job_boot_issue(g, q):
        a = g.a; D = a.uid("jpd")
        a(f"s_cmp_lg_u32 s{S_L}, 0\ns_cbranch_scc1 {D}")
        g.srd(SM, P_DBG, 256)
        a(f"buffer_load_dword v{LV_PV}, v{LV_L4}, s[{SM}:{SM+3}], 0 offen sc1")
        a.label(D); q.append(-2)
    def gather_loads(g, p):
        a = g.a; E = a.uid("jge")
        a(f"""s_lshl_b32 s{T}, s{S_L}, 19
        s_lshl_b32 s{T+1}, s{S_RB}, 14
        s_add_u32 s{T}, s{T}, s{T+1}
        s_add_u32 s{T}, s{T}, {STAT + (STAT_I if p is G3 else 0)}""")
        for i in range(4):
            a(f"buffer_load_dwordx4 {vr(64+4*i,4)}, v{LV_GA}, s[{SWS}:{SWS+3}], s{T} offen offset:{1024*i} sc1")
        a(f"""s_cmp_lg_u32 s{S_L}, 0
        s_cbranch_scc1 {E}
        s_lshl_b32 s{T}, s{S_CB}, 14
        s_add_u32 s{T}, s{T}, {CSP + (CSP_I if p is G3 else 0)}""")
        for i in range(4):
            a(f"buffer_load_dwordx4 {vr(80+4*i,4)}, v{LV_GA}, s[{SWS}:{SWS+3}], s{T} offen offset:{1024*i} sc1")
        a.label(E)
    def job_gather(g, p, q):
        a = g.a; D = a.uid("jgd")
        a(f"s_cmp_lg_u32 s{S_L}, 0\ns_cbranch_scc1 {D}")
        if p is G1:
            g.srd(SM, P_DBG, 256)
            a(f"s_mov_b32 s{S_TGT}, 32\ns_mov_b32 s{S_MASK}, 0x01010101\ns_mov_b32 s{S_MASK+1}, 0x01010101")
            g.poll(LV_L4, "0", LV_PV, srd=SM, first_done=True, andmask=63, acquire=False)
            a(f"""s_lshl_b32 s{T}, s{S_XCD}, 3
            s_lshl_b32 s{T+1}, s{S_BOOT}, 5
            v_readlane_b32 s{T+2}, v{LV_PV}, s{T}
            s_cmp_lg_u32 s{T+2}, s{T+1}
            s_cselect_b32 s{S_MODE}, 1, {1 if g.force_slow else 0}
            v_mov_b32 v{LV_T}, {L_MODE}
            v_mov_b32 v{LV_T+1}, s{S_MODE}
            ds_write_b32 v{LV_T}, v{LV_T+1}""")
        else:
            g.srd(SM, P_B1, 3584*2)
            a(f"""s_cmp_eq_u32 s{S_W}, 1
            s_cselect_b32 s{T}, s{S_COL+1}, s{S_COL}
            s_cmp_eq_u32 s{S_W}, 2
            s_cselect_b32 s{T}, s{S_COL+2}, s{T}
            s_cmp_eq_u32 s{S_W}, 3
            s_cselect_b32 s{T}, s{S_COL+3}, s{T}
            v_lshlrev_b32 v{LV_T}, 1, v0
            buffer_load_ushort v96, v{LV_T}, s[{SM}:{SM+3}], s{T} offen""")
            g.srd(SM, P_B2, 2048)
            a(f"s_lshl_b32 s{T}, s{S_CB}, 7\nbuffer_load_ushort v97, v{LV_T}, s[{SM}:{SM+3}], s{T} offen")
            q += [-2]*2
        a.label(D)
        g.gather_loads(p)
        q += [-1]*4 + [-2]*4
        g.gpos = len(q)
    def job_reduce(g, p, q):
        a = g.a; E = a.uid("jre"); R = a.uid("jrr"); C = a.uid("jrc"); N0 = a.uid("jrn")
        def tree(b):
            for st in (8, 4):
                for i in range(0, st, 2): a(f"v_pk_add_f32 {vr(b+i,2)}, {vr(b+i,2)}, {vr(b+st+i,2)}")
            for sw in ("16", "32"):
                a(f"v_mov_b64 {vr(b+4,2)}, {vr(b,2)}\nv_mov_b64 {vr(b+6,2)}, {vr(b+2,2)}")
                for i in range(4): a(f"v_permlane{sw}_swap_b32 v{b+i}, v{b+4+i}")
                for i in (0, 2): a(f"v_pk_add_f32 {vr(b+i,2)}, {vr(b+i,2)}, {vr(b+4+i,2)}")
        young = q[g.gpos:]
        a(f"""s_mov_b32 s{S_SPIN}, {SPIN}
        s_waitcnt vmcnt({len(young)})
        s_cmp_eq_u32 s{S_L}, 0
        s_cbranch_scc1 {C}
        s_waitcnt vmcnt({len(young) - young.count(-2)})""")
        a.label(C)
        keep, g.a = g.a, Asm(); g.a._uid = keep._uid + 1000
        g.a.label(R); g.gather_loads(p); g.a(f"s_waitcnt vmcnt(0)\ns_branch {C}")
        g.cold.append(g.a.text()); g.a = keep
        tree(64)
        a(f"v_pk_add_f32 v[98:99], v[64:65], v[66:67]\ns_cmp_lg_u32 s{S_L}, 0\ns_cbranch_scc1 {N0}")
        tree(80)
        if p is G3: a("v_pk_add_f32 v[98:99], v[98:99], v[80:81]\nv_pk_add_f32 v[98:99], v[98:99], v[82:83]")
        a.label(N0)
        a("v_cmp_u_f32 vcc, v98, v99")
        g.retry(R)
        a(f"""s_mov_b32 s{T+2}, {f2u(1/1024):#x}
        v_pk_mul_f32 v[64:65], v[64:65], s[{T+2}:{T+3}] op_sel_hi:[1,0]
        v_pk_mul_f32 v[66:67], v[66:67], s[{T+2}:{T+3}] op_sel_hi:[1,0]
        v_fma_f32 v68, -v64, v64, v65
        v_fma_f32 v69, -v66, v66, v67
        v_max_f32 v68, 0, v68
        v_max_f32 v69, 0, v69
        v_add_f32 v68, {f2u(1e-5):#x}, v68
        v_add_f32 v69, {f2u(1e-5):#x}, v69
        v_rsq_f32 v68, v68
        v_rsq_f32 v69, v69
        v_and_b32 v72, 15, v0
        s_lshl_b32 s{T}, s{S_W}, 7
        s_add_u32 s{T}, s{T}, {L_RSTD}
        v_lshl_add_u32 v73, v72, 3, s{T}
        v_mul_f32 v70, -v64, v68
        v_mul_f32 v71, -v66, v69
        ds_write_b64 v73, v[68:69]
        ds_write_b64 v73, v[70:71] offset:512
        s_cmp_lg_u32 s{S_L}, 0
        s_cbranch_scc1 {E}
        s_lshl_b32 s{T}, s{S_W}, 8
        s_add_u32 s{T}, s{T}, {L_CSQ if p is G1 else L_CS1}
        v_lshl_add_u32 v73, v72, 4, s{T}
        ds_write_b128 v73, v[80:83]""")
        if p is G3:
            a(f"""v_add_u32 v71, {L_B1}, v{LV_T4}
            v_lshlrev_b32 v96, 16, v96
            ds_write_b32 v71, v96
            v_lshlrev_b32 v97, 16, v97
            v_add_u32 v71, {L_B2}, v{LV_L4}
            ds_write_b32 v71, v97""")
        a.label(E)
    def job_clears(g, q):
        a = g.a; D = a.uid("jc")
        g.clear_xb(LV_T); q += [-1]*4
        a(f"s_cmp_lg_u32 s{S_L}, 0\ns_cbranch_scc1 {D}")
        g.clear_kv(1, LV_T)
        a(f"s_lshl_b32 s{T}, s{S_RB}, 14\ns_lshl_b32 s{T+1}, s{S_CB}, 10\ns_add_u32 s{T}, s{T}, s{T+1}\ns_add_u32 s{T}, s{T}, {STAT}")
        for i in range(1, 4):
            a(f"s_add_u32 s{T}, s{T}, {STAT_I}\nbuffer_store_dword v{V_SEN}, v{LV_T4}, s[{SWS}:{SWS+3}], s{T} offen sc1")
        a.label(D); q += [-2]*5
    def job_trickle(g, items, S_PFA=S_PFA, S_PFD=S_PFD):
        a = g.a; D = a.uid("jt")
        a(f"s_cmp_lg_u32 s{S_L}, 0\ns_cbranch_scc1 {D}\ns_lshl_b32 s{T}, s2, 2\ns_add_u32 s{T}, s{T}, s{S_W}")
        cur = None
        for ptr, sec in items:
            if ptr != cur:
                cur = ptr
                a(f"""s_mul_i32 s{T+1}, s{T}, {2048 if ptr == P_WO else 7168}
                s_add_u32 s{S_PFA}, s{ptr}, s{T+1}
                s_addc_u32 s{S_PFA+1}, s{ptr+1}, 0""")
            a(f"s_load_dword s{S_PFD}, s[{S_PFA}:{S_PFA+1}], {64*sec}")
        a.label(D)
    def job_wtouch(g, ptr, first, q):
        a = g.a; D = a.uid("jw")
        per = 2048 if ptr == P_WO else 7168
        a(f"s_cmp_lg_u32 s{S_L}, 0\ns_cbranch_scc1 {D}")
        g.srd(SM, ptr, 1024*per)
        a(f"""s_lshl_b32 s{T}, s2, 2
        s_add_u32 s{T}, s{T}, s{S_W}
        s_mul_i32 s{T}, s{T}, {per}
        s_add_u32 s{T}, s{T}, {128*first}
        v_min_u32 v{LV_T}, {per//128 - 1 - first}, v0
        v_lshlrev_b32 v{LV_T}, 7, v{LV_T}
        buffer_load_dword v{LV_DUM}, v{LV_T}, s[{SM}:{SM+3}], s{T} offen""")
        a.label(D); q.append(-2)
    def jobs(g, p):
        a = g.a; J = {}
        def add(key, fn): J.setdefault(key, []).append(fn)
        if p is G2:
            g.flag_jobs(add, g.opt.get("g2p", 4), 5, 1, False, "orem")
            return J
        if p is G4:
            g.flag_jobs(add, 4, 5, 7, True, "hall")
            g.flag_jobs(add, 19, 21, 7, False, "hrem")
            return J
        add((14, "pre"), lambda q: g.job_gather(p, q))
        g.flag_jobs(add, 5, 6, 3 if p is G3 else -7, False, p.name + "rem", skip_l0=p is G1)
        if p is G1:
            add((0, "post"), lambda q: g.job_colsum(G1, 0, None, q))
            add((12, "pre"), g.job_boot_issue)
            add((14, "post"), lambda q: (g.job_clears(q), g.tab_local()))
        else:
            for u, st in enumerate((0, 1, 8, 9)): add((st, "post"), lambda q, u=u, st=st: g.job_colsum(G3, st, u, q))
        ntr = g.opt.get("tr1" if p is G1 else "tr3", 4); t0 = g.opt.get("tr0", 2) if p is G1 else 0
        secs = ([(P_WO, k) for k in range(32)] if p is G1 else []) + [(P_W1 if p is G1 else P_W2, k) for k in range(112)]
        for st in range(t0, 14):
            it, secs = secs[:ntr], secs[ntr:]
            if it: add((st, "post"), lambda q, it=it: g.job_trickle(it))
        if p is G1:
            it, secs = secs[:g.opt.get("trl", 0)], secs[g.opt.get("trl", 0):]
            if it: add((16, "post"), lambda q, it=it: g.job_trickle(it))
            g.ctrickle, secs = secs[:g.opt.get("trc", 0)], secs[g.opt.get("trc", 0):]
        rest = {}
        for ptr, k in secs: rest.setdefault(ptr, k // 2)
        if not g.opt.get("wt", 1): rest = {}
        for ptr, first in rest.items(): add((14, "post"), lambda q, ptr=ptr, first=first: g.job_wtouch(ptr, first, q))
        add((15, "post"), lambda q: g.job_reduce(p, q))
        return J

    def l_kv_gather(g):
        a = g.a; F = 64; Z = 128; U = 132; S = 144
        P = a.uid("kvp"); D = a.uid("kvd"); P1 = a.uid("kv1"); PZ = a.uid("kvz")
        a(f"""s_lshl_b32 s{T}, s{S_L}, 20
        s_lshl_b32 s{T+1}, s{S_CB}, 16
        s_add_u32 s{T}, s{T}, s{T+1}
        s_lshl_b32 s{T+1}, s{S_W}, 14
        s_add_u32 s{T}, s{T}, s{T+1}
        s_lshr_b32 s{T+4}, s{T}, 4
        s_add_u32 s{T}, s{T}, {KVP}
        s_mov_b32 s{T+5}, s{T}
        s_add_u32 s{T+4}, s{T+4}, {ZP}""")
        for k in range(4):
            a(f"s_add_u32 s{T+k}, s{S_J2}, {2*k + 2}\ns_and_b32 s{T+k}, s{T+k}, 6\ns_lshl_b32 s{T+k}, s{T+k}, 11\ns_add_u32 s{T+k}, s{T+k}, s{T+5}")
        a(f"""v_and_b32 v{U}, 15, v0
        v_lshlrev_b32 v{U}, 6, v{U}
        v_and_b32 v{U+1}, 48, v0
        v_add_u32 v{U}, v{U}, v{U+1}
        s_lshr_b32 s{T+5}, s{S_W}, 1
        s_lshl_b32 s{T+5}, s{T+5}, 10
        s_and_b32 s{T+6}, s{S_W}, 1
        s_lshl_b32 s{T+6}, s{T+6}, 3
        s_add_u32 s{T+5}, s{T+5}, s{T+6}
        s_add_u32 s{T+5}, s{T+5}, {L_ZF}
        v_add_u32 v{U+2}, s{T+5}, v{LV_L16}
        s_add_u32 s{T+5}, s{S_LH}, {L_KVF}
        v_add_u32 v{U+3}, s{T+5}, v{LV_L16}
        s_mov_b32 s{T+8}, 0x3f80
        s_mov_b32 s{T+9}, 0x3f800000
        s_mov_b32 s{S_SPIN}, {SPIN}
        s_mov_b32 s{S_ISS}, 15
        s_barrier""")
        kf = g.opt.get("kvf", "sc1"); sl = g.opt.get("kvsl", 4)
        if g.opt.get("w8", 1) and g.opt.get("w8a", 4) < 8:
            a(f"s_sleep {g.opt.get('jsl', 6)}")
            for t in range(g.opt.get("w8a", 4), 8):
                g.l_line(G2, t, x=False); g.l_issue_w(G2, t)
        if g.opt.get("junk", 1):
            J = a.uid("jk"); J2 = a.uid("jk")
            a(f"""s_cmp_lg_u32 s{S_L}, 0
            s_cbranch_scc1 {J}
            s_mul_i32 s{T+5}, s{S_RB}, {H_RB}
            s_and_b32 s{T+6}, s{S_CB}, 7
            s_add_u32 s{T+6}, s{T+6}, s{S_K24}
            s_lshl_b32 s{T+6}, s{T+6}, {LT}
            s_add_u32 s{T+6}, s{T+6}, s{T+5}
            s_add_u32 s{T+6}, s{T+6}, {HB + 8*TL}
            s_lshr_b32 s{T+7}, s{S_CB}, 1
            s_lshl_b32 s{T+7}, s{T+7}, {LT}
            s_add_u32 s{T+5}, s{T+5}, s{T+7}
            s_and_b32 s{T+7}, s{S_CB}, 1
            s_lshl_b32 s{T+7}, s{T+7}, {LK}
            s_add_u32 s{T+5}, s{T+5}, s{T+7}
            s_add_u32 s{T+5}, s{T+5}, {HB + 48*TL}
            s_sleep {0 if g.opt.get("w8", 1) and g.opt.get("w8a", 4) < 8 else g.opt.get("jsl", 6)}""")
            st = lambda sr, k: a(f"buffer_store_dwordx4 v[{LV_W}:{LV_W+3}], v{LV_X+k}, s[{SWS}:{SWS+3}], s{sr} offen offset:{1024*k}")
            for i in range(4): st(T+6, i)
            for i in range(2): st(T+5, 2*i)
            a(f"s_add_u32 s{T+6}, s{T+6}, {8*TL}\ns_bitcmp1_b32 s{S_CB}, 2\ns_cbranch_scc0 {J2}")
            for i in range(4): st(T+6, i)
            a.label(J2)
            if g.opt.get("jsl2", 0): a(f"s_sleep {g.opt.get('jsl2', 0)}")
            a(f"s_branch {P1}")
            a.label(J)
        if sl: a(f"s_sleep {sl}")
        zl = f"buffer_load_dwordx4 {vr(Z,4)}, v{U}, s[{SWS}:{SWS+3}], s{T+4} offen {kf}"
        def loads(k):
            for i in range(4): g.a(f"buffer_load_dwordx4 {vr(F+16*k+4*i,4)}, v{LV_L16}, s[{SWS}:{SWS+3}], s{T+k} offen offset:{1024*i} {kf}")
        def accum(k, K, cnt=None):
            sk = S + 8*k; a = g.a
            for i in range(4):
                if cnt is not None: a(f"s_waitcnt vmcnt({cnt - i})")
                for d in range(4):
                    x = F + 16*k + 4*i + d
                    if i == 0: a(f"v_lshlrev_b32 v{sk+2*d}, 16, v{x}\nv_and_b32 v{sk+2*d+1}, 0xffff0000, v{x}")
                    else: a(f"v_dot2c_f32_bf16 v{sk+2*d}, s{T+8}, v{x}\nv_dot2c_f32_bf16 v{sk+2*d+1}, s{T+9}, v{x}")
            a(f"""v_add_f32 v{U+4}, v{sk}, v{sk+2}
            v_add_f32 v{U+5}, v{sk+4}, v{sk+6}
            v_cmp_u_f32 vcc, v{U+4}, v{U+5}
            s_cbranch_vccnz {K}
            s_bitset0_b32 s{S_ISS}, {k}""")
            a.label(K)
        keep, g.a = g.a, Asm(); g.a._uid = keep._uid + 2000
        g.a.label(P); g.a(zl)
        for k in range(4):
            K = g.a.uid("kvl")
            g.a(f"s_bitcmp1_b32 s{S_ISS}, {k}\ns_cbranch_scc0 {K}"); loads(k); g.a.label(K)
        g.a("s_waitcnt vmcnt(0)")
        for k in range(4):
            K = g.a.uid("kva")
            g.a(f"s_bitcmp1_b32 s{S_ISS}, {k}\ns_cbranch_scc0 {K}"); accum(k, K)
        g.a(f"s_branch {PZ}")
        g.cold.append(g.a.text()); g.a = keep
        a.label(P1)
        for k in range(4): loads(k)
        a(zl)
        for k in range(4): accum(k, a.uid("kva"), 16 - 4*k)
        a("s_waitcnt vmcnt(0)")
        a.label(PZ)
        a(f"""v_max3_u32 v{U+1}, v{Z}, v{Z+1}, v{Z+2}
        v_max_u32 v{U+1}, v{U+1}, v{Z+3}
        v_cmp_eq_u32 vcc, -1, v{U+1}
        s_nop 0
        s_or_b32 s{T+5}, vcc_lo, vcc_hi
        s_or_b32 s{T+5}, s{T+5}, s{S_ISS}
        s_cbranch_scc0 {D}
        s_sub_u32 s{S_SPIN}, s{S_SPIN}, 1
        s_cbranch_scc0 {P}""")
        a.label(D)
        g.stamp("l", "kvflag")
        zs = [f"v_add_f32_dpp v{Z+i}, v{Z+i}, v{Z+i} row_ror:{st} row_mask:0xf bank_mask:0xf" for st in (8, 4, 2, 1) for i in range(4)]
        ks = [f"v_pk_add_f32 {vr(S+x+d,2)}, {vr(S+x+d,2)}, {vr(S+y+d,2)}" for x, y in ((0, 8), (16, 24), (0, 16)) for d in range(0, 8, 2)]
        ks += [f"v_cvt_pk_bf16_f32 v{U+4+d}, v{S+2*d}, v{S+2*d+1}" for d in range(4)]
        for l in ks: a(l)
        a(f"ds_write_b128 v{U+3}, {vr(U+4,4)}")
        for l in zs: a(l)
        a(f"""v_cvt_pk_bf16_f32 v{Z}, v{Z}, v{Z+1}
        v_cvt_pk_bf16_f32 v{Z+1}, v{Z+2}, v{Z+3}
        ds_write_b64 v{U+2}, {vr(Z,2)}
        s_waitcnt lgkmcnt(0)
        s_barrier""")

    def boot_val(g):
        g.a(f"""s_getreg_b32 s{T}, hwreg(HW_REG_XCC_ID, 0, 4)
        s_and_b32 s{T}, s{T}, 7
        s_mul_i32 s{T+1}, s{T}, s{T}
        s_lshl_b32 s{T}, s{T}, 6
        s_lshl_b32 s{T+1}, s{T+1}, 14
        s_add_u32 s{S_BOOT}, s{T}, s{T+1}
        s_add_u32 s{S_BOOT}, s{S_BOOT}, 1""")
    def loader(g):
        a = g.a; t0, t1, t2 = LV_T, LV_T+1, LV_T+2
        g.stamp("l", "start")
        if g.opt.get("lprio"): a(f"s_setprio {g.opt['lprio']}")
        a(f"""s_lshl_b32 s{S_LX}, s{S_W}, 12
        s_lshl_b32 s{S_LW}, s{S_W}, 11
        s_lshl_b32 s{S_LH}, s{S_W}, 10
        v_lshrrev_b32 v{t0}, 3, v0
        s_lshl_b32 s{T}, s{S_W}, 4
        v_add_u32 v{LV_KN}, s{T}, v{t0}
        v_and_b32 v{t2}, 7, v0
        v_and_b32 v{t1}, 2, v{t0}
        v_xor_b32 v{t1}, v{t1}, v{t2}
        v_lshlrev_b32 v{LV_CH}, 4, v{t1}
        s_lshl_b32 s{T}, s{S_W}, 5
        v_add_u32 v{t0}, s{T}, v{t0}
        v_lshlrev_b32 v{t0}, 11, v{t0}
        v_lshrrev_b32 v{t1}, 4, v0
        v_xor_b32 v{t1}, v{t1}, v{t2}
        v_lshl_add_u32 v{LV_X}, v{t1}, 4, v{t0}
        v_xor_b32 v{LV_X+1}, 64, v{LV_X}
        v_add_u32 v{LV_X+1}, {8*2048 - 1024}, v{LV_X+1}
        v_add_u32 v{LV_X+2}, {16*2048 - 2048}, v{LV_X}
        v_add_u32 v{LV_X+3}, {16*2048 - 2048}, v{LV_X+1}
        s_mov_b32 s{S_XSTR}, 128
        s_and_b32 s{S_K24}, s2, 1
        s_mul_i32 s{S_K24}, s{S_K24}, 24
        s_and_b32 s{S_J2}, s2, 6""")
        g.tab_first()
        g.l_cols(G1); g.l_setup_w(G1, natural=True)
        a(f"s_lshl_b32 s{T}, s{S_RB}, 18\ns_waitcnt lgkmcnt(0)")
        g.srd(SX, P_X, 128*2048, T)
        g.srd(SW, P_WQKV, 1024*6144)
        g.stamp("l", "karg")
        g.l_line(G1, 0); g.l_issue_w(G1, 0); g.l_issue_x(G1, 0)
        g.stamp("l", "iss0")
        g.l_line(G1, 1); g.l_issue_w(G1, 1); g.l_issue_x(G1, 1)
        a(f"""s_lshr_b32 s{T}, s{S_W}, 1
        s_lshl_b32 s{T}, s{T}, 5
        s_and_b32 s{T+1}, s{S_W}, 1
        s_lshl_b32 s{T+1}, s{T+1}, 3
        s_add_u32 s{T}, s{T}, s{T+1}
        v_bfe_u32 v{t0}, v0, 3, 2
        v_lshrrev_b32 v{t1}, 5, v0
        v_lshl_add_u32 v{t0}, v{t1}, 4, v{t0}
        v_add_u32 v{LV_KF}, s{T}, v{t0}
        v_bfe_u32 v{t0}, v0, 2, 2
        v_lshl_add_u32 v{t0}, v{t1}, 2, v{t0}
        v_and_b32 v{t2}, 16, v0
        v_add3_u32 v{LV_KH}, v{t0}, v{t2}, s{T}
        v_lshlrev_b32 v{t1}, 1, v{t1}
        v_and_b32 v{t2}, 3, v0
        v_xor_b32 v{t1}, v{t1}, v{t2}
        v_lshlrev_b32 v{LV_CHH}, 4, v{t1}
        v_lshlrev_b32 v{LV_L4}, 2, v0
        v_lshlrev_b32 v{LV_L16}, 4, v0
        s_lshl_b32 s{T}, s{S_W}, 8
        v_add_u32 v{LV_T4}, s{T}, v{LV_L4}
        s_lshl_b32 s{T}, s{S_RB}, 8
        v_add_u32 v{LV_PA}, s{T}, v{LV_L4}
        v_lshrrev_b32 v{t1}, 4, v0
        v_and_b32 v{t0}, 15, v0
        v_lshlrev_b32 v{t0}, 4, v{t0}
        v_lshl_add_u32 v{t0}, v{t1}, 12, v{t0}
        s_lshl_b32 s{T}, s{S_W}, 8
        v_add_u32 v{LV_GA}, s{T}, v{t0}
        v_bfe_u32 v{t0}, v0, 2, 2
        v_lshl_add_u32 v{t0}, v{t1}, 3, v{t0}
        v_lshlrev_b32 v{t2}, 3, v{t2}
        v_bfe_u32 v{t1}, v0, 3, 2
        v_lshl_add_u32 v{LV_TRF}, v{t1}, 5, v{t2}
        v_lshl_add_u32 v{LV_TRF}, v{t0}, 7, v{LV_TRF}
        v_lshrrev_b32 v{t1}, 1, v{t1}
        v_lshl_add_u32 v{LV_TRH}, v{t1}, 5, v{t2}
        v_lshl_add_u32 v{LV_TRH}, v{t0}, 6, v{LV_TRH}
        s_lshr_b32 s{S_PFR}, s2, 3
        s_lshl_b32 s{S_PFR}, s{S_PFR}, 1
        s_lshr_b32 s{T}, s{S_W}, 1
        s_add_u32 s{S_PFR}, s{S_PFR}, s{T}
        s_and_b32 s{S_PFH}, s{S_W}, 1
        s_lshl_b32 s{S_PFH}, s{S_PFH}, 6""")
        g.boot_val()
        a(f"s_waitcnt vmcnt({G1.P})")
        g.stamp("l", "land0")
        a("s_branch L_l_g1b")
        a.label("L_l_layer")
        for s in range(2):
            g.l_line(G1, s, w=False); g.l_issue_x(G1, s)
        if g.opt.get("fill", 1):
            g.l_line(G1, 2); g.l_issue_x(G1, 2); g.l_issue_w(G1, 2)
        a(f"s_waitcnt vmcnt({4 + G1.P if g.opt.get('fill', 1) else 4})")
        a.label("L_l_g1b")
        g.l_main(G1, q0=[0] + [-1]*50 + [1]*4, nxt=G2)
        g.stamp("l", "g1end")
        a(f"v_add_u32 v{LV_X}, s{S_LX}, v{LV_L16}\ns_mov_b32 s{S_XSTR}, {TL}")
        if SKIP: a(f"v_add_u32 v{LV_X+1}, 128, v{LV_X}\nv_cmp_gt_u32 vcc, 24, v0\nv_cndmask_b32 v{LV_X}, v{LV_X+1}, v{LV_X}, vcc")
        a(f"v_add_u32 v{LV_X+1}, {KS - 1024}, v{LV_X}\nv_mov_b32 v{LV_X+2}, v{LV_X}\nv_mov_b32 v{LV_X+3}, v{LV_X+1}")
        g.l_xsrd(HB, H_RB)
        g.l_kv_gather()
        g.stamp("l", "kvdone")
        g.l_wait_rows(1)
        g.stamp("l", "oflag")
        g.l_main(G2, nxt=G3)
        g.l_xsrd(XA, 16*TL)
        a("s_barrier")
        g.l_wait_rows(3)
        g.stamp("l", "x1flag")
        g.l_main(G3, nxt=G4)
        g.l_xsrd(HB, H_RB)
        g.l_wait_rows(5)
        g.stamp("l", "hflag")
        g.l_main(G4, nxt=G1, cond_nxt=True)
        a(f"s_cmp_lg_u32 s{S_L}, 0\ns_cbranch_scc1 L_l_fin")
        g.l_xsrd(XA, 16*TL)
        a("s_barrier")
        g.l_wait_rows(9)
        g.stamp("l", "x2flag")
        a(f"s_mov_b32 s{S_L}, 1\ns_mov_b32 s{S_FB}, 16\ns_branch L_l_layer")
        a.label("L_l_fin")
        g.finish("l")

    def c_frag(g, p):
        RW = 3 if p.NB == 6 else 4
        def xr(par): return [f"ds_read_b128 {vr(XF + par*32 + mb*8 + kk*4, 4)}, v{V_XA+kk} offset:{mb*2048}" for mb in range(4) for kk in range(2)]
        def wr(nb, slot=None):
            ri, off, w = p.nblk[nb]; slot = nb % RW if slot is None else slot
            return [f"ds_read_b64_tr_b16 {vr(WF + slot*8 + kk*4 + 2*h, 2)}, v{V_WA+ri} offset:{off + (32*kk + 4*h)*w}" for kk in range(2) for h in range(2)]
        def mf(par, nb, slot=None):
            out = []; slot = nb % RW if slot is None else slot
            for mb in range(4):
                for kk in range(2):
                    d = vr(ACC + 4*(nb*4 + mb), 4)
                    X, W = vr(XF + par*32 + mb*8 + kk*4, 4), vr(WF + slot*8 + kk*4, 4)
                    A, B = (W, X) if p.swapped[nb] else (X, W)
                    out.append(f"v_mfma_f32_16x16x32_bf16 {d}, {A}, {B}, {d}")
            return out
        def inter(ms, rs):
            rs = list(rs)
            for m in ms:
                g.a(m)
                if rs: g.a(rs.pop(0))
            assert not rs
        nwa = 3 if 64 in p.subt else 2
        nxt = [f"s_add_u32 s{S_SLOT}, s{S_SLOT}, 1\ns_cmp_eq_u32 s{S_SLOT}, {p.NST}", f"s_cselect_b32 s{S_DLX}, s{S_KX}, {p.xp}",
               f"s_cselect_b32 s{S_DLW}, s{S_KW}, {p.wp}", f"s_cselect_b32 s{S_SLOT}, 0, s{S_SLOT}"]
        up = [f"v_add_u32 v{r}, s{S_DLX}, v{r}" for r in range(V_XA, V_XA+2)] + [f"v_add_u32 v{r}, s{S_DLW}, v{r}" for r in range(V_WA, V_WA+nwa)]
        up = ["\n".join(up[0:2]), "\n".join(up[2:4])] + up[4:]
        return xr, wr, mf, inter, nxt, up
    def c_pre(g, p, reps):
        a = g.a; xr, wr, mf, inter, nxt, up = g.c_frag(p)
        if p is not G1: a(f"v_add_u32 v{V_XA}, {p.x0}, v{V_XA0}\nv_add_u32 v{V_XA+1}, {p.x0 + 1024}, v{V_XA0}")
        for i in range(3 if 64 in p.subt else 2): a(f"v_mov_b32 v{V_WA+i}, v{V_WA0+i}")
        for i in range(0, p.NB*16, 2): a(f"v_mov_b64 {vr(ACC+i,2)}, 0")
        a(f"s_mov_b32 s{S_CNT}, {reps}\ns_mov_b32 s{S_SLOT}, 0\ns_mov_b32 s{S_KX}, {(-(p.NST-1)*p.xp) & 0xffffffff:#x}\ns_mov_b32 s{S_KW}, {(-(p.NST-1)*p.wp) & 0xffffffff:#x}")
        a("s_waitcnt lgkmcnt(0)\ns_barrier")
        g.stamp("c", p.name + "b0")
        for r in wr(0) + xr(0) + wr(1): a(r)
    def c_loop(g, p):
        a = g.a; NB = p.NB; xr, wr, mf, inter, nxt, up = g.c_frag(p)
        L = a.uid("cl")
        its = g.stamps and g.opt.get("itst") == p.name
        if its:
            k = g.nst["c"]; g.nst["c"] += 16; g.stn["c"] += [f"i{i}" for i in range(16)]
            a(f"s_lshl_b32 m0, s{S_L}, 5\ns_add_u32 m0, m0, {k}")
        cnt = f"\ns_sub_u32 s{S_CNT}, s{S_CNT}, 1\ns_cmp_lg_u32 s{S_CNT}, 0"
        if NB == 2:
            def nx2(par): return [f"s_add_u32 s{S_SLOT}, s{S_SLOT}, 1\ns_cmp_eq_u32 s{S_SLOT}, 4", f"s_cselect_b32 s{S_DLX}, s{S_KX}, {p.xp}\ns_cselect_b32 s{S_SLOT}, 0, s{S_SLOT}",
                                  f"s_add_u32 s{S_LH}, s{S_LINE}, s{S_LW if par == 0 else S_LX}\ns_and_b32 s{S_LH}, s{S_LH}, 0x1ffff", f"s_sub_u32 s{S_DLW}, s{S_LH}, s{S_LINE}\ns_mov_b32 s{S_LINE}, s{S_LH}"]
            a(f"s_mov_b32 s{S_LINE}, 0")
            for l in nx2(1) + up: a(l)
        a(".p2align 3")
        a.label(L)
        for par in range(2):
            if NB == 2:
                a("s_waitcnt lgkmcnt(0)\ns_barrier")
                nx = wr(0, 2*(1-par)) + xr(1 - par) + wr(1, 2*(1-par) + 1)
                ex = nx2(par) + list(up)
                if par == 1: ex[-1] += cnt
                inter(mf(par, 0, 2*par) + mf(par, 1, 2*par + 1), [nx[2*i] + "\n" + nx[2*i+1] for i in range(8)] + ex)
                continue
            for nb in range(NB):
                if nb < NB - 2:
                    a("s_waitcnt lgkmcnt(4)")
                    if its and nb == NB - 3: a(f"s_memrealtime s[{S_ST}:{S_ST+1}]")
                    inter(mf(par, nb), wr(nb + 2) + (nxt if nb == 0 else up if nb == NB - 3 else []))
                elif nb == NB - 2:
                    a("s_waitcnt lgkmcnt(0)\ns_barrier")
                    if its: a(f"v_writelane_b32 v{VST}, s{S_ST}, m0\ns_add_u32 m0, m0, 1")
                    nx = wr(0) + xr(1 - par) + wr(1)
                    inter(mf(par, nb), nx[:8])
                else:
                    nx = nx[8:]
                    if par == 1: nx[6] += cnt
                    inter(mf(par, nb), nx)
        a(f"s_cbranch_scc1 {L}")
        return L
    def remote_flag(g, vt):
        g.a(f"s_movk_i32 s{T}, {RXF}\nbuffer_store_dword v{vt}, v{V_FLG}, s[{SWS}:{SWS+3}], s{T} offen sc1")
    def deferred(g):
        g.remote_flag(V_HK)
        g.a(f"v_lshlrev_b32 v{V_CS}, 2, v0\nbuffer_store_dword v{V_SS}, v{V_CS}, s[{SWS}:{SWS+3}], s{T+13} offen sc1")
    def c_g1(g):
        a = g.a; D = a.uid("st0"); HA, HB_ = a.uid("hka"), a.uid("hkb")
        g.c_pre(G1, f"s{T+12}")
        if g.opt.get("defer", 1): g.deferred()
        else:
            a(f"""s_cmp_lg_u32 s{S_L}, 0
            s_cbranch_scc1 {D}
            v_lshlrev_b32 v{V_CS}, 2, v0
            buffer_store_dword v{V_SS}, v{V_CS}, s[{SWS}:{SWS+3}], s{T+13} offen sc1""")
            a.label(D)
        L = g.c_loop(G1)
        a(f"s_cmp_lg_u32 s{S_HOOK}, 0\ns_cbranch_scc1 {HA}")
        g.cold.append(f"""{HA}:
        s_cmp_eq_u32 s{S_HOOK}, 1
        s_cbranch_scc1 {HB_}
        s_mov_b32 s{S_HOOK}, 1
        s_mov_b32 s{S_CNT}, 1
        s_waitcnt vmcnt(0)
        s_branch {L}
        {HB_}:
        s_mov_b32 s{S_HOOK}, 0
        s_mov_b32 s{S_CNT}, {8 - 1 - HOOKA}
        s_cmp_lg_u32 s{S_W}, 0
        s_cbranch_scc1 {L}
        s_mov_b32 s{SM}, s{P_DBG}
        s_mov_b32 s{SM+1}, s{P_DBG+1}
        s_mov_b32 s{SM+2}, 256
        s_mov_b32 s{SM+3}, 0x20000
        s_lshl_b32 s{T}, s{S_XCD}, 5
        v_mov_b32 v{V_HK}, s{S_BOOT}
        buffer_atomic_add v{V_HK}, v{V_ONE}, s[{SM}:{SM+3}], s{T} offen sc1
        s_branch {L}""")
        a("s_waitcnt lgkmcnt(0)")
        g.stamp("c", "g1loop")
    def c_g4a(g):
        a = g.a; D = a.uid("hkd"); SD = 176
        g.c_pre(G4, 1)
        a(f"s_mov_b32 s{S_HOOK}, 1")
        L = g.c_loop(G4)
        a(f"s_cmp_eq_u32 s{S_HOOK}, 0\ns_cbranch_scc1 {D}\ns_mov_b32 s{S_CNT}, 11\ns_mov_b32 s{S_HOOK}, 0")
        g.signal_row(7, V_HK); g.remote_flag(V_HK)
        a(f"s_branch {L}")
        a.label(D)
        a(f"""s_lshl_b32 s{T+1}, s2, 14
        s_lshl_b32 s{T+2}, s{S_W}, 12
        s_add_u32 s{T+1}, s{T+1}, s{T+2}
        s_xor_b32 s{T+2}, s{T+1}, {1 << 14}
        s_add_u32 s{T+7}, s{T+1}, {XB}
        s_add_u32 s{T+5}, s{T+2}, {XB}
        v_lshlrev_b32 v{V_L16}, 4, v0
        s_mov_b32 s{S_CNT}, {4 - g.opt.get("xbl", 1)}
        s_mov_b32 s{S_HOOK}, 1""")
        for mb in range(4):
            for b in range(2):
                for h in range(2):
                    t = ACC + 4*((2+b)*4 + mb) + 2*h
                    a(f"v_cvt_pk_bf16_f32 v{SD+4*mb+2*b+h}, v{t}, v{t+1}")
            a(f"buffer_store_dwordx4 {vr(SD+4*mb,4)}, v{V_L16}, s[{SWS}:{SWS+3}], s{T+5} offen offset:{1024*mb} sc1")
    def xb_loads(g): return [f"buffer_load_dwordx4 {vr(V_PP+4*mb,4)}, v{V_L16}, s[{SWS}:{SWS+3}], s{T+7} offen offset:{1024*mb} sc1" for mb in range(4)]
    def c_nb2(g):
        a = g.a; D = a.uid("hkd")
        L = g.c_loop(G2)
        a(f"s_cmp_eq_u32 s{S_HOOK}, 0\ns_cbranch_scc1 {D}\ns_mov_b32 s{S_CNT}, {g.opt.get('xbl', 1)}\ns_mov_b32 s{S_HOOK}, 0")
        for l in g.xb_loads(): a(l)
        if g.opt.get("xbl", 1): a(f"s_branch {L}")
        a.label(D)
        a("s_waitcnt lgkmcnt(0)")
        g.stamp("c", "loop", True)

    def phi(g, t, u, dst):
        c = f"s[{S_C}:{S_C+1}]"
        return [f"v_pk_fma_f32 {vr(u,2)}, {vr(t,2)}, {c}, {c} op_sel:[0,0,1] op_sel_hi:[1,0,1]",
                f"v_max_f32 v{t}, s{S_C+2}, v{t}", f"v_max_f32 v{t+1}, s{S_C+2}, v{t+1}",
                f"v_exp_f32 v{u}, v{u} clamp", f"v_exp_f32 v{u+1}, v{u+1} clamp",
                f"v_pk_add_f32 {vr(t,2)}, {vr(t,2)}, {vr(u,2)}",
                f"v_cvt_pk_bf16_f32 v{dst}, v{t}, v{t+1}"]
    def zipemit(g, streams):
        streams = [list(s) for s in streams]
        while any(streams):
            for s in streams:
                if s: g.a(s.pop(0))

    def clear_kv(g, layer, t0):
        g.a(f"""v_lshlrev_b32 v{t0}, 4, v0
        v_and_b32 v{t0+1}, 15, v0
        v_lshlrev_b32 v{t0+1}, 2, v{t0+1}
        s_lshl_b32 s{T}, s{S_CB}, 16
        s_lshl_b32 s{T+1}, s{S_RB}, 10
        s_add_u32 s{T}, s{T}, s{T+1}
        s_lshl_b32 s{T+1}, s{S_W}, 14
        s_add_u32 s{T}, s{T}, s{T+1}
        s_lshr_b32 s{T+1}, s{T}, 4
        s_add_u32 s{T}, s{T}, {KVP + layer*KVP_L}
        s_add_u32 s{T+1}, s{T+1}, {ZP + layer*ZP_L}
        buffer_store_dwordx4 {vr(V_SEN,4)}, v{t0}, s[{SWS}:{SWS+3}], s{T} offen sc1
        buffer_store_dword v{V_SEN}, v{t0+1}, s[{SWS}:{SWS+3}], s{T+1} offen sc1""")
    def clear_xb(g, t0):
        g.a(f"""v_mov_b64 {vr(V_SEN,2)}, -1
        v_mov_b64 {vr(V_SEN+2,2)}, -1
        v_lshlrev_b32 v{t0}, 4, v0
        s_lshl_b32 s{T}, s2, 14
        s_lshl_b32 s{T+1}, s{S_W}, 12
        s_add_u32 s{T}, s{T}, s{T+1}
        s_add_u32 s{T}, s{T}, {XB}""")
        for mb in range(4): g.a(f"buffer_store_dwordx4 {vr(V_SEN,4)}, v{t0}, s[{SWS}:{SWS+3}], s{T} offen offset:{1024*mb} sc1")
    def c_epi_g1(g):
        a = g.a
        acc = lambda nb, mb: ACC + 4*(nb*4 + mb)
        R, NM, CSN, RQ, CSQ_ = 16, 32, 48, 56, 64
        PK, VV, PQ, KV, U, ONE = 72, 88, 208, 224, 104, 248
        eps2 = f"s[{S_C+2}:{S_C+3}]"
        a(f"""s_mov_b32 s{S_C}, {f2u(LOG2E):#x}
        s_mov_b32 s{S_C+1}, {f2u(-EPS*LOG2E):#x}
        s_mov_b32 s{S_C+2}, {f2u(EPS):#x}
        s_mov_b32 s{S_C+3}, 0
        v_and_b32 v{U}, 48, v0
        v_and_b32 v{U+1}, 15, v0
        v_lshlrev_b32 v{U+1}, 2, v{U+1}
        s_lshl_b32 s{T}, s{S_WM}, 8
        s_add_u32 s{T}, s{T}, {L_RSTD}
        s_lshl_b32 s{T+1}, s{S_WN}, 7
        s_add_u32 s{T+1}, s{T+1}, {L_CSQ}
        v_add_u32 v{U+2}, s{T}, v{U}
        v_add_u32 v{U+3}, s{T+1}, v{U+1}
        v_add_u32 v{U+4}, s{T}, v{U+1}
        v_add_u32 v{U+5}, s{T+1}, v{U}
        v_mov_b32 v{U+6}, {L_MODE}""")
        for i in range(4): a(f"ds_read_b32 v{CSN+2*i}, v{U+3} offset:{256*(1 + i//2) + 64*(i%2)}")
        for mb in range(4):
            a(f"ds_read_b128 {vr(NM+4*mb,4)}, v{U+2} offset:{512 + 64*mb}\nds_read_b128 {vr(R+4*mb,4)}, v{U+2} offset:{64*mb}")
        a(f"ds_read_b32 v{U+7}, v{U+6}")
        a("s_waitcnt vmcnt(0) lgkmcnt(0)")
        for mb in range(4): a(f"ds_read2_b32 {vr(RQ+2*mb,2)}, v{U+4} offset0:{16*mb} offset1:{128 + 16*mb}")
        for b in range(2): a(f"ds_read_b128 {vr(CSQ_+4*b,4)}, v{U+5} offset:{64*b}")
        a(f"v_readfirstlane_b32 s{S_MODE}, v{U+7}")
        for i in range(4): a(f"v_mov_b32 v{ONE+i}, 0x3f803f80")
        for mb in range(4):
            st = []
            for b in range(2):
                for h in range(2):
                    t = acc(2+b, mb) + 2*h; u = U + 2*(2*b + h)
                    st.append([f"v_pk_fma_f32 {vr(u,2)}, {vr(NM+4*mb+2*h,2)}, {vr(CSN+2*b,2)}, {eps2} op_sel_hi:[1,0,0]",
                               f"v_pk_fma_f32 {vr(t,2)}, {vr(t,2)}, {vr(R+4*mb+2*h,2)}, {vr(u,2)}"]
                              + g.phi(t, u, PK + 8*b + 2*mb + h))
            g.zipemit(st)
            st = []
            for b in range(2):
                for h in range(2):
                    t = acc(4+b, mb) + 2*h; u = U + 2*(2*b + h)
                    st.append([f"v_pk_mul_f32 {vr(u,2)}, {vr(NM+4*mb+2*h,2)}, {vr(CSN+4+2*b,2)} op_sel_hi:[1,0]",
                               f"v_pk_fma_f32 {vr(t,2)}, {vr(t,2)}, {vr(R+4*mb+2*h,2)}, {vr(u,2)}",
                               f"v_cvt_pk_bf16_f32 v{VV + 8*b + 2*mb + h}, v{t}, v{t+1}"])
            g.zipemit(st)
            if mb % 2 == 1:
                u2 = mb // 2
                for eb in range(3):
                    for db in range(2):
                        d = vr(KV + 8*eb + 4*db, 4)
                        B = vr(VV + 8*eb + 4*u2, 4) if eb < 2 else vr(ONE, 4)
                        a(f"v_mfma_f32_16x16x32_bf16 {d}, {vr(PK + 8*db + 4*u2, 4)}, {B}, {'0' if u2 == 0 else d}")
        W1 = a.uid("kvw"); W2 = a.uid("kvx")
        a(f"""s_mul_i32 s{T}, s{S_W}, 3072
        s_add_u32 s{T}, s{T}, {L_XCH}
        s_xor_b32 s{T+1}, s{S_W}, 2
        s_mul_i32 s{T+1}, s{T+1}, 3072
        s_add_u32 s{T+1}, s{T+1}, {L_XCH}
        v_lshl_add_u32 v{U}, v0, 4, s{T}
        v_lshl_add_u32 v{U+1}, v0, 4, s{T+1}
        s_lshl_b32 s{T}, s{S_L}, 20
        s_lshl_b32 s{T+1}, s{S_CB}, 16
        s_add_u32 s{T}, s{T}, s{T+1}
        s_lshl_b32 s{T+1}, s{S_WN}, 15
        s_add_u32 s{T}, s{T}, s{T+1}
        s_lshl_b32 s{T+1}, s{S_WM}, 14
        s_add_u32 s{T}, s{T}, s{T+1}
        s_lshl_b32 s{T+1}, s{S_RB}, 10
        s_add_u32 s{T}, s{T}, s{T+1}
        s_lshr_b32 s{T+1}, s{T}, 4
        s_add_u32 s{T}, s{T}, {KVP}
        s_add_u32 s{T+1}, s{T+1}, {ZP}
        v_lshlrev_b32 v{U+2}, 4, v0
        v_and_b32 v{U+3}, 15, v0
        v_cmp_eq_u32 vcc, 0, v{U+3}
        v_mov_b32 v{U+3}, {WSZ}
        v_cndmask_b32 v{U+3}, v{U+3}, v0, vcc
        s_cmp_eq_u32 s{S_WM}, 0
        s_cbranch_scc0 {W1}""")
        for wm in range(2):
            if wm == 1: a.label(W1)
            keep = [KV + 8*wm, KV + 8*wm + 4, KV + 16 + 4*wm]
            send = [KV + 8*(1-wm), KV + 8*(1-wm) + 4, KV + 16 + 4*(1-wm)]
            for i in range(3): a(f"ds_write_b128 v{U}, {vr(send[i],4)} offset:{1024*i}")
            a("s_waitcnt lgkmcnt(0)\ns_barrier")
            for i in range(3): a(f"ds_read_b128 {vr(R+4*i,4)}, v{U+1} offset:{1024*i}")
            for i in range(3):
                a(f"s_waitcnt lgkmcnt({2-i})")
                for h in range(2): a(f"v_pk_add_f32 {vr(R+4*i+2*h,2)}, {vr(R+4*i+2*h,2)}, {vr(keep[i]+2*h,2)}")
            if wm == 0: a(f"s_branch {W2}")
        a.label(W2)
        for d in range(4): a(f"v_cvt_pk_bf16_f32 v{NM+d}, v{R+2*d}, v{R+2*d+1}")
        a(f"""buffer_store_dwordx4 {vr(NM,4)}, v{U+2}, s[{SWS}:{SWS+3}], s{T} offen sc1
        buffer_store_dwordx4 {vr(R+8,4)}, v{U+3}, s[{SWS}:{SWS+3}], s{T+1} offen sc1""")
        g.stamp("c", "kvst")
        for mb in range(4):
            st = []
            for b in range(2):
                for h in range(2):
                    t = acc(b, mb) + 2*h; u = U + 2*(2*b + h)
                    st.append([f"v_pk_fma_f32 {vr(u,2)}, {vr(CSQ_+4*b+2*h,2)}, {vr(RQ+2*mb,2)}, {eps2} op_sel:[0,1,0] op_sel_hi:[1,1,0]",
                               f"v_pk_fma_f32 {vr(t,2)}, {vr(t,2)}, {vr(RQ+2*mb,2)}, {vr(u,2)} op_sel_hi:[1,0,1]"]
                              + g.phi(t, u, PQ + 4*mb + 2*b + h))
            g.zipemit(st)
        if g.ctrickle: g.job_trickle(g.ctrickle, T+4, T+6)
        a(f"""s_lshl_b32 s{T}, s{S_WN}, 11
        s_add_u32 s{T}, s{T}, {L_KVF}
        v_lshl_add_u32 v{U+1}, v0, 4, s{T}
        s_lshl_b32 s{T}, s{S_WN}, 10
        s_add_u32 s{T}, s{T}, {L_ZF}
        v_lshl_add_u32 v{U+2}, v0, 4, s{T}
        s_mul_i32 s{T}, s{S_RB}, {H_RB}
        s_and_b32 s{T+1}, s{S_CB}, 8
        s_lshl_b32 s{T+1}, s{T+1}, 1
        s_add_u32 s{T+1}, s{T+1}, s{S_CB}
        s_lshl_b32 s{T+1}, s{T+1}, {LT}
        s_add_u32 s{T}, s{T}, s{T+1}
        s_add_u32 s{T+2}, s{T}, {HB}
        s_add_u32 s{T+3}, s{T+2}, 4096""")
        g.stamp("c", "kvflag")
        if g.ctrickle: a("s_waitcnt lgkmcnt(0)")
        a(f"""s_barrier
        ds_read_b128 {vr(R+8,4)}, v{U+2}
        ds_read_b128 {vr(R,4)}, v{U+1}
        ds_read_b128 {vr(R+4,4)}, v{U+1} offset:1024""")
        g.stamp("c", "bk2")
        a("s_waitcnt lgkmcnt(2)")
        for mb in range(4): a(f"v_mfma_f32_16x16x32_bf16 {vr(acc(2,mb),4)}, {vr(R+8,4)}, {vr(PQ+4*mb,4)}, 0")
        a("s_waitcnt lgkmcnt(0)")
        for mb in range(4):
            for eb in range(2): a(f"v_mfma_f32_16x16x32_bf16 {vr(acc(eb,mb),4)}, {vr(R+4*eb,4)}, {vr(PQ+4*mb,4)}, 0")
        for mb in range(4): a(f"v_add_f32 v{acc(2,mb)}, s{S_C+2}, v{acc(2,mb)}")
        for mb in range(4): a(f"v_rcp_f32 v{acc(2,mb)}, v{acc(2,mb)}")
        ln = []
        for mb in range(4):
            for eb in range(2):
                for h in range(2):
                    t = acc(eb, mb) + 2*h
                    ln.append(f"v_pk_mul_f32 {vr(t,2)}, {vr(t,2)}, {vr(acc(2,mb),2)} op_sel_hi:[1,0]")
            for eb in range(2):
                for h in range(2):
                    t = acc(eb, mb) + 2*h
                    ln.append(f"v_cvt_pk_bf16_f32 v{acc(3,mb) + 2*eb + h}, v{t}, v{t+1}")
            ln.append(f"buffer_store_dwordx4 {vr(acc(3,mb),4)}, v{V_FS}, s[{SWS}:{SWS+3}], s{T+2+mb//2} offen offset:{2048*(mb%2)}")
        for l in ln: a(l + (" sc1" if l.startswith("buffer") else ""))
        g.signal_row(1, V_HK)
        if not g.opt.get("odef", 0): g.remote_flag(V_HK)
        g.stamp("c", "osig")

    def c_epi_g24(g):
        a = g.a
        acc = lambda nb, mb: ACC + 4*(nb*4 + mb)
        RS, BI, U, XO, B2 = 16, 32, 40, 80, 96
        NB_ = a.uid("nob"); PL = a.uid("xpl"); PC = a.uid("xpc")
        for mb in range(4):
            for b in range(2): a(f"ds_read_b64 {vr(RS+4*mb+2*b,2)}, v{V_RES+b} offset:{2048*mb}")
        a(f"""s_lshl_b32 s{T+1}, s{S_RB}, {LT+4}
        s_lshl_b32 s{T+2}, s{S_CB}, {LT}
        s_add_u32 s{T+2}, s{T+2}, s{T+1}
        s_add_u32 s{T+2}, s{T+2}, {XA}
        s_add_u32 s{T+3}, s{T+2}, 4096
        s_mul_i32 s{T+9}, s{S_G4}, 6
        s_add_u32 s{T+9}, s{T+9}, 3
        s_and_b32 s{T+4}, s{S_G4}, s{S_L}
        s_cselect_b32 s{T}, {WSZ}, 0
        v_add_u32 v{U+2}, s{T}, v{V_FS}
        s_cmp_eq_u32 s{S_G4}, 0
        s_cbranch_scc1 {NB_}
        s_lshl_b32 s{T}, s{S_WN}, 7
        s_add_u32 s{T}, s{T}, {L_B2}
        v_and_b32 v{U+1}, 48, v0
        v_add_u32 v{U+1}, s{T}, v{U+1}
        s_mov_b32 s{S_SPIN}, {SPIN}""")
        for b in range(2): a(f"ds_read_b128 {vr(B2+4*b,4)}, v{U+1} offset:{64*b}")
        g.cold.append(f"{PL}:\n" + "\n".join(g.xb_loads()) + f"\ns_branch {PC}")
        a.label(PC)
        a("s_waitcnt vmcnt(0)")
        for mb in range(4):
            p0 = V_PP + 4*mb
            if mb == 0: a(f"v_max3_u32 v{U+3}, v{p0}, v{p0+1}, v{p0+2}\nv_max_u32 v{U+3}, v{U+3}, v{p0+3}")
            else: a(f"v_max3_u32 v{U+3}, v{U+3}, v{p0}, v{p0+1}\nv_max3_u32 v{U+3}, v{U+3}, v{p0+2}, v{p0+3}")
        a(f"v_cmp_eq_u32 vcc, -1, v{U+3}")
        g.retry(PL)
        g.stamp("c", "g4pflag")
        a("s_waitcnt lgkmcnt(0)")
        def unp(src, mb, tail):
            st = []
            for b in range(2):
                for h in range(2):
                    t = acc(b, mb) + 2*h; u = BI + 2*(2*b+h); r = src + 4*mb + 2*b + h
                    st.append([f"v_lshlrev_b32 v{u}, 16, v{r}", f"v_and_b32 v{u+1}, 0xffff0000, v{r}", f"v_pk_add_f32 {vr(t,2)}, {vr(t,2)}, {vr(u,2)}", tail(t, b, h)])
            g.zipemit(st)
        for mb in range(4): unp(V_PP, mb, lambda t, b, h: f"v_pk_add_f32 {vr(t,2)}, {vr(t,2)}, {vr(B2+4*b+2*h,2)}")
        a.label(NB_)
        for mb in range(4):
            a(f"s_waitcnt lgkmcnt(6)")
            unp(RS, mb, lambda t, b, h: f"v_cvt_pk_bf16_f32 v{XO+4*mb+2*b+h}, v{t}, v{t+1}")
            a(f"buffer_store_dwordx4 {vr(XO+4*mb,4)}, v{U+2}, s[{SWS}:{SWS+3}], s{T+2+mb//2} offen offset:{2048*(mb%2)} sc1")
            for b in range(2): a(f"ds_write_b64 v{V_RES+b}, {vr(XO+4*mb+2*b,2)} offset:{2048*mb}")
        a(f"s_cmp_lg_u32 s{T+4}, 0\ns_cbranch_scc1 L_c_fin")
        df = g.opt.get("defer", 1)
        g.signal_row(f"s{T+9}", V_HK)
        if not df: g.remote_flag(V_HK)
        g.stamp("c", "xsig", True)
        a("s_waitcnt lgkmcnt(0)\ns_barrier")
        a(f"s_lshl_b32 s{T+10}, s{S_L}, 1\ns_add_u32 s{T+10}, s{T+10}, s{S_G4}\ns_add_u32 s{T+10}, s{T+10}, 1")
        g.job_stats(f"s{T+10}", store=not df)

    def c_epi_g3(g):
        a = g.a
        acc = lambda nb, mb: ACC + 4*(nb*4 + mb)
        CS, B1, RQ, U, HO = 16, 44, 72, 80, 224
        c = f"s[{S_C}:{S_C+1}]"
        a(f"""s_mov_b32 s{S_C}, {f2u(GC2):#x}
        s_mov_b32 s{S_C+1}, {f2u(GC1):#x}
        v_and_b32 v{U}, 48, v0
        v_and_b32 v{U+1}, 15, v0
        s_lshl_b32 s{T}, s{S_WM}, 8
        s_add_u32 s{T}, s{T}, {L_RSTD}
        v_lshl_add_u32 v{U+1}, v{U+1}, 2, s{T}
        s_lshl_b32 s{T+1}, s{S_WN}, 7
        s_add_u32 s{T+1}, s{T+1}, {L_CS1}
        v_add_u32 v{U+2}, s{T+1}, v{U}
        s_lshl_b32 s{T+1}, s{S_WN}, 6
        s_add_u32 s{T+1}, s{T+1}, {L_CS1 + 768}
        v_add_u32 v{U+3}, s{T+1}, v{U}""")
        for mb in range(4): a(f"ds_read2_b32 {vr(RQ+2*mb,2)}, v{U+1} offset0:{16*mb} offset1:{128 + 16*mb}")
        for nb in range(7):
            ad, off = (U+2, 256*(nb//2) + 64*(nb%2)) if nb < 6 else (U+3, 0)
            a(f"ds_read_b128 {vr(CS+4*nb,4)}, v{ad} offset:{off}\nds_read_b128 {vr(B1+4*nb,4)}, v{ad} offset:{off + L_B1 - L_CS1}")
            if nb == 3: a("s_waitcnt lgkmcnt(4)")
        a(f"""s_mul_i32 s{T}, s{S_RB}, {H_RB}
        s_add_u32 s{T}, s{T}, {HB}
        s_and_b32 s{T+1}, s{S_CB}, 7
        s_lshl_b32 s{T+1}, s{T+1}, {LT}
        s_add_u32 s{T}, s{T}, s{T+1}
        s_lshr_b32 s{T+1}, s{S_CB}, 3
        s_mul_i32 s{T+2}, s{T+1}, {24*TL}
        s_add_u32 s{T+2}, s{T+2}, s{T}
        s_add_u32 s{T+3}, s{T+2}, 4096
        s_mul_i32 s{T+4}, s{S_RB}, {H_RB}
        s_lshr_b32 s{T+1}, s{S_CB}, 1
        s_lshl_b32 s{T+1}, s{T+1}, {LT}
        s_add_u32 s{T+4}, s{T+4}, s{T+1}
        s_and_b32 s{T+1}, s{S_CB}, 1
        s_lshl_b32 s{T+1}, s{T+1}, {LK}
        s_add_u32 s{T+4}, s{T+4}, s{T+1}
        s_add_u32 s{T+4}, s{T+4}, {HB + 48*TL}
        s_mul_i32 s{T+1}, s{S_WN}, {KS - 8}
        s_sub_u32 s{T+4}, s{T+4}, s{T+1}
        s_add_u32 s{T+5}, s{T+4}, 4096""")
        def gelu(nb, mb, h, u, dst):
            t = acc(nb, mb) + 2*h
            return [f"v_pk_fma_f32 {vr(u,2)}, {vr(CS+4*nb+2*h,2)}, {vr(RQ+2*mb,2)}, {vr(B1+4*nb+2*h,2)} op_sel:[0,1,0] op_sel_hi:[1,1,1]",
                    f"v_pk_fma_f32 {vr(t,2)}, {vr(t,2)}, {vr(RQ+2*mb,2)}, {vr(u,2)} op_sel_hi:[1,0,1]",
                    f"v_pk_mul_f32 {vr(u,2)}, {vr(t,2)}, {vr(t,2)}",
                    f"v_pk_fma_f32 {vr(u,2)}, {vr(u,2)}, {c}, {c} op_sel:[0,0,1] op_sel_hi:[1,0,1]",
                    f"v_pk_mul_f32 {vr(u,2)}, {vr(u,2)}, {vr(t,2)}",
                    f"v_exp_f32 v{u}, v{u}\nv_exp_f32 v{u+1}, v{u+1}",
                    f"v_pk_add_f32 {vr(u,2)}, {vr(u,2)}, 1.0 op_sel_hi:[1,0]",
                    f"v_rcp_f32 v{u}, v{u}\nv_rcp_f32 v{u+1}, v{u+1}",
                    f"v_pk_mul_f32 {vr(t,2)}, {vr(t,2)}, {vr(u,2)}",
                    f"v_cvt_pk_bf16_f32 v{dst}, v{t}, v{t+1}"]
        k = 0
        a(f"s_and_b32 s{T+6}, s{S_CB}, 4")
        for t3 in (0, 1, 3, 2):
            if t3 == 1: a("s_waitcnt lgkmcnt(0)")
            if t3 == 3:
                for m2 in range(2):
                    o = HO + 4*(k % 4); k += 1
                    g.zipemit([gelu(6, 2*m2 + b, h, U + 4 + 2*(2*b+h), o + 2*b + h) for b in range(2) for h in range(2)])
                    for b in range(2):
                        a(f"buffer_store_dwordx2 {vr(o+2*b,2)}, v{V_FS}, s[{SWS}:{SWS+3}], s{T+4+m2} offen offset:{2048*b}")
                continue
            for mb in range(4):
                o = HO + 4*(k % 4); k += 1
                g.zipemit([gelu(2*t3 + b, mb, h, U + 4 + 2*(2*b+h), o + 2*b + h) for b in range(2) for h in range(2)])
                st = f"buffer_store_dwordx4 {vr(o,4)}, v{V_FS}, s[{SWS}:{SWS+3}], s{T+2+mb//2} offen offset:{2048*(mb%2)}"
                if t3 == 2: g.stores_by_mode([st], T+6, 4)
                else: a(st)
                if (t3, mb) == (1, g.opt.get("h0sig", 1)):
                    g.signal_row(5, V_HK, mb + 1)
                    g.stamp("c", "h0sig")
            if t3 < 2: a(f"s_add_u32 s{T+2}, s{T+2}, {8*TL}\ns_add_u32 s{T+3}, s{T+3}, {8*TL}")
        g.stamp("c", "hsig")

    def compute(g):
        a = g.a; t0, t1, t2, t3 = 16, 17, 18, 19
        a(".p2align 3")
        a.label("L_compute")
        g.stamp("c", "start")
        a(f"""s_getpc_b64 s[{T}:{T+1}]
        L_pc:
        s_sub_u32 s{T}, s{T}, L_pc-{NAME}
        s_subb_u32 s{T+1}, s{T+1}, 0
        s_lshr_b32 s{T+2}, s2, 3
        s_lshl_b32 s{T+2}, s{T+2}, 2
        s_add_u32 s{T+2}, s{T+2}, s{S_W}
        s_lshl_b32 s{T+2}, s{T+2}, 9
        v_and_b32 v{t0}, 3, v0
        v_lshl_add_u32 v{t0}, v{t0}, 7, s{T+2}
        v_min_u32 v{t0}, L_end-{NAME}, v{t0}
        global_load_dword v{V_HK}, v{t0}, s[{T}:{T+1}]""")
        a(f"""s_lshr_b32 s{S_WM}, s{S_W}, 1
        s_and_b32 s{S_WN}, s{S_W}, 1
        v_and_b32 v{t0}, 15, v0
        v_lshrrev_b32 v{t1}, 4, v0
        v_lshrrev_b32 v{t2}, 1, v{t0}
        v_xor_b32 v{t3}, v{t2}, v{t1}
        v_lshlrev_b32 v{t3}, 4, v{t3}
        v_lshl_add_u32 v{t3}, v{t0}, 7, v{t3}
        s_lshl_b32 s{T}, s{S_WM}, 13
        v_add_u32 v{V_XA}, s{T}, v{t3}
        v_add_u32 v{V_XA}, {G1.x0}, v{V_XA}
        v_xor_b32 v{V_XA+1}, 64, v{V_XA}
        v_lshl_add_u32 v{V_XA0}, v0, 4, s{T}
        s_lshl_b32 s{T+1}, s{S_WN}, {LK}
        v_add_u32 v{V_FS}, s{T+1}, v{V_XA0}
        v_add_u32 v{V_RES}, {128 if SKIP else 0}, v{V_FS}
        v_cmp_gt_u32 vcc, 24, v0
        v_cndmask_b32 v{V_FS}, v{V_RES}, v{V_FS}, vcc
        s_lshl_b32 s{T+1}, s{S_WN}, 2
        v_lshrrev_b32 v{t3}, 5, v0
        v_add_u32 v{t3}, s{T+1}, v{t3}
        v_xor_b32 v{t3}, v{t3}, v{t2}
        v_lshlrev_b32 v{t3}, 4, v{t3}
        v_lshl_add_u32 v{t3}, v{t0}, 7, v{t3}
        v_and_b32 v{t2}, 1, v{t1}
        v_lshl_add_u32 v{t3}, v{t2}, 3, v{t3}
        s_add_u32 s{T}, s{T}, {RES}
        v_add_u32 v{V_RES}, s{T}, v{t3}
        v_xor_b32 v{V_RES+1}, 32, v{V_RES}
        v_bfe_u32 v{t0}, v0, 2, 2
        v_lshl_add_u32 v{t0}, v{t1}, 3, v{t0}
        v_bfe_u32 v{t2}, v0, 3, 2
        v_and_b32 v{t3}, 3, v0
        v_lshlrev_b32 v{t3}, 3, v{t3}
        s_lshl_b32 s{T}, s{S_WN}, 1
        v_xor_b32 v{V_WA0}, s{T}, v{t2}
        v_lshl_add_u32 v{V_WA0}, v{V_WA0}, 5, v{t3}
        v_lshl_add_u32 v{V_WA0}, v{t0}, 7, v{V_WA0}
        v_xor_b32 v{V_WA0+1}, 32, v{V_WA0}
        v_lshrrev_b32 v{t2}, 1, v{t2}
        v_xor_b32 v{t2}, s{S_WN}, v{t2}
        v_lshl_add_u32 v{t2}, v{t2}, 5, v{t3}
        v_lshl_add_u32 v{V_WA0+2}, v{t0}, 6, v{t2}
        v_cmp_eq_u32 vcc, 0, v0
        v_mov_b32 v{t0}, {WSZ}
        v_cndmask_b32 v{V_ONE}, v{t0}, 0, vcc
        s_lshl_b32 s{T}, s{S_RB}, 8
        s_lshl_b32 s{T+1}, s{S_CB}, 4
        s_add_u32 s{T}, s{T}, s{T+1}
        s_lshl_b32 s{T+1}, s{S_W}, 2
        s_add_u32 s{T}, s{T}, s{T+1}
        v_add_u32 v{V_FLG}, s{T}, v{V_ONE}""")
        a(f"""v_lshrrev_b32 v{t0}, 3, v0
        s_lshl_b32 s{T}, s{S_W}, 5
        v_add_u32 v{t0}, s{T}, v{t0}
        v_lshlrev_b32 v{t0}, 11, v{t0}
        v_lshrrev_b32 v{t1}, 4, v0
        v_and_b32 v{t2}, 7, v0
        v_xor_b32 v{t1}, v{t1}, v{t2}
        v_lshl_add_u32 v20, v{t1}, 4, v{t0}
        v_xor_b32 v21, 64, v20
        v_add_u32 v21, {8*2048 - 1024}, v21
        v_add_u32 v22, {16*2048 - 2048}, v20
        v_add_u32 v23, {16*2048 - 2048}, v21
        s_lshl_b32 s{T}, s{S_RB}, 18
        s_lshl_b32 s{T+1}, s{S_W}, 12
        s_add_u32 m0, s{T+1}, {RES}
        s_lshl_b32 s{T+2}, s{S_CB}, 7
        s_waitcnt lgkmcnt(0)""")
        g.srd(SX, P_X, 128*2048, T)
        for i in range(4): a(f"buffer_load_dwordx4 v{20+i}, s[{SX}:{SX+3}], s{T+2} offen offset:{1024*i} lds")
        a(f"""v_mov_b64 {vr(V_SEN,2)}, -1
        v_mov_b64 {vr(V_SEN+2,2)}, -1
        v_mov_b32 v{V_CS}, 0
        s_movk_i32 s{T+3}, {RXF}
        buffer_store_dword v{V_CS}, v{V_FLG}, s[{SWS}:{SWS+3}], 0 offen sc1
        buffer_store_dword v{V_CS}, v{V_FLG}, s[{SWS}:{SWS+3}], s{T+3} offen sc1
        v_lshlrev_b32 v{t1}, 2, v0
        s_lshl_b32 s{T}, s{S_CB}, 14
        s_lshl_b32 s{T+1}, s{S_RB}, 10
        s_add_u32 s{T}, s{T}, s{T+1}
        s_lshl_b32 s{T+2}, s{S_W}, 8
        s_add_u32 s{T}, s{T}, s{T+2}
        s_add_u32 s{T}, s{T}, {CSP + CSP_I}
        buffer_store_dword v{V_SEN}, v{t1}, s[{SWS}:{SWS+3}], s{T} offen sc1""")
        g.clear_kv(0, t0)
        g.boot_val()
        a("s_waitcnt vmcnt(5)")
        g.job_stats(0, store=False)
        a(f"v_mov_b32 v{V_HK}, 0")
        a(f"s_mov_b32 s{S_HOOK}, 2\ns_mov_b32 s{T+12}, {HOOKA}")
        g.stamp("c", "init")
        a.label("L_c_layer")
        g.c_g1()
        g.c_epi_g1()
        w8 = g.opt.get("w8", 1)
        a(f"s_mov_b32 s{S_G4}, 0\ns_mov_b32 s{S_LX}, {8192 if w8 else 32768}\ns_mov_b32 s{S_LW}, {24576 if w8 else 32768}")
        g.c_pre(G2, 8)
        if g.opt.get("odef", 0): g.remote_flag(V_HK)
        a.label("L_c_nb2")
        g.c_nb2()
        g.c_epi_g24()
        a(f"""s_cmp_eq_u32 s{S_G4}, 0
        s_cbranch_scc1 L_c_g3
        v_add_u32 v{V_XA}, {G1.x0}, v{V_XA0}
        v_add_u32 v{V_XA+1}, {G1.x0 + 1024}, v{V_XA0}
        s_mov_b32 s{S_L}, 1
        s_mov_b32 s{S_FB}, 16
        s_mov_b32 s{T+12}, 8
        s_branch L_c_layer""")
        a.label("L_c_g3")
        g.c_pre(G3, 8)
        if g.opt.get("defer", 1): g.deferred()
        g.c_loop(G3)
        a("s_waitcnt lgkmcnt(0)")
        g.stamp("c", "g3loop")
        g.c_epi_g3()
        a(f"s_mov_b32 s{S_G4}, 1\ns_mov_b32 s{S_LX}, 32768\ns_mov_b32 s{S_LW}, 32768")
        g.c_g4a()
        g.stamp("c", "g4send")
        a("s_branch L_c_nb2")
        a.label("L_c_fin")
        g.finish("c")

    def build(g):
        g.entry(); g.loader(); g.compute()
        for c in g.cold: g.a(c)
        g.a.label("L_end"); g.a("s_endpgm")
        rep = []
        lines = fixup.fix_hazards(g.a.lines, rep)
        lines = fixup.fix_align(lines)
        g.haz = rep
        hdr = open("cdna_kernels/" + NAME[:-7] + ".s.ref").read().split("; Override")[0]
        out = hdr + f"; @launch grid=(256,1,1) block=(512,1,1) lds={LDS_BYTES}\n"
        out += '.amdgcn_target "amdgcn-amd-amdhsa--gfx950"\n.text\n' + kernel_header(NAME) + "\n".join(lines) + "\n"
        out += '.fill 64, 4, 0xBF800000\n.section .rodata,"a"\n.p2align 6\n' + kernel_desc(NAME, 256, 256, 102)
        return out

V_FS, V_RES, V_XA, V_WA, V_XA0, V_WA0, V_ONE, V_FLG = 1, 2, 4, 6, 9, 10, 13, 14
XF, WF, ACC = 16, 80, 112
V_CS, V_SS, V_HK, V_SEN, V_L16, V_PP = 252, 253, 254, 244, 15, 192
LV_X, LV_W, LV_T = 4, 8, 16
LV_KN, LV_KF, LV_KH, LV_CH, LV_CHH, LV_TRF, LV_TRH, LV_DUM, LV_L4, LV_L16, LV_T4, LV_GA, LV_PA, LV_PV = range(24, 38)

if __name__ == "__main__":
    import argparse, json
    ap = argparse.ArgumentParser(); ap.add_argument("out"); ap.add_argument("--stamps", action="store_true"); ap.add_argument("--slow", action="store_true"); ap.add_argument("--opt", default="{}")
    ar_ = ap.parse_args()
    g = Gen(stamps=ar_.stamps, force_slow=ar_.slow, opt=eval(ar_.opt))
    txt = g.build()
    open(ar_.out, "w").write(txt)
    json.dump(g.stn, open(ar_.out + ".stamps", "w"))
    print("hazard nops:", len(g.haz))
    for h in sorted(set(g.haz)):
        if " lds" not in h[1]: print("  ", h)
```

```python
import sys, struct, math, os
from asmlib import *
import fixup

NAME = "interleave_layers__linear_attn_block__dense_activation_gelu__prompt_kernel"
MB_ = 1 << 20
ROWF = 0; RXF = 4096
STAT = 1*MB_; STAT_I = 256*1024
CSP = 2*MB_; CSP_I = 256*1024
KVP = 3*MB_; KVP_L = 1*MB_
ZP = 5*MB_; ZP_L = 64*1024
XA = 8*MB_
XB = 16*MB_
SKIP = int(os.environ.get('SKIP', 1))
LT = 15 if SKIP else 14; TL = 1 << LT; LK = 14 if SKIP else 10; KS = 1 << LK
HB = 32*MB_; H_RB = 56*TL
TS = 128*MB_
WSZ = 256*MB_
RES = 135168
L_RSTD = RES + 16384; L_NMR = L_RSTD + 512
L_CSQ = L_NMR + 512; L_CS1 = L_CSQ + 1024; L_B1 = L_CS1 + 1024
L_B2 = L_B1 + 1024
L_MODE = L_B2 + 256
L_KVF = L_MODE + 64; L_ZF = L_KVF + 4096
LDS_BYTES = L_ZF + 2048
L_XCH = 16384
assert LDS_BYTES <= 163840
XSZ = 16384
def f2u(x): return struct.unpack("<I", struct.pack("<f", x))[0]
LOG2E = 1.4426950408889634
EPS = 1e-6
GC1 = -2.0*math.sqrt(2.0/math.pi)*LOG2E
GC2 = GC1*0.044715
SPIN = 1 << 16
HOOKA = 1

S_RB, S_CB, S_XCD, S_W, S_L = 3, 4, 5, 6, 7
SX, SW, SWS, SM = 8, 12, 16, 20
P_X, P_WQKV, P_WO, P_W1, P_B1, P_W2, P_B2, P_OUT, P_DBG = 24, 26, 28, 32, 34, 36, 38, 40, 42
S_MODE, S_WM, S_WN, S_FB = 44, 45, 46, 47
T = 48
S_KX, S_KW, S_LX, S_LW, S_LH, S_LINE, S_CNT, S_SLOT, S_XSTR = 64, 65, 66, 67, 68, 69, 70, 71, 72
S_DLX, S_DLW = 73, 74
S_MASK = 76
S_PT = 78
S_COL = 80
S_TGT, S_SPIN, S_G4, S_BOOT = 84, 85, 86, 87
S_HOOK, S_ISS, S_JH = 75, 98, 99
S_TAB, S_J2, S_K24 = 100, 62, 63
S_C = 88
S_ST = 96
S_PFR, S_PFH, S_PFA, S_PFD = 88, 89, 90, 94
VST = 255

class Ph:
    def __init__(s, name, subt, NST, n, ldb, swapped):
        s.name, s.subt, s.NST, s.n, s.ldb, s.swapped = name, subt, NST, n, ldb, swapped
        s.woff = []; o = 0
        for w in subt: s.woff.append(o); o += 64*w
        if NST == 3: s.w0, s.wp, s.x0, s.xp = 0, 28672, 86016, 16384
        else: s.w0, s.wp, s.x0, s.xp = 0, 32768, 16384, 32768
        s.PW = sum(2 if w == 128 else 1 for w in subt); s.P = 4 + s.PW
        s.nblk = []
        for t, w in enumerate(subt):
            s.nblk += [(0, s.woff[t], w), (1, s.woff[t], w)] if w == 128 else [(2, s.woff[t], w)]
        s.NB = len(s.nblk)
G1 = Ph("g1", [128]*3, 3, 16, 6144, [True]*2 + [False]*4)
G3 = Ph("g3", [128]*3 + [64], 3, 16, 7168, [True]*7)
G2 = Ph("g2", [128], 4, 16, 2048, [True]*2)
G4 = Ph("g4", [128]*2, 4, 32, 2048, [True]*4)
def nsub(p, i): return 1 if (p is G4 and i >= 24) else len(p.subt)

WPTR = {G1: P_WQKV, G2: P_WO, G3: P_W1, G4: P_W2}
PFD = {G1: 2, G2: 3, G3: 2, G4: 3}

class Gen:
    def __init__(g, stamps=False, force_slow=False, opt=None):
        g.opt = opt or {}; g.cold = []
        g.a = Asm(); g.stamps = stamps; g.force_slow = force_slow
        g.nst = {"c": 0, "l": 0}; g.stn = {"c": [], "l": []}
    def stamp(g, role, name, g24=False):
        if not g.stamps: return
        if g.opt.get("minst") and not (name in ("start", "end") or (role == "c" and (name.endswith("b0") or name.endswith("loop")))): return
        k = g.nst[role]; g.nst[role] += 2 if g24 else 1; assert g.nst[role] <= 32
        g.stn[role] += ["g2" + name, "g4" + name] if g24 else [name]
        g.a(f"""s_memrealtime s[{S_ST}:{S_ST+1}]
        s_lshl_b32 m0, s{S_L}, 5
        s_add_u32 m0, m0, {k}
        {f"s_add_u32 m0, m0, s{S_G4}" if g24 else ""}
        s_waitcnt lgkmcnt(0)
        v_writelane_b32 v{VST}, s{S_ST}, m0""")
    def srd(g, d, ptr, size, off_s=None):
        a = g.a
        if off_s is None: a(f"s_mov_b32 s{d}, s{ptr}\ns_mov_b32 s{d+1}, s{ptr+1}")
        else: a(f"s_add_u32 s{d}, s{ptr}, s{off_s}\ns_addc_u32 s{d+1}, s{ptr+1}, 0")
        a(f"s_mov_b32 s{d+2}, {size}\ns_mov_b32 s{d+3}, 0x20000")
    def poll(g, voff, soff, vt, srd=SWS, first_done=False, andmask=None, acquire=True):
        a = g.a; L = a.uid("poll"); C = a.uid("pollc"); D = a.uid("polld")
        a(f"s_mov_b32 s{S_SPIN}, {SPIN}")
        if first_done: a(f"s_branch {C}")
        a.label(L)
        a(f"buffer_load_dword v{vt}, v{voff}, s[{srd}:{srd+3}], {soff} offen sc1\ns_waitcnt vmcnt(0)")
        a.label(C)
        if andmask is not None:
            a(f"v_and_b32 v{vt+1}, {andmask}, v{vt}\nv_cmp_le_u32 vcc, s{S_TGT}, v{vt+1}")
        else:
            a(f"v_cmp_le_u32 vcc, s{S_TGT}, v{vt}")
        a(f"""s_andn2_b64 s[{S_PT}:{S_PT+1}], s[{S_MASK}:{S_MASK+1}], vcc
        s_cbranch_scc0 {D}
        s_sub_u32 s{S_SPIN}, s{S_SPIN}, 1
        s_cbranch_scc0 {L}""")
        a.label(D)
        if acquire:
            E = a.uid("polle")
            a(f"s_cmp_eq_u32 s{S_MODE}, 0\ns_cbranch_scc1 {E}\nbuffer_inv sc1\ns_waitcnt vmcnt(0)")
            a.label(E)
    def signal_row(g, code, vt, cnt=0):
        a = g.a; S = a.uid("sigs"); D = a.uid("sigd")
        a(f"""s_add_u32 s{T}, s{S_FB}, {code}
        v_mov_b32 v{vt}, s{T}
        s_cmp_eq_u32 s{S_MODE}, 0
        s_waitcnt vmcnt({cnt})
        s_cbranch_scc0 {S}
        buffer_store_dword v{vt}, v{V_FLG}, s[{SWS}:{SWS+3}], 0 offen""")
        a.label(D)
        g.cold.append(f"""{S}:
        s_waitcnt vmcnt(0)
        buffer_wbl2 sc1
        s_waitcnt vmcnt(0)
        buffer_store_dword v{vt}, v{V_FLG}, s[{SWS}:{SWS+3}], 0 offen sc1
        s_branch {D}""")
    def stores_by_mode(g, lines, sreg, val):
        a = g.a; S = a.uid("sms"); D = a.uid("smd")
        a(f"s_cmp_eq_u32 s{sreg}, {val}\ns_cbranch_scc0 {S}")
        for l in lines: a(l)
        a.label(D)
        g.cold.append(f"{S}:\n" + "\n".join(l + (" sc1" if l.startswith("buffer_store") else "") for l in lines) + f"\ns_branch {D}")
    def retry(g, L):
        a = g.a; D = a.uid("rtd")
        a(f"s_cbranch_vccz {D}\ns_sub_u32 s{S_SPIN}, s{S_SPIN}, 1\ns_cbranch_scc0 {L}")
        a.label(D)

    def entry(g):
        a = g.a
        a(f"""s_cmp_ge_u32 s2, 256
        s_cbranch_scc1 L_end
        s_load_dwordx16 s[24:39], s[0:1], 0
        s_load_dwordx4 s[40:43], s[0:1], 64
        s_load_dwordx2 s[{SWS}:{SWS+1}], s[0:1], 80
        v_lshrrev_b32 v1, 6, v0
        v_and_b32 v0, 63, v0
        v_readfirstlane_b32 s{S_W}, v1
        s_and_b32 s{S_XCD}, s2, 7
        s_lshr_b32 s{S_CB}, s2, 5
        s_and_b32 s{T}, s2, 1
        s_lshl_b32 s{T}, s{T}, 3
        s_add_u32 s{S_CB}, s{S_CB}, s{T}
        s_bfe_u32 s{S_RB}, s2, 0x20003
        s_and_b32 s{T}, s2, 6
        s_lshl_b32 s{T}, s{T}, 1
        s_add_u32 s{S_RB}, s{S_RB}, s{T}
        s_mov_b32 s{S_L}, 0
        s_mov_b32 s{S_FB}, 0
        s_mov_b32 s{S_MODE}, 1
        s_mov_b32 s{SWS+2}, {WSZ}
        s_mov_b32 s{SWS+3}, 0x20000
        v_mov_b32 v{VST}, 0
        s_cmp_ge_u32 s{S_W}, 4
        s_cbranch_scc0 L_compute
        s_sub_u32 s{S_W}, s{S_W}, 4""")

    def finish(g, role):
        a = g.a
        wv = 0 if role == "c" else 4
        a(f"""s_lshl_b32 s{T}, s{S_RB}, 18
        s_lshl_b32 s{T+1}, s{S_CB}, 7
        s_add_u32 s{T+1}, s{T+1}, s{T}
        s_add_u32 s{T+2}, s{S_W}, {wv}
        s_lshl_b32 s{T+3}, s{T+2}, 15
        s_add_u32 s{T+1}, s{T+1}, s{T+3}
        s_lshl_b32 s{T+2}, s{T+2}, 11
        s_add_u32 s{T+2}, s{T+2}, {RES}""")
        g.srd(SM, P_OUT, 2048*2048)
        a(f"""v_lshrrev_b32 v20, 3, v0
        v_and_b32 v21, 7, v0
        v_lshlrev_b32 v22, 11, v20
        v_lshl_add_u32 v22, v21, 4, v22
        v_lshrrev_b32 v23, 4, v0
        v_xor_b32 v21, v21, v23
        v_lshlrev_b32 v21, 4, v21
        v_lshl_add_u32 v21, v20, 7, v21
        v_add_u32 v21, s{T+2}, v21
        v_xor_b32 v20, 64, v21
        v_add_u32 v23, 16384, v22
        s_waitcnt lgkmcnt(0)
        s_barrier
        ds_read_b128 v[24:27], v21
        ds_read_b128 v[28:31], v20 offset:1024
        s_waitcnt lgkmcnt(1)
        buffer_store_dwordx4 v[24:27], v22, s[{SM}:{SM+3}], s{T+1} offen
        s_waitcnt lgkmcnt(0)
        buffer_store_dwordx4 v[28:31], v23, s[{SM}:{SM+3}], s{T+1} offen""")
        if g.stamps:
            a("s_waitcnt vmcnt(0)")
            g.stamp(role, "end")
            if g.opt.get("echo") and role == "c":
                (l0, n0), (l1, n1), k = g.opt["echo"]
                E = a.uid("echo")
                a(f"""v_readlane_b32 s{T+4}, v{VST}, {32*l0 + g.stn['c'].index(n0)}
                v_readlane_b32 s{T+5}, v{VST}, {32*l1 + g.stn['c'].index(n1)}
                s_nop 3
                s_sub_u32 s{T+4}, s{T+5}, s{T+4}
                s_mul_i32 s{T+4}, s{T+4}, {k}
                s_min_u32 s{T+4}, s{T+4}, 20000
                s_mov_b32 s{T+5}, s{S_ST}
                {E}:
                s_memrealtime s[{S_ST}:{S_ST+1}]
                s_waitcnt lgkmcnt(0)
                s_sub_u32 s{T+6}, s{S_ST}, s{T+5}
                s_cmp_lt_u32 s{T+6}, s{T+4}
                s_cbranch_scc1 {E}""")
            a(f"""s_lshl_b32 s{T}, s2, 3
            s_add_u32 s{T}, s{T}, s{S_W}
            s_add_u32 s{T}, s{T}, {wv}
            s_lshl_b32 s{T}, s{T}, 8
            s_add_u32 s{T}, s{T}, {TS}
            v_lshlrev_b32 v20, 2, v0
            buffer_store_dword v{VST}, v20, s[{SWS}:{SWS+3}], s{T} offen""")
        a("s_endpgm")

    def l_setup_w(g, p, natural=False):
        a = g.a; t0, t1, t2 = LV_T, LV_T+1, LV_T+2
        a(f"s_mov_b32 s{T+1}, {p.ldb}")
        krow = LV_KN if natural else LV_KF
        a(f"""v_mul_lo_u32 v{t0}, v{krow}, s{T+1}
        v_add_u32 v{t0}, v{t0}, v{LV_CH}
        v_xor_b32 v{t1}, 64, v{t0}
        v_add_u32 v{t1}, {(8 if natural else 4)*p.ldb - 1024}, v{t1}""")
        r = LV_W
        for t, w in enumerate(p.subt):
            if w == 128:
                a(f"v_add_u32 v{r}, s{S_COL+t}, v{t0}\nv_add_u32 v{r+1}, s{S_COL+t}, v{t1}"); r += 2
            else:
                a(f"v_mul_lo_u32 v{t2}, v{LV_KH}, s{T+1}\nv_add3_u32 v{r}, v{t2}, v{LV_CHH}, s{S_COL+t}"); r += 1
    def l_issue_x(g, p, i):
        a = g.a
        a(f"s_add_u32 m0, s{S_LX}, {p.x0 + (i % p.NST)*p.xp}")
        for k in range(4):
            a(f"buffer_load_dwordx4 v{LV_X+k}, s[{SX}:{SX+3}], s{S_KX} offen offset:{1024*k} sc1 lds")
        return 4
    def l_issue_w(g, p, i):
        a = g.a; r = LV_W
        for t, w in enumerate(p.subt[:nsub(p, i)]):
            wb = ((i % 8) >> 1)*p.wp + (i & 1)*8192 if (p is G2 and g.opt.get("w8", 1)) else p.w0 + (i % p.NST)*p.wp
            a(f"s_add_u32 m0, s{S_LW if w == 128 else S_LH}, {wb + p.woff[t]}")
            for q in range(2 if w == 128 else 1):
                a(f"buffer_load_dwordx4 v{r}, s[{SW}:{SW+3}], s{S_KW} offen offset:{1024*q} lds"); r += 1
        return r - LV_W
    def kline(g, p, d, i):
        a = g.a
        if p is not G4: a(f"s_bfe_u32 s{d}, s{S_TAB + i//8}, {(4 << 16) | (4*(i % 8)):#x}")
        elif i < 16:
            a(f"s_add_u32 s{d}, s{S_J2}, {i}\ns_and_b32 s{d}, s{d}, 7\ns_add_u32 s{d}, s{d}, s{S_K24}")
            if i & 8: a(f"s_add_u32 s{d}, s{d}, 8")
        else:
            a(f"s_add_u32 s{d}, s{S_J2}, {2*i}\ns_and_b32 s{d}, s{d}, 6")
            if 20 <= i < 24: return
            a(f"s_lshr_b32 s{d}, s{d}, 1")
            if i < 28: a(f"s_add_u32 s{d}, s{d}, s{S_K24}\ns_add_u32 s{d}, s{d}, {20 if i < 20 else 16}")
            else: a(f"s_sub_u32 s{d}, s{d}, s{S_K24}\ns_add_u32 s{d}, s{d}, 40")
    def wrow(g, p, d, i):
        a = g.a
        a(f"s_lshl_b32 s{d}, s{d}, 6")
        if p is G4 and 20 <= i < 24:
            a(f"s_and_b32 s{T+1}, s{S_CB}, 8\ns_lshl_b32 s{T+1}, s{T+1}, 2\ns_add_u32 s{d}, s{d}, s{T+1}\ns_add_u32 s{d}, s{d}, {48*64}")
    def l_line(g, p, i, x=True, w=True):
        a = g.a
        g.kline(p, S_LINE, i)
        virt = p is G4 and 20 <= i < 24
        if x:
            if p is G1: a(f"s_mul_i32 s{S_KX}, s{S_LINE}, s{S_XSTR}")
            elif p is G2: a(f"s_and_b32 s{T+1}, s{S_LINE}, 8\ns_lshl_b32 s{T+1}, s{T+1}, 1\ns_add_u32 s{S_KX}, s{S_LINE}, s{T+1}\ns_lshl_b32 s{S_KX}, s{S_KX}, {LT}")
            elif virt: a(f"s_and_b32 s{T+1}, s{S_CB}, 8\ns_add_u32 s{S_KX}, s{S_LINE}, s{T+1}\ns_lshl_b32 s{S_KX}, s{S_KX}, {LT-1}\ns_add_u32 s{S_KX}, s{S_KX}, {48*TL}")
            else: a(f"s_lshl_b32 s{S_KX}, s{S_LINE}, {LT}")
        if w:
            g.wrow(p, S_LINE, i)
            if virt: a(f"s_and_b32 s{T+1}, s{S_W}, 2\ns_lshl_b32 s{T+1}, s{T+1}, 4\ns_add_u32 s{S_LINE}, s{S_LINE}, s{T+1}")
            a(f"s_mul_i32 s{S_KW}, s{S_LINE}, {p.ldb}")
    def tab_first(g):
        g.a(f"""s_mov_b32 s{T}, 0x76543210
        s_mov_b32 s{T+1}, 0xfedcba98
        s_lshl_b32 s{T+4}, s{S_J2}, 3
        s_lshr_b64 s[{S_TAB}:{S_TAB+1}], s[{T}:{T+1}], s{T+4}
        s_sub_u32 s{T+4}, 64, s{T+4}
        s_lshl_b64 s[{T}:{T+1}], s[{T}:{T+1}], s{T+4}
        s_or_b64 s[{S_TAB}:{S_TAB+1}], s[{S_TAB}:{S_TAB+1}], s[{T}:{T+1}]
        s_and_b32 s{T}, s{S_RB}, 3
        s_mul_i32 s{T}, s{T}, 0x1111
        s_xor_b32 s{S_TAB}, s{S_TAB}, s{T}""")
    def tab_local(g):
        g.a(f"""s_mov_b32 s{T}, 0x76543210
        s_mov_b32 s{T+1}, 0x76543210
        s_lshl_b32 s{T+4}, s{S_J2}, 2
        s_lshr_b64 s[{T}:{T+1}], s[{T}:{T+1}], s{T+4}
        s_cmp_ge_u32 s{S_CB}, 8
        s_cselect_b32 s{T+1}, 0x88888888, 0
        s_or_b32 s{S_TAB}, s{T}, s{T+1}
        s_xor_b32 s{S_TAB+1}, s{S_TAB}, 0x88888888""")
    def l_cols(g, p):
        a = g.a
        if p is G1:
            a(f"s_lshl_b32 s{S_COL}, s{S_CB}, 7\ns_add_u32 s{S_COL+1}, s{S_COL}, 2048\ns_add_u32 s{S_COL+2}, s{S_COL}, 4096")
        elif p is G3:
            a(f"""s_and_b32 s{T}, s{S_CB}, 7
            s_lshl_b32 s{T}, s{T}, 7
            s_lshr_b32 s{T+1}, s{S_CB}, 3
            s_mul_i32 s{S_COL}, s{T+1}, 3072
            s_add_u32 s{S_COL}, s{S_COL}, s{T}
            s_add_u32 s{S_COL+1}, s{S_COL}, 1024
            s_add_u32 s{S_COL+2}, s{S_COL}, 2048
            s_lshl_b32 s{T+1}, s{T+1}, 6
            s_add_u32 s{S_COL+3}, s{T}, s{T+1}
            s_add_u32 s{S_COL+3}, s{S_COL+3}, 6144""")
        else:
            a(f"s_lshl_b32 s{S_COL}, s{S_CB}, 7\ns_xor_b32 s{S_COL+1}, s{S_COL}, 1024")
    def l_next_setup(g, p):
        g.srd(SW, WPTR[p], {G1: 1024*6144, G2: 1024*2048, G3: 1024*7168, G4: 3584*2048}[p])
        g.l_cols(p); g.l_setup_w(p)
    def l_xsrd(g, xbase, xrb):
        g.a(f"s_mul_i32 s{T}, s{S_RB}, {xrb}\ns_add_u32 s{T}, s{T}, {xbase}")
        g.srd(SX, SWS, xrb, T)
    def l_pf(g, p, i):
        a = g.a; wp = WPTR[p]
        g.kline(p, T, i); g.wrow(p, T, i)
        a(f"s_add_u32 s{T}, s{T}, s{S_PFR}")
        if p is G4 and 20 <= i < 24: a(f"s_and_b32 s{T+1}, s{S_PFR}, 32\ns_add_u32 s{T}, s{T}, s{T+1}")
        a(f"s_mul_i32 s{T}, s{T}, {p.ldb}\ns_add_u32 s{T}, s{T}, s{S_PFH}")
        if p is G3 or nsub(p, i) == 2:
            a(f"s_add_u32 s{S_PFA}, s{wp}, s{T}\ns_addc_u32 s{S_PFA+1}, s{wp+1}, 0")
            for o in ([51*128] if p is G3 else [384, 1408]): a(f"s_load_dword s{S_PFD}, s[{S_PFA}:{S_PFA+1}], {o}")
        if nsub(p, i) != 2:
            a(f"""s_and_b32 s{T+1}, s{S_CB}, 8
            s_mul_i32 s{T+1}, s{T+1}, {384 if p is G3 else 128}
            s_add_u32 s{T}, s{T}, s{T+1}
            s_add_u32 s{S_PFA+2}, s{wp}, s{T}
            s_addc_u32 s{S_PFA+3}, s{wp+1}, 0""")
            for t in range(min(3, nsub(p, i))): a(f"s_load_dword s{S_PFD}, s[{S_PFA+2}:{S_PFA+3}], {384 + t*(2048 if p is G1 else 1024)}")
    def rows_target(g, code, own=True):
        g.a(f"""s_add_u32 s{S_TGT}, s{S_FB}, {code}
        s_cmp_{'ge' if own else 'lt'}_u32 s{S_CB}, 8
        s_cselect_b32 s{S_MASK}, 0, -1
        s_cselect_b32 s{S_MASK+1}, -1, 0""")
    def l_wait_rows(g, code):
        g.rows_target(code)
        g.poll(LV_PA, "0", LV_PV)
    def flag_jobs(g, add, s_issue, s_check, code, own, name, skip_l0=False):
        a = g.a; so = "0" if own else f"s{T+4}"
        def issue(q):
            if not own: a(f"s_movk_i32 s{T+4}, {RXF}")
            a(f"buffer_load_dword v{LV_PV}, v{LV_PA}, s[{SWS}:{SWS+3}], {so} offen sc1"); q.append(s_check)
        def check(q):
            D = a.uid("fc")
            if skip_l0: a(f"s_cmp_eq_u32 s{S_L}, 0\ns_cbranch_scc1 {D}")
            g.rows_target(code, own)
            if not own: a(f"s_movk_i32 s{T+4}, {RXF}")
            g.poll(LV_PA, so, LV_PV, first_done=True, acquire=own)
            a.label(D)
            g.stamp("l", name)
        add((s_issue, "pre"), issue); add((s_check, "pre"), check)
    def l_main(g, p, q0=None, nxt=None, cond_nxt=None):
        a = g.a; N, n = p.NST, p.n
        jobs = g.jobs(p)
        def run(key):
            for f in jobs.get(key, []): f(q)
        if q0 is None:
            q = []
            for s in range(N - 1):
                g.l_line(p, s, w=False); q += [s]*g.l_issue_x(p, s)
        else: q = list(q0)
        w8 = p is G2 and g.opt.get("w8", 1)
        fill = g.opt.get("fill", 1) and q0 is None
        if fill:
            g.l_line(p, N - 1); q += [N - 1]*(g.l_issue_x(p, N - 1) + (0 if w8 else g.l_issue_w(p, N - 1)))
        def wait(s):
            last = max(i for i, t in enumerate(q) if t == s)
            assert len(q) - 1 - last <= 63
            a(f"s_waitcnt vmcnt({len(q) - 1 - last})")
            nc = q[last:].count(-2)
            if nc:
                S = a.uid("wc")
                a(f"s_cmp_eq_u32 s{S_L}, 0\ns_cbranch_scc1 {S}\ns_waitcnt vmcnt({len(q) - 1 - last - nc})")
                a.label(S)
        g.qwait = wait
        if N == 3: ra = {n: list(range(g.opt.get("w8a", 4))) if (nxt is G2 and g.opt.get("w8", 1)) else [1, 2, 0]}
        else:
            e = g.opt.get("early", 3)
            ra = {n - e: [0], n - e + 1: [1]} if e else {n: [0, 1]}
        def runahead(s):
            if s not in ra and s != n: return
            if cond_nxt:
                S = a.uid("ra"); a(f"s_cmp_lg_u32 s{S_L}, 0\ns_cbranch_scc1 {S}")
            if s == min(ra): g.l_next_setup(nxt)
            for t in ra.get(s, []):
                g.l_line(nxt, t, x=False)
                q.extend([-2 if cond_nxt else -1]*g.l_issue_w(nxt, t))
            if s == n:
                k0 = 8 if (nxt is G2 and g.opt.get("w8", 1)) else nxt.NST - 1
                for k in range(k0, max(k0, nxt.NST - 1 + PFD[nxt])): g.l_pf(nxt, k)
            if cond_nxt: a.label(S)
        for s in range(n):
            i = s + N - 1
            skip = s == 0 and (fill or (p is G1 and g.opt.get("fill", 1)))
            if i < n and not skip: g.l_line(p, i, w=not (w8 and i < 8))
            wait(s); a("s_barrier")
            if g.opt.get("stepst") == p.name and s < 16: g.stamp("l", f"s{s}")
            run((s, "pre"))
            if skip and p is G1:
                S = a.uid("f0"); a(f"s_cmp_lg_u32 s{S_L}, 0\ns_cbranch_scc1 {S}")
                g.l_line(p, i); q += [i]*(g.l_issue_x(p, i) + g.l_issue_w(p, i))
                a.label(S)
            if i < n and not skip: q += [i]*(g.l_issue_x(p, i) + (0 if (w8 and i < 8) else g.l_issue_w(p, i)))
            k = i + PFD[p]
            if k < n:
                if not (w8 and k < 8): g.l_pf(p, k)
            elif N == 4 and k - n < 2: g.l_pf(nxt, k - n)
            run((s, "post"))
            runahead(s)
        a("s_waitcnt lgkmcnt(0)\ns_barrier")
        run((n, "pre"))
        runahead(n)
        run((n, "post"))

    def job_colsum(g, p, s, u, q):
        a = g.a; D = a.uid("csd"); Hf = a.uid("csh"); St = a.uid("css")
        F, A0, ONE, U = 64, 96, 112, LV_T
        base = p.w0 + (s % p.NST)*p.wp
        if u is None: a(f"s_cmp_lg_u32 s{S_L}, 0\ns_cbranch_scc1 {D}")
        else: a(f"s_and_b32 s{T}, s{S_RB}, 3\ns_add_u32 s{T}, s{T}, s{S_FB}\ns_cmp_lg_u32 s{T}, {u}\ns_cbranch_scc1 {D}")
        for i in range(4): a(f"v_mov_b32 v{ONE+i}, 0x3f803f80")
        if p is G3: a(f"s_cmp_eq_u32 s{S_W}, 3\ns_cbranch_scc1 {Hf}")
        a(f"s_lshl_b32 s{T}, s{S_W}, 13\ns_add_u32 s{T}, s{T}, {base}\nv_add_u32 v{U}, s{T}, v{LV_TRF}")
        def blk(nseg, w):
            for seg in range(nseg):
                a(f"v_xor_b32 v{U+1}, {32*seg}, v{U}")
                for kk in range(2):
                    for h in range(2):
                        a(f"ds_read_b64_tr_b16 {vr(F+seg*8+kk*4+h*2,2)}, v{U+1} offset:{(32*kk+4*h)*w}")
            a("s_waitcnt lgkmcnt(0)")
            for seg in range(nseg):
                for kk in range(2):
                    a(f"v_mfma_f32_16x16x32_bf16 {vr(A0+4*seg,4)}, {vr(ONE,4)}, {vr(F+seg*8+kk*4,4)}, {'0' if kk == 0 else vr(A0+4*seg,4)}")
        blk(4, 128)
        if p is G3:
            a(f"s_branch {St}")
            a.label(Hf)
            a(f"v_add_u32 v{U}, {base + p.woff[3]}, v{LV_TRH}\nv_mov_b32 v{A0+8}, 0\nv_mov_b32 v{A0+12}, 0")
            blk(2, 64)
            a.label(St)
        a(f"""s_lshl_b32 s{T}, s{S_CB}, 14
        s_lshl_b32 s{T+1}, s{S_RB}, 10
        s_add_u32 s{T}, s{T}, s{T+1}
        s_add_u32 s{T}, s{T}, {CSP + (CSP_I if p is G3 else 0)}
        v_cmp_gt_u32 vcc, 16, v0
        s_nop 5
        v_cndmask_b32 v{A0}, v{A0+4}, v{A0}, vcc
        v_cmp_gt_u32 vcc, 48, v0
        v_cndmask_b32 v{A0+8}, v{A0+12}, v{A0+8}, vcc
        v_cmp_gt_u32 vcc, 32, v0
        v_cndmask_b32 v{A0}, v{A0+8}, v{A0}, vcc
        buffer_store_dword v{A0}, v{LV_T4}, s[{SWS}:{SWS+3}], s{T} offen sc1""")
        a.label(D)
        if u is None: q.append(-2)
    def job_stats(g, inst, store=True):
        a = g.a; F = 16; U = 32; SQ = 36
        a(f"""v_bfe_u32 v{U}, v0, 2, 2
        v_lshlrev_b32 v{U}, 4, v{U}
        v_lshl_add_u32 v{U}, v0, 6, v{U}
        s_lshl_b32 s{T}, s{S_W}, 12
        s_add_u32 s{T}, s{T}, {RES}
        v_add_u32 v{U}, s{T}, v{U}""")
        for i in range(4):
            a(f"v_xor_b32 v{U+1}, {16*i}, v{U}\nds_read_b128 {vr(F+4*i,4)}, v{U+1}")
        for i in range(4): a(f"v_mov_b32 v{SQ+i}, 0")
        a(f"""s_mov_b32 s{T+2}, 0x3f803f80
        s_lshl_b32 s{T}, {inst}, 18
        s_lshl_b32 s{T+1}, s{S_RB}, 14
        s_add_u32 s{T}, s{T}, s{T+1}
        s_lshl_b32 s{T+1}, s{S_CB}, 10
        s_add_u32 s{T}, s{T}, s{T+1}
        s_lshl_b32 s{T+1}, s{S_W}, 8
        s_add_u32 s{T}, s{T}, s{T+1}
        s_add_u32 s{T}, s{T}, {STAT}""")
        for i in range(16):
            if i % 4 == 0: a(f"s_waitcnt lgkmcnt({3 - i//4})")
            a(f"v_dot2c_f32_bf16 v{SQ + i%2}, s{T+2}, v{F+i}\nv_dot2c_f32_bf16 v{SQ + 2 + i%2}, v{F+i}, v{F+i}")
        a(f"""v_and_b32 v{U}, 1, v0
        v_cmp_eq_u32 vcc, 0, v{U}
        v_lshlrev_b32 v{U}, 2, v0
        v_add_f32 v{SQ}, v{SQ}, v{SQ+1}
        v_add_f32 v{SQ+2}, v{SQ+2}, v{SQ+3}
        v_add_f32_dpp v{SQ+1}, v{SQ}, v{SQ} quad_perm:[1,0,3,2] row_mask:0xf bank_mask:0xf
        v_add_f32_dpp v{SQ+3}, v{SQ+2}, v{SQ+2} quad_perm:[1,0,3,2] row_mask:0xf bank_mask:0xf
        v_cndmask_b32 v{V_SS}, v{SQ+3}, v{SQ+1}, vcc""")
        if store: a(f"buffer_store_dword v{V_SS}, v{U}, s[{SWS}:{SWS+3}], s{T} offen sc1")
        else: a(f"s_mov_b32 s{T+13}, s{T}")
    def job_boot_issue(g, q):
        a = g.a; D = a.uid("jpd")
        a(f"s_cmp_lg_u32 s{S_L}, 0\ns_cbranch_scc1 {D}")
        g.srd(SM, P_DBG, 256)
        a(f"buffer_load_dword v{LV_PV}, v{LV_L4}, s[{SM}:{SM+3}], 0 offen sc1")
        a.label(D); q.append(-2)
    def gather_loads(g, p):
        a = g.a; E = a.uid("jge")
        a(f"""s_lshl_b32 s{T}, s{S_L}, 19
        s_lshl_b32 s{T+1}, s{S_RB}, 14
        s_add_u32 s{T}, s{T}, s{T+1}
        s_add_u32 s{T}, s{T}, {STAT + (STAT_I if p is G3 else 0)}""")
        for i in range(4):
            a(f"buffer_load_dwordx4 {vr(64+4*i,4)}, v{LV_GA}, s[{SWS}:{SWS+3}], s{T} offen offset:{1024*i} sc1")
        a(f"""s_cmp_lg_u32 s{S_L}, 0
        s_cbranch_scc1 {E}
        s_lshl_b32 s{T}, s{S_CB}, 14
        s_add_u32 s{T}, s{T}, {CSP + (CSP_I if p is G3 else 0)}""")
        for i in range(4):
            a(f"buffer_load_dwordx4 {vr(80+4*i,4)}, v{LV_GA}, s[{SWS}:{SWS+3}], s{T} offen offset:{1024*i} sc1")
        a.label(E)
    def job_gather(g, p, q):
        a = g.a; D = a.uid("jgd")
        a(f"s_cmp_lg_u32 s{S_L}, 0\ns_cbranch_scc1 {D}")
        if p is G1:
            g.srd(SM, P_DBG, 256)
            a(f"s_mov_b32 s{S_TGT}, 32\ns_mov_b32 s{S_MASK}, 0x01010101\ns_mov_b32 s{S_MASK+1}, 0x01010101")
            g.poll(LV_L4, "0", LV_PV, srd=SM, first_done=True, andmask=63, acquire=False)
            a(f"""s_lshl_b32 s{T}, s{S_XCD}, 3
            s_lshl_b32 s{T+1}, s{S_BOOT}, 5
            v_readlane_b32 s{T+2}, v{LV_PV}, s{T}
            s_cmp_lg_u32 s{T+2}, s{T+1}
            s_cselect_b32 s{S_MODE}, 1, {1 if g.force_slow else 0}
            v_mov_b32 v{LV_T}, {L_MODE}
            v_mov_b32 v{LV_T+1}, s{S_MODE}
            ds_write_b32 v{LV_T}, v{LV_T+1}""")
        else:
            g.srd(SM, P_B1, 3584*2)
            a(f"""s_cmp_eq_u32 s{S_W}, 1
            s_cselect_b32 s{T}, s{S_COL+1}, s{S_COL}
            s_cmp_eq_u32 s{S_W}, 2
            s_cselect_b32 s{T}, s{S_COL+2}, s{T}
            s_cmp_eq_u32 s{S_W}, 3
            s_cselect_b32 s{T}, s{S_COL+3}, s{T}
            v_lshlrev_b32 v{LV_T}, 1, v0
            buffer_load_ushort v96, v{LV_T}, s[{SM}:{SM+3}], s{T} offen""")
            g.srd(SM, P_B2, 2048)
            a(f"s_lshl_b32 s{T}, s{S_CB}, 7\nbuffer_load_ushort v97, v{LV_T}, s[{SM}:{SM+3}], s{T} offen")
            q += [-2]*2
        a.label(D)
        g.gather_loads(p)
        q += [-1]*4 + [-2]*4
        g.gpos = len(q)
    def job_reduce(g, p, q):
        a = g.a; E = a.uid("jre"); R = a.uid("jrr"); C = a.uid("jrc"); N0 = a.uid("jrn")
        def tree(b):
            for st in (8, 4):
                for i in range(0, st, 2): a(f"v_pk_add_f32 {vr(b+i,2)}, {vr(b+i,2)}, {vr(b+st+i,2)}")
            for sw in ("16", "32"):
                a(f"v_mov_b64 {vr(b+4,2)}, {vr(b,2)}\nv_mov_b64 {vr(b+6,2)}, {vr(b+2,2)}")
                for i in range(4): a(f"v_permlane{sw}_swap_b32 v{b+i}, v{b+4+i}")
                for i in (0, 2): a(f"v_pk_add_f32 {vr(b+i,2)}, {vr(b+i,2)}, {vr(b+4+i,2)}")
        young = q[g.gpos:]
        a(f"""s_mov_b32 s{S_SPIN}, {SPIN}
        s_waitcnt vmcnt({len(young)})
        s_cmp_eq_u32 s{S_L}, 0
        s_cbranch_scc1 {C}
        s_waitcnt vmcnt({len(young) - young.count(-2)})""")
        a.label(C)
        keep, g.a = g.a, Asm(); g.a._uid = keep._uid + 1000
        g.a.label(R); g.gather_loads(p); g.a(f"s_waitcnt vmcnt(0)\ns_branch {C}")
        g.cold.append(g.a.text()); g.a = keep
        tree(64)
        a(f"v_pk_add_f32 v[98:99], v[64:65], v[66:67]\ns_cmp_lg_u32 s{S_L}, 0\ns_cbranch_scc1 {N0}")
        tree(80)
        if p is G3: a("v_pk_add_f32 v[98:99], v[98:99], v[80:81]\nv_pk_add_f32 v[98:99], v[98:99], v[82:83]")
        a.label(N0)
        a("v_cmp_u_f32 vcc, v98, v99")
        g.retry(R)
        a(f"""s_mov_b32 s{T+2}, {f2u(1/1024):#x}
        v_pk_mul_f32 v[64:65], v[64:65], s[{T+2}:{T+3}] op_sel_hi:[1,0]
        v_pk_mul_f32 v[66:67], v[66:67], s[{T+2}:{T+3}] op_sel_hi:[1,0]
        v_fma_f32 v68, -v64, v64, v65
        v_fma_f32 v69, -v66, v66, v67
        v_max_f32 v68, 0, v68
        v_max_f32 v69, 0, v69
        v_add_f32 v68, {f2u(1e-5):#x}, v68
        v_add_f32 v69, {f2u(1e-5):#x}, v69
        v_rsq_f32 v68, v68
        v_rsq_f32 v69, v69
        v_and_b32 v72, 15, v0
        s_lshl_b32 s{T}, s{S_W}, 7
        s_add_u32 s{T}, s{T}, {L_RSTD}
        v_lshl_add_u32 v73, v72, 3, s{T}
        v_mul_f32 v70, -v64, v68
        v_mul_f32 v71, -v66, v69
        ds_write_b64 v73, v[68:69]
        ds_write_b64 v73, v[70:71] offset:512
        s_cmp_lg_u32 s{S_L}, 0
        s_cbranch_scc1 {E}
        s_lshl_b32 s{T}, s{S_W}, 8
        s_add_u32 s{T}, s{T}, {L_CSQ if p is G1 else L_CS1}
        v_lshl_add_u32 v73, v72, 4, s{T}
        ds_write_b128 v73, v[80:83]""")
        if p is G3:
            a(f"""v_add_u32 v71, {L_B1}, v{LV_T4}
            v_lshlrev_b32 v96, 16, v96
            ds_write_b32 v71, v96
            v_lshlrev_b32 v97, 16, v97
            v_add_u32 v71, {L_B2}, v{LV_L4}
            ds_write_b32 v71, v97""")
        a.label(E)
    def job_clears(g, q):
        a = g.a; D = a.uid("jc")
        g.clear_xb(LV_T); q += [-1]*4
        a(f"s_cmp_lg_u32 s{S_L}, 0\ns_cbranch_scc1 {D}")
        g.clear_kv(1, LV_T)
        a(f"s_lshl_b32 s{T}, s{S_RB}, 14\ns_lshl_b32 s{T+1}, s{S_CB}, 10\ns_add_u32 s{T}, s{T}, s{T+1}\ns_add_u32 s{T}, s{T}, {STAT}")
        for i in range(1, 4):
            a(f"s_add_u32 s{T}, s{T}, {STAT_I}\nbuffer_store_dword v{V_SEN}, v{LV_T4}, s[{SWS}:{SWS+3}], s{T} offen sc1")
        a.label(D); q += [-2]*5
    def job_trickle(g, items, S_PFA=S_PFA, S_PFD=S_PFD):
        a = g.a; D = a.uid("jt")
        a(f"s_cmp_lg_u32 s{S_L}, 0\ns_cbranch_scc1 {D}\ns_lshl_b32 s{T}, s2, 2\ns_add_u32 s{T}, s{T}, s{S_W}")
        cur = None
        for ptr, sec in items:
            if ptr != cur:
                cur = ptr
                a(f"""s_mul_i32 s{T+1}, s{T}, {2048 if ptr == P_WO else 7168}
                s_add_u32 s{S_PFA}, s{ptr}, s{T+1}
                s_addc_u32 s{S_PFA+1}, s{ptr+1}, 0""")
            a(f"s_load_dword s{S_PFD}, s[{S_PFA}:{S_PFA+1}], {64*sec}")
        a.label(D)
    def job_wtouch(g, ptr, first, q):
        a = g.a; D = a.uid("jw")
        per = 2048 if ptr == P_WO else 7168
        a(f"s_cmp_lg_u32 s{S_L}, 0\ns_cbranch_scc1 {D}")
        g.srd(SM, ptr, 1024*per)
        a(f"""s_lshl_b32 s{T}, s2, 2
        s_add_u32 s{T}, s{T}, s{S_W}
        s_mul_i32 s{T}, s{T}, {per}
        s_add_u32 s{T}, s{T}, {128*first}
        v_min_u32 v{LV_T}, {per//128 - 1 - first}, v0
        v_lshlrev_b32 v{LV_T}, 7, v{LV_T}
        buffer_load_dword v{LV_DUM}, v{LV_T}, s[{SM}:{SM+3}], s{T} offen""")
        a.label(D); q.append(-2)
    def jobs(g, p):
        a = g.a; J = {}
        def add(key, fn): J.setdefault(key, []).append(fn)
        if p is G2:
            g.flag_jobs(add, g.opt.get("g2p", 4), 5, 1, False, "orem")
            return J
        if p is G4:
            g.flag_jobs(add, 4, 5, 7, True, "hall")
            g.flag_jobs(add, 19, 21, 7, False, "hrem")
            return J
        add((14, "pre"), lambda q: g.job_gather(p, q))
        g.flag_jobs(add, 5, 6, 3 if p is G3 else -7, False, p.name + "rem", skip_l0=p is G1)
        if p is G1:
            add((0, "post"), lambda q: g.job_colsum(G1, 0, None, q))
            add((12, "pre"), g.job_boot_issue)
            add((14, "post"), lambda q: (g.job_clears(q), g.tab_local()))
        else:
            for u, st in enumerate((0, 1, 8, 9)): add((st, "post"), lambda q, u=u, st=st: g.job_colsum(G3, st, u, q))
        ntr = g.opt.get("tr1" if p is G1 else "tr3", 4); t0 = g.opt.get("tr0", 2) if p is G1 else 0
        secs = ([(P_WO, k) for k in range(32)] if p is G1 else []) + [(P_W1 if p is G1 else P_W2, k) for k in range(112)]
        for st in range(t0, 14):
            it, secs = secs[:ntr], secs[ntr:]
            if it: add((st, "post"), lambda q, it=it: g.job_trickle(it))
        if p is G1:
            it, secs = secs[:g.opt.get("trl", 0)], secs[g.opt.get("trl", 0):]
            if it: add((16, "post"), lambda q, it=it: g.job_trickle(it))
            g.ctrickle, secs = secs[:g.opt.get("trc", 0)], secs[g.opt.get("trc", 0):]
        rest = {}
        for ptr, k in secs: rest.setdefault(ptr, k // 2)
        if not g.opt.get("wt", 1): rest = {}
        for ptr, first in rest.items(): add((14, "post"), lambda q, ptr=ptr, first=first: g.job_wtouch(ptr, first, q))
        add((15, "post"), lambda q: g.job_reduce(p, q))
        return J

    def l_kv_gather(g):
        a = g.a; F = 64; Z = 128; U = 132; S = 144
        P = a.uid("kvp"); D = a.uid("kvd"); P1 = a.uid("kv1"); PZ = a.uid("kvz")
        a(f"""s_lshl_b32 s{T}, s{S_L}, 20
        s_lshl_b32 s{T+1}, s{S_CB}, 16
        s_add_u32 s{T}, s{T}, s{T+1}
        s_lshl_b32 s{T+1}, s{S_W}, 14
        s_add_u32 s{T}, s{T}, s{T+1}
        s_lshr_b32 s{T+4}, s{T}, 4
        s_add_u32 s{T}, s{T}, {KVP}
        s_mov_b32 s{T+5}, s{T}
        s_add_u32 s{T+4}, s{T+4}, {ZP}""")
        for k in range(4):
            a(f"s_add_u32 s{T+k}, s{S_J2}, {2*k + 2}\ns_and_b32 s{T+k}, s{T+k}, 6\ns_lshl_b32 s{T+k}, s{T+k}, 11\ns_add_u32 s{T+k}, s{T+k}, s{T+5}")
        a(f"""v_and_b32 v{U}, 15, v0
        v_lshlrev_b32 v{U}, 6, v{U}
        v_and_b32 v{U+1}, 48, v0
        v_add_u32 v{U}, v{U}, v{U+1}
        s_lshr_b32 s{T+5}, s{S_W}, 1
        s_lshl_b32 s{T+5}, s{T+5}, 10
        s_and_b32 s{T+6}, s{S_W}, 1
        s_lshl_b32 s{T+6}, s{T+6}, 3
        s_add_u32 s{T+5}, s{T+5}, s{T+6}
        s_add_u32 s{T+5}, s{T+5}, {L_ZF}
        v_add_u32 v{U+2}, s{T+5}, v{LV_L16}
        s_add_u32 s{T+5}, s{S_LH}, {L_KVF}
        v_add_u32 v{U+3}, s{T+5}, v{LV_L16}
        s_mov_b32 s{T+8}, 0x3f80
        s_mov_b32 s{T+9}, 0x3f800000
        s_mov_b32 s{S_SPIN}, {SPIN}
        s_mov_b32 s{S_ISS}, 15
        s_barrier""")
        kf = g.opt.get("kvf", "sc1"); sl = g.opt.get("kvsl", 4)
        if g.opt.get("w8", 1) and g.opt.get("w8a", 4) < 8:
            a(f"s_sleep {g.opt.get('jsl', 6)}")
            for t in range(g.opt.get("w8a", 4), 8):
                g.l_line(G2, t, x=False); g.l_issue_w(G2, t)
        if g.opt.get("junk", 1):
            J = a.uid("jk"); J2 = a.uid("jk")
            a(f"""s_cmp_lg_u32 s{S_L}, 0
            s_cbranch_scc1 {J}
            s_mul_i32 s{T+5}, s{S_RB}, {H_RB}
            s_and_b32 s{T+6}, s{S_CB}, 7
            s_add_u32 s{T+6}, s{T+6}, s{S_K24}
            s_lshl_b32 s{T+6}, s{T+6}, {LT}
            s_add_u32 s{T+6}, s{T+6}, s{T+5}
            s_add_u32 s{T+6}, s{T+6}, {HB + 8*TL}
            s_lshr_b32 s{T+7}, s{S_CB}, 1
            s_lshl_b32 s{T+7}, s{T+7}, {LT}
            s_add_u32 s{T+5}, s{T+5}, s{T+7}
            s_and_b32 s{T+7}, s{S_CB}, 1
            s_lshl_b32 s{T+7}, s{T+7}, {LK}
            s_add_u32 s{T+5}, s{T+5}, s{T+7}
            s_add_u32 s{T+5}, s{T+5}, {HB + 48*TL}
            s_sleep {0 if g.opt.get("w8", 1) and g.opt.get("w8a", 4) < 8 else g.opt.get("jsl", 6)}""")
            st = lambda sr, k: a(f"buffer_store_dwordx4 v[{LV_W}:{LV_W+3}], v{LV_X+k}, s[{SWS}:{SWS+3}], s{sr} offen offset:{1024*k}")
            for i in range(4): st(T+6, i)
            for i in range(2): st(T+5, 2*i)
            a(f"s_add_u32 s{T+6}, s{T+6}, {8*TL}\ns_bitcmp1_b32 s{S_CB}, 2\ns_cbranch_scc0 {J2}")
            for i in range(4): st(T+6, i)
            a.label(J2)
            if g.opt.get("jsl2", 0): a(f"s_sleep {g.opt.get('jsl2', 0)}")
            a(f"s_branch {P1}")
            a.label(J)
        if sl: a(f"s_sleep {sl}")
        zl = f"buffer_load_dwordx4 {vr(Z,4)}, v{U}, s[{SWS}:{SWS+3}], s{T+4} offen {kf}"
        def loads(k):
            for i in range(4): g.a(f"buffer_load_dwordx4 {vr(F+16*k+4*i,4)}, v{LV_L16}, s[{SWS}:{SWS+3}], s{T+k} offen offset:{1024*i} {kf}")
        def accum(k, K, cnt=None):
            sk = S + 8*k; a = g.a
            for i in range(4):
                if cnt is not None: a(f"s_waitcnt vmcnt({cnt - i})")
                for d in range(4):
                    x = F + 16*k + 4*i + d
                    if i == 0: a(f"v_lshlrev_b32 v{sk+2*d}, 16, v{x}\nv_and_b32 v{sk+2*d+1}, 0xffff0000, v{x}")
                    else: a(f"v_dot2c_f32_bf16 v{sk+2*d}, s{T+8}, v{x}\nv_dot2c_f32_bf16 v{sk+2*d+1}, s{T+9}, v{x}")
            a(f"""v_add_f32 v{U+4}, v{sk}, v{sk+2}
            v_add_f32 v{U+5}, v{sk+4}, v{sk+6}
            v_cmp_u_f32 vcc, v{U+4}, v{U+5}
            s_cbranch_vccnz {K}
            s_bitset0_b32 s{S_ISS}, {k}""")
            a.label(K)
        keep, g.a = g.a, Asm(); g.a._uid = keep._uid + 2000
        g.a.label(P); g.a(zl)
        for k in range(4):
            K = g.a.uid("kvl")
            g.a(f"s_bitcmp1_b32 s{S_ISS}, {k}\ns_cbranch_scc0 {K}"); loads(k); g.a.label(K)
        g.a("s_waitcnt vmcnt(0)")
        for k in range(4):
            K = g.a.uid("kva")
            g.a(f"s_bitcmp1_b32 s{S_ISS}, {k}\ns_cbranch_scc0 {K}"); accum(k, K)
        g.a(f"s_branch {PZ}")
        g.cold.append(g.a.text()); g.a = keep
        a.label(P1)
        for k in range(4): loads(k)
        a(zl)
        for k in range(4): accum(k, a.uid("kva"), 16 - 4*k)
        a("s_waitcnt vmcnt(0)")
        a.label(PZ)
        a(f"""v_max3_u32 v{U+1}, v{Z}, v{Z+1}, v{Z+2}
        v_max_u32 v{U+1}, v{U+1}, v{Z+3}
        v_cmp_eq_u32 vcc, -1, v{U+1}
        s_nop 0
        s_or_b32 s{T+5}, vcc_lo, vcc_hi
        s_or_b32 s{T+5}, s{T+5}, s{S_ISS}
        s_cbranch_scc0 {D}
        s_sub_u32 s{S_SPIN}, s{S_SPIN}, 1
        s_cbranch_scc0 {P}""")
        a.label(D)
        g.stamp("l", "kvflag")
        zs = [f"v_add_f32_dpp v{Z+i}, v{Z+i}, v{Z+i} row_ror:{st} row_mask:0xf bank_mask:0xf" for st in (8, 4, 2, 1) for i in range(4)]
        ks = [f"v_pk_add_f32 {vr(S+x+d,2)}, {vr(S+x+d,2)}, {vr(S+y+d,2)}" for x, y in ((0, 8), (16, 24), (0, 16)) for d in range(0, 8, 2)]
        ks += [f"v_cvt_pk_bf16_f32 v{U+4+d}, v{S+2*d}, v{S+2*d+1}" for d in range(4)]
        for l in ks: a(l)
        a(f"ds_write_b128 v{U+3}, {vr(U+4,4)}")
        for l in zs: a(l)
        a(f"""v_cvt_pk_bf16_f32 v{Z}, v{Z}, v{Z+1}
        v_cvt_pk_bf16_f32 v{Z+1}, v{Z+2}, v{Z+3}
        ds_write_b64 v{U+2}, {vr(Z,2)}
        s_waitcnt lgkmcnt(0)
        s_barrier""")

    def boot_val(g):
        g.a(f"""s_getreg_b32 s{T}, hwreg(HW_REG_XCC_ID, 0, 4)
        s_and_b32 s{T}, s{T}, 7
        s_mul_i32 s{T+1}, s{T}, s{T}
        s_lshl_b32 s{T}, s{T}, 6
        s_lshl_b32 s{T+1}, s{T+1}, 14
        s_add_u32 s{S_BOOT}, s{T}, s{T+1}
        s_add_u32 s{S_BOOT}, s{S_BOOT}, 1""")
    def loader(g):
        a = g.a; t0, t1, t2 = LV_T, LV_T+1, LV_T+2
        g.stamp("l", "start")
        if g.opt.get("lprio"): a(f"s_setprio {g.opt['lprio']}")
        a(f"""s_lshl_b32 s{S_LX}, s{S_W}, 12
        s_lshl_b32 s{S_LW}, s{S_W}, 11
        s_lshl_b32 s{S_LH}, s{S_W}, 10
        v_lshrrev_b32 v{t0}, 3, v0
        s_lshl_b32 s{T}, s{S_W}, 4
        v_add_u32 v{LV_KN}, s{T}, v{t0}
        v_and_b32 v{t2}, 7, v0
        v_and_b32 v{t1}, 2, v{t0}
        v_xor_b32 v{t1}, v{t1}, v{t2}
        v_lshlrev_b32 v{LV_CH}, 4, v{t1}
        s_lshl_b32 s{T}, s{S_W}, 5
        v_add_u32 v{t0}, s{T}, v{t0}
        v_lshlrev_b32 v{t0}, 11, v{t0}
        v_lshrrev_b32 v{t1}, 4, v0
        v_xor_b32 v{t1}, v{t1}, v{t2}
        v_lshl_add_u32 v{LV_X}, v{t1}, 4, v{t0}
        v_xor_b32 v{LV_X+1}, 64, v{LV_X}
        v_add_u32 v{LV_X+1}, {8*2048 - 1024}, v{LV_X+1}
        v_add_u32 v{LV_X+2}, {16*2048 - 2048}, v{LV_X}
        v_add_u32 v{LV_X+3}, {16*2048 - 2048}, v{LV_X+1}
        s_mov_b32 s{S_XSTR}, 128
        s_and_b32 s{S_K24}, s2, 1
        s_mul_i32 s{S_K24}, s{S_K24}, 24
        s_and_b32 s{S_J2}, s2, 6""")
        g.tab_first()
        g.l_cols(G1); g.l_setup_w(G1, natural=True)
        a(f"s_lshl_b32 s{T}, s{S_RB}, 18\ns_waitcnt lgkmcnt(0)")
        g.srd(SX, P_X, 128*2048, T)
        g.srd(SW, P_WQKV, 1024*6144)
        g.stamp("l", "karg")
        g.l_line(G1, 0); g.l_issue_w(G1, 0); g.l_issue_x(G1, 0)
        g.stamp("l", "iss0")
        g.l_line(G1, 1); g.l_issue_w(G1, 1); g.l_issue_x(G1, 1)
        a(f"""s_lshr_b32 s{T}, s{S_W}, 1
        s_lshl_b32 s{T}, s{T}, 5
        s_and_b32 s{T+1}, s{S_W}, 1
        s_lshl_b32 s{T+1}, s{T+1}, 3
        s_add_u32 s{T}, s{T}, s{T+1}
        v_bfe_u32 v{t0}, v0, 3, 2
        v_lshrrev_b32 v{t1}, 5, v0
        v_lshl_add_u32 v{t0}, v{t1}, 4, v{t0}
        v_add_u32 v{LV_KF}, s{T}, v{t0}
        v_bfe_u32 v{t0}, v0, 2, 2
        v_lshl_add_u32 v{t0}, v{t1}, 2, v{t0}
        v_and_b32 v{t2}, 16, v0
        v_add3_u32 v{LV_KH}, v{t0}, v{t2}, s{T}
        v_lshlrev_b32 v{t1}, 1, v{t1}
        v_and_b32 v{t2}, 3, v0
        v_xor_b32 v{t1}, v{t1}, v{t2}
        v_lshlrev_b32 v{LV_CHH}, 4, v{t1}
        v_lshlrev_b32 v{LV_L4}, 2, v0
        v_lshlrev_b32 v{LV_L16}, 4, v0
        s_lshl_b32 s{T}, s{S_W}, 8
        v_add_u32 v{LV_T4}, s{T}, v{LV_L4}
        s_lshl_b32 s{T}, s{S_RB}, 8
        v_add_u32 v{LV_PA}, s{T}, v{LV_L4}
        v_lshrrev_b32 v{t1}, 4, v0
        v_and_b32 v{t0}, 15, v0
        v_lshlrev_b32 v{t0}, 4, v{t0}
        v_lshl_add_u32 v{t0}, v{t1}, 12, v{t0}
        s_lshl_b32 s{T}, s{S_W}, 8
        v_add_u32 v{LV_GA}, s{T}, v{t0}
        v_bfe_u32 v{t0}, v0, 2, 2
        v_lshl_add_u32 v{t0}, v{t1}, 3, v{t0}
        v_lshlrev_b32 v{t2}, 3, v{t2}
        v_bfe_u32 v{t1}, v0, 3, 2
        v_lshl_add_u32 v{LV_TRF}, v{t1}, 5, v{t2}
        v_lshl_add_u32 v{LV_TRF}, v{t0}, 7, v{LV_TRF}
        v_lshrrev_b32 v{t1}, 1, v{t1}
        v_lshl_add_u32 v{LV_TRH}, v{t1}, 5, v{t2}
        v_lshl_add_u32 v{LV_TRH}, v{t0}, 6, v{LV_TRH}
        s_lshr_b32 s{S_PFR}, s2, 3
        s_lshl_b32 s{S_PFR}, s{S_PFR}, 1
        s_lshr_b32 s{T}, s{S_W}, 1
        s_add_u32 s{S_PFR}, s{S_PFR}, s{T}
        s_and_b32 s{S_PFH}, s{S_W}, 1
        s_lshl_b32 s{S_PFH}, s{S_PFH}, 6""")
        g.boot_val()
        a(f"s_waitcnt vmcnt({G1.P})")
        g.stamp("l", "land0")
        a("s_branch L_l_g1b")
        a.label("L_l_layer")
        for s in range(2):
            g.l_line(G1, s, w=False); g.l_issue_x(G1, s)
        if g.opt.get("fill", 1):
            g.l_line(G1, 2); g.l_issue_x(G1, 2); g.l_issue_w(G1, 2)
        a(f"s_waitcnt vmcnt({4 + G1.P if g.opt.get('fill', 1) else 4})")
        a.label("L_l_g1b")
        g.l_main(G1, q0=[0] + [-1]*50 + [1]*4, nxt=G2)
        g.stamp("l", "g1end")
        a(f"v_add_u32 v{LV_X}, s{S_LX}, v{LV_L16}\ns_mov_b32 s{S_XSTR}, {TL}")
        if SKIP: a(f"v_add_u32 v{LV_X+1}, 128, v{LV_X}\nv_cmp_gt_u32 vcc, 24, v0\nv_cndmask_b32 v{LV_X}, v{LV_X+1}, v{LV_X}, vcc")
        a(f"v_add_u32 v{LV_X+1}, {KS - 1024}, v{LV_X}\nv_mov_b32 v{LV_X+2}, v{LV_X}\nv_mov_b32 v{LV_X+3}, v{LV_X+1}")
        g.l_xsrd(HB, H_RB)
        g.l_kv_gather()
        g.stamp("l", "kvdone")
        g.l_wait_rows(1)
        g.stamp("l", "oflag")
        g.l_main(G2, nxt=G3)
        g.l_xsrd(XA, 16*TL)
        a("s_barrier")
        g.l_wait_rows(3)
        g.stamp("l", "x1flag")
        g.l_main(G3, nxt=G4)
        g.l_xsrd(HB, H_RB)
        g.l_wait_rows(5)
        g.stamp("l", "hflag")
        g.l_main(G4, nxt=G1, cond_nxt=True)
        a(f"s_cmp_lg_u32 s{S_L}, 0\ns_cbranch_scc1 L_l_fin")
        g.l_xsrd(XA, 16*TL)
        a("s_barrier")
        g.l_wait_rows(9)
        g.stamp("l", "x2flag")
        a(f"s_mov_b32 s{S_L}, 1\ns_mov_b32 s{S_FB}, 16\ns_branch L_l_layer")
        a.label("L_l_fin")
        g.finish("l")

    def c_frag(g, p):
        RW = 3 if p.NB == 6 else 4
        def xr(par): return [f"ds_read_b128 {vr(XF + par*32 + mb*8 + kk*4, 4)}, v{V_XA+kk} offset:{mb*2048}" for mb in range(4) for kk in range(2)]
        def wr(nb, slot=None):
            ri, off, w = p.nblk[nb]; slot = nb % RW if slot is None else slot
            return [f"ds_read_b64_tr_b16 {vr(WF + slot*8 + kk*4 + 2*h, 2)}, v{V_WA+ri} offset:{off + (32*kk + 4*h)*w}" for kk in range(2) for h in range(2)]
        def mf(par, nb, slot=None):
            out = []; slot = nb % RW if slot is None else slot
            for mb in range(4):
                for kk in range(2):
                    d = vr(ACC + 4*(nb*4 + mb), 4)
                    X, W = vr(XF + par*32 + mb*8 + kk*4, 4), vr(WF + slot*8 + kk*4, 4)
                    A, B = (W, X) if p.swapped[nb] else (X, W)
                    out.append(f"v_mfma_f32_16x16x32_bf16 {d}, {A}, {B}, {d}")
            return out
        def inter(ms, rs):
            rs = list(rs)
            for m in ms:
                g.a(m)
                if rs: g.a(rs.pop(0))
            assert not rs
        nwa = 3 if 64 in p.subt else 2
        nxt = [f"s_add_u32 s{S_SLOT}, s{S_SLOT}, 1\ns_cmp_eq_u32 s{S_SLOT}, {p.NST}", f"s_cselect_b32 s{S_DLX}, s{S_KX}, {p.xp}",
               f"s_cselect_b32 s{S_DLW}, s{S_KW}, {p.wp}", f"s_cselect_b32 s{S_SLOT}, 0, s{S_SLOT}"]
        up = [f"v_add_u32 v{r}, s{S_DLX}, v{r}" for r in range(V_XA, V_XA+2)] + [f"v_add_u32 v{r}, s{S_DLW}, v{r}" for r in range(V_WA, V_WA+nwa)]
        up = ["\n".join(up[0:2]), "\n".join(up[2:4])] + up[4:]
        return xr, wr, mf, inter, nxt, up
    def c_pre(g, p, reps):
        a = g.a; xr, wr, mf, inter, nxt, up = g.c_frag(p)
        if p is not G1: a(f"v_add_u32 v{V_XA}, {p.x0}, v{V_XA0}\nv_add_u32 v{V_XA+1}, {p.x0 + 1024}, v{V_XA0}")
        for i in range(3 if 64 in p.subt else 2): a(f"v_mov_b32 v{V_WA+i}, v{V_WA0+i}")
        for i in range(0, p.NB*16, 2): a(f"v_mov_b64 {vr(ACC+i,2)}, 0")
        a(f"s_mov_b32 s{S_CNT}, {reps}\ns_mov_b32 s{S_SLOT}, 0\ns_mov_b32 s{S_KX}, {(-(p.NST-1)*p.xp) & 0xffffffff:#x}\ns_mov_b32 s{S_KW}, {(-(p.NST-1)*p.wp) & 0xffffffff:#x}")
        a("s_waitcnt lgkmcnt(0)\ns_barrier")
        g.stamp("c", p.name + "b0")
        for r in wr(0) + xr(0) + wr(1): a(r)
    def c_loop(g, p):
        a = g.a; NB = p.NB; xr, wr, mf, inter, nxt, up = g.c_frag(p)
        L = a.uid("cl")
        its = g.stamps and g.opt.get("itst") == p.name
        if its:
            k = g.nst["c"]; g.nst["c"] += 16; g.stn["c"] += [f"i{i}" for i in range(16)]
            a(f"s_lshl_b32 m0, s{S_L}, 5\ns_add_u32 m0, m0, {k}")
        cnt = f"\ns_sub_u32 s{S_CNT}, s{S_CNT}, 1\ns_cmp_lg_u32 s{S_CNT}, 0"
        if NB == 2:
            def nx2(par): return [f"s_add_u32 s{S_SLOT}, s{S_SLOT}, 1\ns_cmp_eq_u32 s{S_SLOT}, 4", f"s_cselect_b32 s{S_DLX}, s{S_KX}, {p.xp}\ns_cselect_b32 s{S_SLOT}, 0, s{S_SLOT}",
                                  f"s_add_u32 s{S_LH}, s{S_LINE}, s{S_LW if par == 0 else S_LX}\ns_and_b32 s{S_LH}, s{S_LH}, 0x1ffff", f"s_sub_u32 s{S_DLW}, s{S_LH}, s{S_LINE}\ns_mov_b32 s{S_LINE}, s{S_LH}"]
            a(f"s_mov_b32 s{S_LINE}, 0")
            for l in nx2(1) + up: a(l)
        a(".p2align 3")
        a.label(L)
        for par in range(2):
            if NB == 2:
                a("s_waitcnt lgkmcnt(0)\ns_barrier")
                nx = wr(0, 2*(1-par)) + xr(1 - par) + wr(1, 2*(1-par) + 1)
                ex = nx2(par) + list(up)
                if par == 1: ex[-1] += cnt
                inter(mf(par, 0, 2*par) + mf(par, 1, 2*par + 1), [nx[2*i] + "\n" + nx[2*i+1] for i in range(8)] + ex)
                continue
            for nb in range(NB):
                if nb < NB - 2:
                    a("s_waitcnt lgkmcnt(4)")
                    if its and nb == NB - 3: a(f"s_memrealtime s[{S_ST}:{S_ST+1}]")
                    inter(mf(par, nb), wr(nb + 2) + (nxt if nb == 0 else up if nb == NB - 3 else []))
                elif nb == NB - 2:
                    a("s_waitcnt lgkmcnt(0)\ns_barrier")
                    if its: a(f"v_writelane_b32 v{VST}, s{S_ST}, m0\ns_add_u32 m0, m0, 1")
                    nx = wr(0) + xr(1 - par) + wr(1)
                    inter(mf(par, nb), nx[:8])
                else:
                    nx = nx[8:]
                    if par == 1: nx[6] += cnt
                    inter(mf(par, nb), nx)
        a(f"s_cbranch_scc1 {L}")
        return L
    def remote_flag(g, vt):
        g.a(f"s_movk_i32 s{T}, {RXF}\nbuffer_store_dword v{vt}, v{V_FLG}, s[{SWS}:{SWS+3}], s{T} offen sc1")
    def deferred(g):
        g.remote_flag(V_HK)
        g.a(f"v_lshlrev_b32 v{V_CS}, 2, v0\nbuffer_store_dword v{V_SS}, v{V_CS}, s[{SWS}:{SWS+3}], s{T+13} offen sc1")
    def c_g1(g):
        a = g.a; D = a.uid("st0"); HA, HB_ = a.uid("hka"), a.uid("hkb")
        g.c_pre(G1, f"s{T+12}")
        if g.opt.get("defer", 1): g.deferred()
        else:
            a(f"""s_cmp_lg_u32 s{S_L}, 0
            s_cbranch_scc1 {D}
            v_lshlrev_b32 v{V_CS}, 2, v0
            buffer_store_dword v{V_SS}, v{V_CS}, s[{SWS}:{SWS+3}], s{T+13} offen sc1""")
            a.label(D)
        L = g.c_loop(G1)
        a(f"s_cmp_lg_u32 s{S_HOOK}, 0\ns_cbranch_scc1 {HA}")
        g.cold.append(f"""{HA}:
        s_cmp_eq_u32 s{S_HOOK}, 1
        s_cbranch_scc1 {HB_}
        s_mov_b32 s{S_HOOK}, 1
        s_mov_b32 s{S_CNT}, 1
        s_waitcnt vmcnt(0)
        s_branch {L}
        {HB_}:
        s_mov_b32 s{S_HOOK}, 0
        s_mov_b32 s{S_CNT}, {8 - 1 - HOOKA}
        s_cmp_lg_u32 s{S_W}, 0
        s_cbranch_scc1 {L}
        s_mov_b32 s{SM}, s{P_DBG}
        s_mov_b32 s{SM+1}, s{P_DBG+1}
        s_mov_b32 s{SM+2}, 256
        s_mov_b32 s{SM+3}, 0x20000
        s_lshl_b32 s{T}, s{S_XCD}, 5
        v_mov_b32 v{V_HK}, s{S_BOOT}
        buffer_atomic_add v{V_HK}, v{V_ONE}, s[{SM}:{SM+3}], s{T} offen sc1
        s_branch {L}""")
        a("s_waitcnt lgkmcnt(0)")
        g.stamp("c", "g1loop")
    def c_g4a(g):
        a = g.a; D = a.uid("hkd"); SD = 176
        g.c_pre(G4, 1)
        a(f"s_mov_b32 s{S_HOOK}, 1")
        L = g.c_loop(G4)
        a(f"s_cmp_eq_u32 s{S_HOOK}, 0\ns_cbranch_scc1 {D}\ns_mov_b32 s{S_CNT}, 11\ns_mov_b32 s{S_HOOK}, 0")
        g.signal_row(7, V_HK); g.remote_flag(V_HK)
        a(f"s_branch {L}")
        a.label(D)
        a(f"""s_lshl_b32 s{T+1}, s2, 14
        s_lshl_b32 s{T+2}, s{S_W}, 12
        s_add_u32 s{T+1}, s{T+1}, s{T+2}
        s_xor_b32 s{T+2}, s{T+1}, {1 << 14}
        s_add_u32 s{T+7}, s{T+1}, {XB}
        s_add_u32 s{T+5}, s{T+2}, {XB}
        v_lshlrev_b32 v{V_L16}, 4, v0
        s_mov_b32 s{S_CNT}, {4 - g.opt.get("xbl", 1)}
        s_mov_b32 s{S_HOOK}, 1""")
        for mb in range(4):
            for b in range(2):
                for h in range(2):
                    t = ACC + 4*((2+b)*4 + mb) + 2*h
                    a(f"v_cvt_pk_bf16_f32 v{SD+4*mb+2*b+h}, v{t}, v{t+1}")
            a(f"buffer_store_dwordx4 {vr(SD+4*mb,4)}, v{V_L16}, s[{SWS}:{SWS+3}], s{T+5} offen offset:{1024*mb} sc1")
    def xb_loads(g): return [f"buffer_load_dwordx4 {vr(V_PP+4*mb,4)}, v{V_L16}, s[{SWS}:{SWS+3}], s{T+7} offen offset:{1024*mb} sc1" for mb in range(4)]
    def c_nb2(g):
        a = g.a; D = a.uid("hkd")
        L = g.c_loop(G2)
        a(f"s_cmp_eq_u32 s{S_HOOK}, 0\ns_cbranch_scc1 {D}\ns_mov_b32 s{S_CNT}, {g.opt.get('xbl', 1)}\ns_mov_b32 s{S_HOOK}, 0")
        for l in g.xb_loads(): a(l)
        if g.opt.get("xbl", 1): a(f"s_branch {L}")
        a.label(D)
        a("s_waitcnt lgkmcnt(0)")
        g.stamp("c", "loop", True)

    def phi(g, t, u, dst):
        c = f"s[{S_C}:{S_C+1}]"
        return [f"v_pk_fma_f32 {vr(u,2)}, {vr(t,2)}, {c}, {c} op_sel:[0,0,1] op_sel_hi:[1,0,1]",
                f"v_max_f32 v{t}, s{S_C+2}, v{t}", f"v_max_f32 v{t+1}, s{S_C+2}, v{t+1}",
                f"v_exp_f32 v{u}, v{u} clamp", f"v_exp_f32 v{u+1}, v{u+1} clamp",
                f"v_pk_add_f32 {vr(t,2)}, {vr(t,2)}, {vr(u,2)}",
                f"v_cvt_pk_bf16_f32 v{dst}, v{t}, v{t+1}"]
    def zipemit(g, streams):
        streams = [list(s) for s in streams]
        while any(streams):
            for s in streams:
                if s: g.a(s.pop(0))

    def clear_kv(g, layer, t0):
        g.a(f"""v_lshlrev_b32 v{t0}, 4, v0
        v_and_b32 v{t0+1}, 15, v0
        v_lshlrev_b32 v{t0+1}, 2, v{t0+1}
        s_lshl_b32 s{T}, s{S_CB}, 16
        s_lshl_b32 s{T+1}, s{S_RB}, 10
        s_add_u32 s{T}, s{T}, s{T+1}
        s_lshl_b32 s{T+1}, s{S_W}, 14
        s_add_u32 s{T}, s{T}, s{T+1}
        s_lshr_b32 s{T+1}, s{T}, 4
        s_add_u32 s{T}, s{T}, {KVP + layer*KVP_L}
        s_add_u32 s{T+1}, s{T+1}, {ZP + layer*ZP_L}
        buffer_store_dwordx4 {vr(V_SEN,4)}, v{t0}, s[{SWS}:{SWS+3}], s{T} offen sc1
        buffer_store_dword v{V_SEN}, v{t0+1}, s[{SWS}:{SWS+3}], s{T+1} offen sc1""")
    def clear_xb(g, t0):
        g.a(f"""v_mov_b64 {vr(V_SEN,2)}, -1
        v_mov_b64 {vr(V_SEN+2,2)}, -1
        v_lshlrev_b32 v{t0}, 4, v0
        s_lshl_b32 s{T}, s2, 14
        s_lshl_b32 s{T+1}, s{S_W}, 12
        s_add_u32 s{T}, s{T}, s{T+1}
        s_add_u32 s{T}, s{T}, {XB}""")
        for mb in range(4): g.a(f"buffer_store_dwordx4 {vr(V_SEN,4)}, v{t0}, s[{SWS}:{SWS+3}], s{T} offen offset:{1024*mb} sc1")
    def c_epi_g1(g):
        a = g.a
        acc = lambda nb, mb: ACC + 4*(nb*4 + mb)
        R, NM, CSN, RQ, CSQ_ = 16, 32, 48, 56, 64
        PK, VV, PQ, KV, U, ONE = 72, 88, 208, 224, 104, 248
        eps2 = f"s[{S_C+2}:{S_C+3}]"
        a(f"""s_mov_b32 s{S_C}, {f2u(LOG2E):#x}
        s_mov_b32 s{S_C+1}, {f2u(-EPS*LOG2E):#x}
        s_mov_b32 s{S_C+2}, {f2u(EPS):#x}
        s_mov_b32 s{S_C+3}, 0
        v_and_b32 v{U}, 48, v0
        v_and_b32 v{U+1}, 15, v0
        v_lshlrev_b32 v{U+1}, 2, v{U+1}
        s_lshl_b32 s{T}, s{S_WM}, 8
        s_add_u32 s{T}, s{T}, {L_RSTD}
        s_lshl_b32 s{T+1}, s{S_WN}, 7
        s_add_u32 s{T+1}, s{T+1}, {L_CSQ}
        v_add_u32 v{U+2}, s{T}, v{U}
        v_add_u32 v{U+3}, s{T+1}, v{U+1}
        v_add_u32 v{U+4}, s{T}, v{U+1}
        v_add_u32 v{U+5}, s{T+1}, v{U}
        v_mov_b32 v{U+6}, {L_MODE}""")
        for i in range(4): a(f"ds_read_b32 v{CSN+2*i}, v{U+3} offset:{256*(1 + i//2) + 64*(i%2)}")
        for mb in range(4):
            a(f"ds_read_b128 {vr(NM+4*mb,4)}, v{U+2} offset:{512 + 64*mb}\nds_read_b128 {vr(R+4*mb,4)}, v{U+2} offset:{64*mb}")
        a(f"ds_read_b32 v{U+7}, v{U+6}")
        a("s_waitcnt vmcnt(0) lgkmcnt(0)")
        for mb in range(4): a(f"ds_read2_b32 {vr(RQ+2*mb,2)}, v{U+4} offset0:{16*mb} offset1:{128 + 16*mb}")
        for b in range(2): a(f"ds_read_b128 {vr(CSQ_+4*b,4)}, v{U+5} offset:{64*b}")
        a(f"v_readfirstlane_b32 s{S_MODE}, v{U+7}")
        for i in range(4): a(f"v_mov_b32 v{ONE+i}, 0x3f803f80")
        for mb in range(4):
            st = []
            for b in range(2):
                for h in range(2):
                    t = acc(2+b, mb) + 2*h; u = U + 2*(2*b + h)
                    st.append([f"v_pk_fma_f32 {vr(u,2)}, {vr(NM+4*mb+2*h,2)}, {vr(CSN+2*b,2)}, {eps2} op_sel_hi:[1,0,0]",
                               f"v_pk_fma_f32 {vr(t,2)}, {vr(t,2)}, {vr(R+4*mb+2*h,2)}, {vr(u,2)}"]
                              + g.phi(t, u, PK + 8*b + 2*mb + h))
            g.zipemit(st)
            st = []
            for b in range(2):
                for h in range(2):
                    t = acc(4+b, mb) + 2*h; u = U + 2*(2*b + h)
                    st.append([f"v_pk_mul_f32 {vr(u,2)}, {vr(NM+4*mb+2*h,2)}, {vr(CSN+4+2*b,2)} op_sel_hi:[1,0]",
                               f"v_pk_fma_f32 {vr(t,2)}, {vr(t,2)}, {vr(R+4*mb+2*h,2)}, {vr(u,2)}",
                               f"v_cvt_pk_bf16_f32 v{VV + 8*b + 2*mb + h}, v{t}, v{t+1}"])
            g.zipemit(st)
            if mb % 2 == 1:
                u2 = mb // 2
                for eb in range(3):
                    for db in range(2):
                        d = vr(KV + 8*eb + 4*db, 4)
                        B = vr(VV + 8*eb + 4*u2, 4) if eb < 2 else vr(ONE, 4)
                        a(f"v_mfma_f32_16x16x32_bf16 {d}, {vr(PK + 8*db + 4*u2, 4)}, {B}, {'0' if u2 == 0 else d}")
        W1 = a.uid("kvw"); W2 = a.uid("kvx")
        a(f"""s_mul_i32 s{T}, s{S_W}, 3072
        s_add_u32 s{T}, s{T}, {L_XCH}
        s_xor_b32 s{T+1}, s{S_W}, 2
        s_mul_i32 s{T+1}, s{T+1}, 3072
        s_add_u32 s{T+1}, s{T+1}, {L_XCH}
        v_lshl_add_u32 v{U}, v0, 4, s{T}
        v_lshl_add_u32 v{U+1}, v0, 4, s{T+1}
        s_lshl_b32 s{T}, s{S_L}, 20
        s_lshl_b32 s{T+1}, s{S_CB}, 16
        s_add_u32 s{T}, s{T}, s{T+1}
        s_lshl_b32 s{T+1}, s{S_WN}, 15
        s_add_u32 s{T}, s{T}, s{T+1}
        s_lshl_b32 s{T+1}, s{S_WM}, 14
        s_add_u32 s{T}, s{T}, s{T+1}
        s_lshl_b32 s{T+1}, s{S_RB}, 10
        s_add_u32 s{T}, s{T}, s{T+1}
        s_lshr_b32 s{T+1}, s{T}, 4
        s_add_u32 s{T}, s{T}, {KVP}
        s_add_u32 s{T+1}, s{T+1}, {ZP}
        v_lshlrev_b32 v{U+2}, 4, v0
        v_and_b32 v{U+3}, 15, v0
        v_cmp_eq_u32 vcc, 0, v{U+3}
        v_mov_b32 v{U+3}, {WSZ}
        v_cndmask_b32 v{U+3}, v{U+3}, v0, vcc
        s_cmp_eq_u32 s{S_WM}, 0
        s_cbranch_scc0 {W1}""")
        for wm in range(2):
            if wm == 1: a.label(W1)
            keep = [KV + 8*wm, KV + 8*wm + 4, KV + 16 + 4*wm]
            send = [KV + 8*(1-wm), KV + 8*(1-wm) + 4, KV + 16 + 4*(1-wm)]
            for i in range(3): a(f"ds_write_b128 v{U}, {vr(send[i],4)} offset:{1024*i}")
            a("s_waitcnt lgkmcnt(0)\ns_barrier")
            for i in range(3): a(f"ds_read_b128 {vr(R+4*i,4)}, v{U+1} offset:{1024*i}")
            for i in range(3):
                a(f"s_waitcnt lgkmcnt({2-i})")
                for h in range(2): a(f"v_pk_add_f32 {vr(R+4*i+2*h,2)}, {vr(R+4*i+2*h,2)}, {vr(keep[i]+2*h,2)}")
            if wm == 0: a(f"s_branch {W2}")
        a.label(W2)
        for d in range(4): a(f"v_cvt_pk_bf16_f32 v{NM+d}, v{R+2*d}, v{R+2*d+1}")
        a(f"""buffer_store_dwordx4 {vr(NM,4)}, v{U+2}, s[{SWS}:{SWS+3}], s{T} offen sc1
        buffer_store_dwordx4 {vr(R+8,4)}, v{U+3}, s[{SWS}:{SWS+3}], s{T+1} offen sc1""")
        g.stamp("c", "kvst")
        for mb in range(4):
            st = []
            for b in range(2):
                for h in range(2):
                    t = acc(b, mb) + 2*h; u = U + 2*(2*b + h)
                    st.append([f"v_pk_fma_f32 {vr(u,2)}, {vr(CSQ_+4*b+2*h,2)}, {vr(RQ+2*mb,2)}, {eps2} op_sel:[0,1,0] op_sel_hi:[1,1,0]",
                               f"v_pk_fma_f32 {vr(t,2)}, {vr(t,2)}, {vr(RQ+2*mb,2)}, {vr(u,2)} op_sel_hi:[1,0,1]"]
                              + g.phi(t, u, PQ + 4*mb + 2*b + h))
            g.zipemit(st)
        if g.ctrickle: g.job_trickle(g.ctrickle, T+4, T+6)
        a(f"""s_lshl_b32 s{T}, s{S_WN}, 11
        s_add_u32 s{T}, s{T}, {L_KVF}
        v_lshl_add_u32 v{U+1}, v0, 4, s{T}
        s_lshl_b32 s{T}, s{S_WN}, 10
        s_add_u32 s{T}, s{T}, {L_ZF}
        v_lshl_add_u32 v{U+2}, v0, 4, s{T}
        s_mul_i32 s{T}, s{S_RB}, {H_RB}
        s_and_b32 s{T+1}, s{S_CB}, 8
        s_lshl_b32 s{T+1}, s{T+1}, 1
        s_add_u32 s{T+1}, s{T+1}, s{S_CB}
        s_lshl_b32 s{T+1}, s{T+1}, {LT}
        s_add_u32 s{T}, s{T}, s{T+1}
        s_add_u32 s{T+2}, s{T}, {HB}
        s_add_u32 s{T+3}, s{T+2}, 4096""")
        g.stamp("c", "kvflag")
        if g.ctrickle: a("s_waitcnt lgkmcnt(0)")
        a(f"""s_barrier
        ds_read_b128 {vr(R+8,4)}, v{U+2}
        ds_read_b128 {vr(R,4)}, v{U+1}
        ds_read_b128 {vr(R+4,4)}, v{U+1} offset:1024""")
        g.stamp("c", "bk2")
        a("s_waitcnt lgkmcnt(2)")
        for mb in range(4): a(f"v_mfma_f32_16x16x32_bf16 {vr(acc(2,mb),4)}, {vr(R+8,4)}, {vr(PQ+4*mb,4)}, 0")
        a("s_waitcnt lgkmcnt(0)")
        for mb in range(4):
            for eb in range(2): a(f"v_mfma_f32_16x16x32_bf16 {vr(acc(eb,mb),4)}, {vr(R+4*eb,4)}, {vr(PQ+4*mb,4)}, 0")
        for mb in range(4): a(f"v_add_f32 v{acc(2,mb)}, s{S_C+2}, v{acc(2,mb)}")
        for mb in range(4): a(f"v_rcp_f32 v{acc(2,mb)}, v{acc(2,mb)}")
        ln = []
        for mb in range(4):
            for eb in range(2):
                for h in range(2):
                    t = acc(eb, mb) + 2*h
                    ln.append(f"v_pk_mul_f32 {vr(t,2)}, {vr(t,2)}, {vr(acc(2,mb),2)} op_sel_hi:[1,0]")
            for eb in range(2):
                for h in range(2):
                    t = acc(eb, mb) + 2*h
                    ln.append(f"v_cvt_pk_bf16_f32 v{acc(3,mb) + 2*eb + h}, v{t}, v{t+1}")
            ln.append(f"buffer_store_dwordx4 {vr(acc(3,mb),4)}, v{V_FS}, s[{SWS}:{SWS+3}], s{T+2+mb//2} offen offset:{2048*(mb%2)}")
        for l in ln: a(l + (" sc1" if l.startswith("buffer") else ""))
        g.signal_row(1, V_HK)
        if not g.opt.get("odef", 0): g.remote_flag(V_HK)
        g.stamp("c", "osig")

    def c_epi_g24(g):
        a = g.a
        acc = lambda nb, mb: ACC + 4*(nb*4 + mb)
        RS, BI, U, XO, B2 = 16, 32, 40, 80, 96
        NB_ = a.uid("nob"); PL = a.uid("xpl"); PC = a.uid("xpc")
        for mb in range(4):
            for b in range(2): a(f"ds_read_b64 {vr(RS+4*mb+2*b,2)}, v{V_RES+b} offset:{2048*mb}")
        a(f"""s_lshl_b32 s{T+1}, s{S_RB}, {LT+4}
        s_lshl_b32 s{T+2}, s{S_CB}, {LT}
        s_add_u32 s{T+2}, s{T+2}, s{T+1}
        s_add_u32 s{T+2}, s{T+2}, {XA}
        s_add_u32 s{T+3}, s{T+2}, 4096
        s_mul_i32 s{T+9}, s{S_G4}, 6
        s_add_u32 s{T+9}, s{T+9}, 3
        s_and_b32 s{T+4}, s{S_G4}, s{S_L}
        s_cselect_b32 s{T}, {WSZ}, 0
        v_add_u32 v{U+2}, s{T}, v{V_FS}
        s_cmp_eq_u32 s{S_G4}, 0
        s_cbranch_scc1 {NB_}
        s_lshl_b32 s{T}, s{S_WN}, 7
        s_add_u32 s{T}, s{T}, {L_B2}
        v_and_b32 v{U+1}, 48, v0
        v_add_u32 v{U+1}, s{T}, v{U+1}
        s_mov_b32 s{S_SPIN}, {SPIN}""")
        for b in range(2): a(f"ds_read_b128 {vr(B2+4*b,4)}, v{U+1} offset:{64*b}")
        g.cold.append(f"{PL}:\n" + "\n".join(g.xb_loads()) + f"\ns_branch {PC}")
        a.label(PC)
        a("s_waitcnt vmcnt(0)")
        for mb in range(4):
            p0 = V_PP + 4*mb
            if mb == 0: a(f"v_max3_u32 v{U+3}, v{p0}, v{p0+1}, v{p0+2}\nv_max_u32 v{U+3}, v{U+3}, v{p0+3}")
            else: a(f"v_max3_u32 v{U+3}, v{U+3}, v{p0}, v{p0+1}\nv_max3_u32 v{U+3}, v{U+3}, v{p0+2}, v{p0+3}")
        a(f"v_cmp_eq_u32 vcc, -1, v{U+3}")
        g.retry(PL)
        g.stamp("c", "g4pflag")
        a("s_waitcnt lgkmcnt(0)")
        def unp(src, mb, tail):
            st = []
            for b in range(2):
                for h in range(2):
                    t = acc(b, mb) + 2*h; u = BI + 2*(2*b+h); r = src + 4*mb + 2*b + h
                    st.append([f"v_lshlrev_b32 v{u}, 16, v{r}", f"v_and_b32 v{u+1}, 0xffff0000, v{r}", f"v_pk_add_f32 {vr(t,2)}, {vr(t,2)}, {vr(u,2)}", tail(t, b, h)])
            g.zipemit(st)
        for mb in range(4): unp(V_PP, mb, lambda t, b, h: f"v_pk_add_f32 {vr(t,2)}, {vr(t,2)}, {vr(B2+4*b+2*h,2)}")
        a.label(NB_)
        for mb in range(4):
            a(f"s_waitcnt lgkmcnt(6)")
            unp(RS, mb, lambda t, b, h: f"v_cvt_pk_bf16_f32 v{XO+4*mb+2*b+h}, v{t}, v{t+1}")
            a(f"buffer_store_dwordx4 {vr(XO+4*mb,4)}, v{U+2}, s[{SWS}:{SWS+3}], s{T+2+mb//2} offen offset:{2048*(mb%2)} sc1")
            for b in range(2): a(f"ds_write_b64 v{V_RES+b}, {vr(XO+4*mb+2*b,2)} offset:{2048*mb}")
        a(f"s_cmp_lg_u32 s{T+4}, 0\ns_cbranch_scc1 L_c_fin")
        df = g.opt.get("defer", 1)
        g.signal_row(f"s{T+9}", V_HK)
        if not df: g.remote_flag(V_HK)
        g.stamp("c", "xsig", True)
        a("s_waitcnt lgkmcnt(0)\ns_barrier")
        a(f"s_lshl_b32 s{T+10}, s{S_L}, 1\ns_add_u32 s{T+10}, s{T+10}, s{S_G4}\ns_add_u32 s{T+10}, s{T+10}, 1")
        g.job_stats(f"s{T+10}", store=not df)

    def c_epi_g3(g):
        a = g.a
        acc = lambda nb, mb: ACC + 4*(nb*4 + mb)
        CS, B1, RQ, U, HO = 16, 44, 72, 80, 224
        c = f"s[{S_C}:{S_C+1}]"
        a(f"""s_mov_b32 s{S_C}, {f2u(GC2):#x}
        s_mov_b32 s{S_C+1}, {f2u(GC1):#x}
        v_and_b32 v{U}, 48, v0
        v_and_b32 v{U+1}, 15, v0
        s_lshl_b32 s{T}, s{S_WM}, 8
        s_add_u32 s{T}, s{T}, {L_RSTD}
        v_lshl_add_u32 v{U+1}, v{U+1}, 2, s{T}
        s_lshl_b32 s{T+1}, s{S_WN}, 7
        s_add_u32 s{T+1}, s{T+1}, {L_CS1}
        v_add_u32 v{U+2}, s{T+1}, v{U}
        s_lshl_b32 s{T+1}, s{S_WN}, 6
        s_add_u32 s{T+1}, s{T+1}, {L_CS1 + 768}
        v_add_u32 v{U+3}, s{T+1}, v{U}""")
        for mb in range(4): a(f"ds_read2_b32 {vr(RQ+2*mb,2)}, v{U+1} offset0:{16*mb} offset1:{128 + 16*mb}")
        for nb in range(7):
            ad, off = (U+2, 256*(nb//2) + 64*(nb%2)) if nb < 6 else (U+3, 0)
            a(f"ds_read_b128 {vr(CS+4*nb,4)}, v{ad} offset:{off}\nds_read_b128 {vr(B1+4*nb,4)}, v{ad} offset:{off + L_B1 - L_CS1}")
            if nb == 3: a("s_waitcnt lgkmcnt(4)")
        a(f"""s_mul_i32 s{T}, s{S_RB}, {H_RB}
        s_add_u32 s{T}, s{T}, {HB}
        s_and_b32 s{T+1}, s{S_CB}, 7
        s_lshl_b32 s{T+1}, s{T+1}, {LT}
        s_add_u32 s{T}, s{T}, s{T+1}
        s_lshr_b32 s{T+1}, s{S_CB}, 3
        s_mul_i32 s{T+2}, s{T+1}, {24*TL}
        s_add_u32 s{T+2}, s{T+2}, s{T}
        s_add_u32 s{T+3}, s{T+2}, 4096
        s_mul_i32 s{T+4}, s{S_RB}, {H_RB}
        s_lshr_b32 s{T+1}, s{S_CB}, 1
        s_lshl_b32 s{T+1}, s{T+1}, {LT}
        s_add_u32 s{T+4}, s{T+4}, s{T+1}
        s_and_b32 s{T+1}, s{S_CB}, 1
        s_lshl_b32 s{T+1}, s{T+1}, {LK}
        s_add_u32 s{T+4}, s{T+4}, s{T+1}
        s_add_u32 s{T+4}, s{T+4}, {HB + 48*TL}
        s_mul_i32 s{T+1}, s{S_WN}, {KS - 8}
        s_sub_u32 s{T+4}, s{T+4}, s{T+1}
        s_add_u32 s{T+5}, s{T+4}, 4096""")
        def gelu(nb, mb, h, u, dst):
            t = acc(nb, mb) + 2*h
            return [f"v_pk_fma_f32 {vr(u,2)}, {vr(CS+4*nb+2*h,2)}, {vr(RQ+2*mb,2)}, {vr(B1+4*nb+2*h,2)} op_sel:[0,1,0] op_sel_hi:[1,1,1]",
                    f"v_pk_fma_f32 {vr(t,2)}, {vr(t,2)}, {vr(RQ+2*mb,2)}, {vr(u,2)} op_sel_hi:[1,0,1]",
                    f"v_pk_mul_f32 {vr(u,2)}, {vr(t,2)}, {vr(t,2)}",
                    f"v_pk_fma_f32 {vr(u,2)}, {vr(u,2)}, {c}, {c} op_sel:[0,0,1] op_sel_hi:[1,0,1]",
                    f"v_pk_mul_f32 {vr(u,2)}, {vr(u,2)}, {vr(t,2)}",
                    f"v_exp_f32 v{u}, v{u}\nv_exp_f32 v{u+1}, v{u+1}",
                    f"v_pk_add_f32 {vr(u,2)}, {vr(u,2)}, 1.0 op_sel_hi:[1,0]",
                    f"v_rcp_f32 v{u}, v{u}\nv_rcp_f32 v{u+1}, v{u+1}",
                    f"v_pk_mul_f32 {vr(t,2)}, {vr(t,2)}, {vr(u,2)}",
                    f"v_cvt_pk_bf16_f32 v{dst}, v{t}, v{t+1}"]
        k = 0
        a(f"s_and_b32 s{T+6}, s{S_CB}, 4")
        for t3 in (0, 1, 3, 2):
            if t3 == 1: a("s_waitcnt lgkmcnt(0)")
            if t3 == 3:
                for m2 in range(2):
                    o = HO + 4*(k % 4); k += 1
                    g.zipemit([gelu(6, 2*m2 + b, h, U + 4 + 2*(2*b+h), o + 2*b + h) for b in range(2) for h in range(2)])
                    for b in range(2):
                        a(f"buffer_store_dwordx2 {vr(o+2*b,2)}, v{V_FS}, s[{SWS}:{SWS+3}], s{T+4+m2} offen offset:{2048*b}")
                continue
            for mb in range(4):
                o = HO + 4*(k % 4); k += 1
                g.zipemit([gelu(2*t3 + b, mb, h, U + 4 + 2*(2*b+h), o + 2*b + h) for b in range(2) for h in range(2)])
                st = f"buffer_store_dwordx4 {vr(o,4)}, v{V_FS}, s[{SWS}:{SWS+3}], s{T+2+mb//2} offen offset:{2048*(mb%2)}"
                if t3 == 2: g.stores_by_mode([st], T+6, 4)
                else: a(st)
                if (t3, mb) == (1, g.opt.get("h0sig", 1)):
                    g.signal_row(5, V_HK, mb + 1)
                    g.stamp("c", "h0sig")
            if t3 < 2: a(f"s_add_u32 s{T+2}, s{T+2}, {8*TL}\ns_add_u32 s{T+3}, s{T+3}, {8*TL}")
        g.stamp("c", "hsig")

    def compute(g):
        a = g.a; t0, t1, t2, t3 = 16, 17, 18, 19
        a(".p2align 3")
        a.label("L_compute")
        g.stamp("c", "start")
        a(f"""s_getpc_b64 s[{T}:{T+1}]
        L_pc:
        s_sub_u32 s{T}, s{T}, L_pc-{NAME}
        s_subb_u32 s{T+1}, s{T+1}, 0
        s_lshr_b32 s{T+2}, s2, 3
        s_lshl_b32 s{T+2}, s{T+2}, 2
        s_add_u32 s{T+2}, s{T+2}, s{S_W}
        s_lshl_b32 s{T+2}, s{T+2}, 9
        v_and_b32 v{t0}, 3, v0
        v_lshl_add_u32 v{t0}, v{t0}, 7, s{T+2}
        v_min_u32 v{t0}, L_end-{NAME}, v{t0}
        global_load_dword v{V_HK}, v{t0}, s[{T}:{T+1}]""")
        a(f"""s_lshr_b32 s{S_WM}, s{S_W}, 1
        s_and_b32 s{S_WN}, s{S_W}, 1
        v_and_b32 v{t0}, 15, v0
        v_lshrrev_b32 v{t1}, 4, v0
        v_lshrrev_b32 v{t2}, 1, v{t0}
        v_xor_b32 v{t3}, v{t2}, v{t1}
        v_lshlrev_b32 v{t3}, 4, v{t3}
        v_lshl_add_u32 v{t3}, v{t0}, 7, v{t3}
        s_lshl_b32 s{T}, s{S_WM}, 13
        v_add_u32 v{V_XA}, s{T}, v{t3}
        v_add_u32 v{V_XA}, {G1.x0}, v{V_XA}
        v_xor_b32 v{V_XA+1}, 64, v{V_XA}
        v_lshl_add_u32 v{V_XA0}, v0, 4, s{T}
        s_lshl_b32 s{T+1}, s{S_WN}, {LK}
        v_add_u32 v{V_FS}, s{T+1}, v{V_XA0}
        v_add_u32 v{V_RES}, {128 if SKIP else 0}, v{V_FS}
        v_cmp_gt_u32 vcc, 24, v0
        v_cndmask_b32 v{V_FS}, v{V_RES}, v{V_FS}, vcc
        s_lshl_b32 s{T+1}, s{S_WN}, 2
        v_lshrrev_b32 v{t3}, 5, v0
        v_add_u32 v{t3}, s{T+1}, v{t3}
        v_xor_b32 v{t3}, v{t3}, v{t2}
        v_lshlrev_b32 v{t3}, 4, v{t3}
        v_lshl_add_u32 v{t3}, v{t0}, 7, v{t3}
        v_and_b32 v{t2}, 1, v{t1}
        v_lshl_add_u32 v{t3}, v{t2}, 3, v{t3}
        s_add_u32 s{T}, s{T}, {RES}
        v_add_u32 v{V_RES}, s{T}, v{t3}
        v_xor_b32 v{V_RES+1}, 32, v{V_RES}
        v_bfe_u32 v{t0}, v0, 2, 2
        v_lshl_add_u32 v{t0}, v{t1}, 3, v{t0}
        v_bfe_u32 v{t2}, v0, 3, 2
        v_and_b32 v{t3}, 3, v0
        v_lshlrev_b32 v{t3}, 3, v{t3}
        s_lshl_b32 s{T}, s{S_WN}, 1
        v_xor_b32 v{V_WA0}, s{T}, v{t2}
        v_lshl_add_u32 v{V_WA0}, v{V_WA0}, 5, v{t3}
        v_lshl_add_u32 v{V_WA0}, v{t0}, 7, v{V_WA0}
        v_xor_b32 v{V_WA0+1}, 32, v{V_WA0}
        v_lshrrev_b32 v{t2}, 1, v{t2}
        v_xor_b32 v{t2}, s{S_WN}, v{t2}
        v_lshl_add_u32 v{t2}, v{t2}, 5, v{t3}
        v_lshl_add_u32 v{V_WA0+2}, v{t0}, 6, v{t2}
        v_cmp_eq_u32 vcc, 0, v0
        v_mov_b32 v{t0}, {WSZ}
        v_cndmask_b32 v{V_ONE}, v{t0}, 0, vcc
        s_lshl_b32 s{T}, s{S_RB}, 8
        s_lshl_b32 s{T+1}, s{S_CB}, 4
        s_add_u32 s{T}, s{T}, s{T+1}
        s_lshl_b32 s{T+1}, s{S_W}, 2
        s_add_u32 s{T}, s{T}, s{T+1}
        v_add_u32 v{V_FLG}, s{T}, v{V_ONE}""")
        a(f"""v_lshrrev_b32 v{t0}, 3, v0
        s_lshl_b32 s{T}, s{S_W}, 5
        v_add_u32 v{t0}, s{T}, v{t0}
        v_lshlrev_b32 v{t0}, 11, v{t0}
        v_lshrrev_b32 v{t1}, 4, v0
        v_and_b32 v{t2}, 7, v0
        v_xor_b32 v{t1}, v{t1}, v{t2}
        v_lshl_add_u32 v20, v{t1}, 4, v{t0}
        v_xor_b32 v21, 64, v20
        v_add_u32 v21, {8*2048 - 1024}, v21
        v_add_u32 v22, {16*2048 - 2048}, v20
        v_add_u32 v23, {16*2048 - 2048}, v21
        s_lshl_b32 s{T}, s{S_RB}, 18
        s_lshl_b32 s{T+1}, s{S_W}, 12
        s_add_u32 m0, s{T+1}, {RES}
        s_lshl_b32 s{T+2}, s{S_CB}, 7
        s_waitcnt lgkmcnt(0)""")
        g.srd(SX, P_X, 128*2048, T)
        for i in range(4): a(f"buffer_load_dwordx4 v{20+i}, s[{SX}:{SX+3}], s{T+2} offen offset:{1024*i} lds")
        a(f"""v_mov_b64 {vr(V_SEN,2)}, -1
        v_mov_b64 {vr(V_SEN+2,2)}, -1
        v_mov_b32 v{V_CS}, 0
        s_movk_i32 s{T+3}, {RXF}
        buffer_store_dword v{V_CS}, v{V_FLG}, s[{SWS}:{SWS+3}], 0 offen sc1
        buffer_store_dword v{V_CS}, v{V_FLG}, s[{SWS}:{SWS+3}], s{T+3} offen sc1
        v_lshlrev_b32 v{t1}, 2, v0
        s_lshl_b32 s{T}, s{S_CB}, 14
        s_lshl_b32 s{T+1}, s{S_RB}, 10
        s_add_u32 s{T}, s{T}, s{T+1}
        s_lshl_b32 s{T+2}, s{S_W}, 8
        s_add_u32 s{T}, s{T}, s{T+2}
        s_add_u32 s{T}, s{T}, {CSP + CSP_I}
        buffer_store_dword v{V_SEN}, v{t1}, s[{SWS}:{SWS+3}], s{T} offen sc1""")
        g.clear_kv(0, t0)
        g.boot_val()
        a("s_waitcnt vmcnt(5)")
        g.job_stats(0, store=False)
        a(f"v_mov_b32 v{V_HK}, 0")
        a(f"s_mov_b32 s{S_HOOK}, 2\ns_mov_b32 s{T+12}, {HOOKA}")
        g.stamp("c", "init")
        a.label("L_c_layer")
        g.c_g1()
        g.c_epi_g1()
        w8 = g.opt.get("w8", 1)
        a(f"s_mov_b32 s{S_G4}, 0\ns_mov_b32 s{S_LX}, {8192 if w8 else 32768}\ns_mov_b32 s{S_LW}, {24576 if w8 else 32768}")
        g.c_pre(G2, 8)
        if g.opt.get("odef", 0): g.remote_flag(V_HK)
        a.label("L_c_nb2")
        g.c_nb2()
        g.c_epi_g24()
        a(f"""s_cmp_eq_u32 s{S_G4}, 0
        s_cbranch_scc1 L_c_g3
        v_add_u32 v{V_XA}, {G1.x0}, v{V_XA0}
        v_add_u32 v{V_XA+1}, {G1.x0 + 1024}, v{V_XA0}
        s_mov_b32 s{S_L}, 1
        s_mov_b32 s{S_FB}, 16
        s_mov_b32 s{T+12}, 8
        s_branch L_c_layer""")
        a.label("L_c_g3")
        g.c_pre(G3, 8)
        if g.opt.get("defer", 1): g.deferred()
        g.c_loop(G3)
        a("s_waitcnt lgkmcnt(0)")
        g.stamp("c", "g3loop")
        g.c_epi_g3()
        a(f"s_mov_b32 s{S_G4}, 1\ns_mov_b32 s{S_LX}, 32768\ns_mov_b32 s{S_LW}, 32768")
        g.c_g4a()
        g.stamp("c", "g4send")
        a("s_branch L_c_nb2")
        a.label("L_c_fin")
        g.finish("c")

    def build(g):
        g.entry(); g.loader(); g.compute()
        for c in g.cold: g.a(c)
        g.a.label("L_end"); g.a("s_endpgm")
        rep = []
        lines = fixup.fix_hazards(g.a.lines, rep)
        lines = fixup.fix_align(lines)
        g.haz = rep
        hdr = open("cdna_kernels/" + NAME[:-7] + ".s.ref").read().split("; Override")[0]
        out = hdr + f"; @launch grid=(256,1,1) block=(512,1,1) lds={LDS_BYTES}\n"
        out += '.amdgcn_target "amdgcn-amd-amdhsa--gfx950"\n.text\n' + kernel_header(NAME) + "\n".join(lines) + "\n"
        out += '.fill 64, 4, 0xBF800000\n.section .rodata,"a"\n.p2align 6\n' + kernel_desc(NAME, 256, 256, 102)
        return out

V_FS, V_RES, V_XA, V_WA, V_XA0, V_WA0, V_ONE, V_FLG = 1, 2, 4, 6, 9, 10, 13, 14
XF, WF, ACC = 16, 80, 112
V_CS, V_SS, V_HK, V_SEN, V_L16, V_PP = 252, 253, 254, 244, 15, 192
LV_X, LV_W, LV_T = 4, 8, 16
LV_KN, LV_KF, LV_KH, LV_CH, LV_CHH, LV_TRF, LV_TRH, LV_DUM, LV_L4, LV_L16, LV_T4, LV_GA, LV_PA, LV_PV = range(24, 38)

if __name__ == "__main__":
    import argparse, json
    ap = argparse.ArgumentParser(); ap.add_argument("out"); ap.add_argument("--stamps", action="store_true"); ap.add_argument("--slow", action="store_true"); ap.add_argument("--opt", default="{}")
    ar_ = ap.parse_args()
    g = Gen(stamps=ar_.stamps, force_slow=ar_.slow, opt=eval(ar_.opt))
    txt = g.build()
    open(ar_.out, "w").write(txt)
    json.dump(g.stn, open(ar_.out + ".stamps", "w"))
    print("hazard nops:", len(g.haz))
    for h in sorted(set(g.haz)):
        if " lds" not in h[1]: print("  ", h)
```

```python
import sys, struct, math, os
from asmlib import *
import fixup

NAME = "interleave_layers__linear_attn_block__dense_activation_gelu__prompt_kernel"
MB_ = 1 << 20
ROWF = 0; RXF = 4096
STAT = 1*MB_; STAT_I = 256*1024
CSP = 2*MB_; CSP_I = 256*1024
KVP = 3*MB_; KVP_L = 1*MB_
ZP = 5*MB_; ZP_L = 64*1024
XA = 8*MB_
XB = 16*MB_
SKIP = int(os.environ.get('SKIP', 1))
LT = 15 if SKIP else 14; TL = 1 << LT; LK = 14 if SKIP else 10; KS = 1 << LK
HB = 32*MB_; H_RB = 56*TL
TS = 128*MB_
WSZ = 256*MB_
RES = 135168
L_RSTD = RES + 16384; L_NMR = L_RSTD + 512
L_CSQ = L_NMR + 512; L_CS1 = L_CSQ + 1024; L_B1 = L_CS1 + 1024
L_B2 = L_B1 + 1024
L_MODE = L_B2 + 256
L_KVF = L_MODE + 64; L_ZF = L_KVF + 4096
LDS_BYTES = L_ZF + 2048
L_XCH = 16384
assert LDS_BYTES <= 163840
XSZ = 16384
def f2u(x): return struct.unpack("<I", struct.pack("<f", x))[0]
LOG2E = 1.4426950408889634
EPS = 1e-6
GC1 = -2.0*math.sqrt(2.0/math.pi)*LOG2E
GC2 = GC1*0.044715
SPIN = 1 << 16
HOOKA = 1

S_RB, S_CB, S_XCD, S_W, S_L = 3, 4, 5, 6, 7
SX, SW, SWS, SM = 8, 12, 16, 20
P_X, P_WQKV, P_WO, P_W1, P_B1, P_W2, P_B2, P_OUT, P_DBG = 24, 26, 28, 32, 34, 36, 38, 40, 42
S_MODE, S_WM, S_WN, S_FB = 44, 45, 46, 47
T = 48
S_KX, S_KW, S_LX, S_LW, S_LH, S_LINE, S_CNT, S_SLOT, S_XSTR = 64, 65, 66, 67, 68, 69, 70, 71, 72
S_DLX, S_DLW = 73, 74
S_MASK = 76
S_PT = 78
S_COL = 80
S_TGT, S_SPIN, S_G4, S_BOOT = 84, 85, 86, 87
S_HOOK, S_ISS, S_JH = 75, 98, 99
S_TAB, S_J2, S_K24 = 100, 62, 63
S_C = 88
S_ST = 96
S_PFR, S_PFH, S_PFA, S_PFD = 88, 89, 90, 94
VST = 255

class Ph:
    def __init__(s, name, subt, NST, n, ldb, swapped):
        s.name, s.subt, s.NST, s.n, s.ldb, s.swapped = name, subt, NST, n, ldb, swapped
        s.woff = []; o = 0
        for w in subt: s.woff.append(o); o += 64*w
        if NST == 3: s.w0, s.wp, s.x0, s.xp = 0, 28672, 86016, 16384
        else: s.w0, s.wp, s.x0, s.xp = 0, 32768, 16384, 32768
        s.PW = sum(2 if w == 128 else 1 for w in subt); s.P = 4 + s.PW
        s.nblk = []
        for t, w in enumerate(subt):
            s.nblk += [(0, s.woff[t], w), (1, s.woff[t], w)] if w == 128 else [(2, s.woff[t], w)]
        s.NB = len(s.nblk)
G1 = Ph("g1", [128]*3, 3, 16, 6144, [True]*2 + [False]*4)
G3 = Ph("g3", [128]*3 + [64], 3, 16, 7168, [True]*7)
G2 = Ph("g2", [128], 4, 16, 2048, [True]*2)
G4 = Ph("g4", [128]*2, 4, 32, 2048, [True]*4)
def nsub(p, i): return 1 if (p is G4 and i >= 24) else len(p.subt)

WPTR = {G1: P_WQKV, G2: P_WO, G3: P_W1, G4: P_W2}
PFD = {G1: 2, G2: 3, G3: 2, G4: 3}

class Gen:
    def __init__(g, stamps=False, force_slow=False, opt=None):
        g.opt = opt or {}; g.cold = []
        g.a = Asm(); g.stamps = stamps; g.force_slow = force_slow
        g.nst = {"c": 0, "l": 0}; g.stn = {"c": [], "l": []}
    def stamp(g, role, name, g24=False):
        if not g.stamps: return
        if g.opt.get("minst") and not (name in ("start", "end") or (role == "c" and (name.endswith("b0") or name.endswith("loop")))): return
        k = g.nst[role]; g.nst[role] += 2 if g24 else 1; assert g.nst[role] <= 32
        g.stn[role] += ["g2" + name, "g4" + name] if g24 else [name]
        g.a(f"""s_memrealtime s[{S_ST}:{S_ST+1}]
        s_lshl_b32 m0, s{S_L}, 5
        s_add_u32 m0, m0, {k}
        {f"s_add_u32 m0, m0, s{S_G4}" if g24 else ""}
        s_waitcnt lgkmcnt(0)
        v_writelane_b32 v{VST}, s{S_ST}, m0""")
    def srd(g, d, ptr, size, off_s=None):
        a = g.a
        if off_s is None: a(f"s_mov_b32 s{d}, s{ptr}\ns_mov_b32 s{d+1}, s{ptr+1}")
        else: a(f"s_add_u32 s{d}, s{ptr}, s{off_s}\ns_addc_u32 s{d+1}, s{ptr+1}, 0")
        a(f"s_mov_b32 s{d+2}, {size}\ns_mov_b32 s{d+3}, 0x20000")
    def poll(g, voff, soff, vt, srd=SWS, first_done=False, andmask=None, acquire=True):
        a = g.a; L = a.uid("poll"); C = a.uid("pollc"); D = a.uid("polld")
        a(f"s_mov_b32 s{S_SPIN}, {SPIN}")
        if first_done: a(f"s_branch {C}")
        a.label(L)
        a(f"buffer_load_dword v{vt}, v{voff}, s[{srd}:{srd+3}], {soff} offen sc1\ns_waitcnt vmcnt(0)")
        a.label(C)
        if andmask is not None:
            a(f"v_and_b32 v{vt+1}, {andmask}, v{vt}\nv_cmp_le_u32 vcc, s{S_TGT}, v{vt+1}")
        else:
            a(f"v_cmp_le_u32 vcc, s{S_TGT}, v{vt}")
        a(f"""s_andn2_b64 s[{S_PT}:{S_PT+1}], s[{S_MASK}:{S_MASK+1}], vcc
        s_cbranch_scc0 {D}
        s_sub_u32 s{S_SPIN}, s{S_SPIN}, 1
        s_cbranch_scc0 {L}""")
        a.label(D)
        if acquire:
            E = a.uid("polle")
            a(f"s_cmp_eq_u32 s{S_MODE}, 0\ns_cbranch_scc1 {E}\nbuffer_inv sc1\ns_waitcnt vmcnt(0)")
            a.label(E)
    def signal_row(g, code, vt, cnt=0):
        a = g.a; S = a.uid("sigs"); D = a.uid("sigd")
        a(f"""s_add_u32 s{T}, s{S_FB}, {code}
        v_mov_b32 v{vt}, s{T}
        s_cmp_eq_u32 s{S_MODE}, 0
        s_waitcnt vmcnt({cnt})
        s_cbranch_scc0 {S}
        buffer_store_dword v{vt}, v{V_FLG}, s[{SWS}:{SWS+3}], 0 offen""")
        a.label(D)
        g.cold.append(f"""{S}:
        s_waitcnt vmcnt(0)
        buffer_wbl2 sc1
        s_waitcnt vmcnt(0)
        buffer_store_dword v{vt}, v{V_FLG}, s[{SWS}:{SWS+3}], 0 offen sc1
        s_branch {D}""")
    def stores_by_mode(g, lines, sreg, val):
        a = g.a; S = a.uid("sms"); D = a.uid("smd")
        a(f"s_cmp_eq_u32 s{sreg}, {val}\ns_cbranch_scc0 {S}")
        for l in lines: a(l)
        a.label(D)
        g.cold.append(f"{S}:\n" + "\n".join(l + (" sc1" if l.startswith("buffer_store") else "") for l in lines) + f"\ns_branch {D}")
    def retry(g, L):
        a = g.a; D = a.uid("rtd")
        a(f"s_cbranch_vccz {D}\ns_sub_u32 s{S_SPIN}, s{S_SPIN}, 1\ns_cbranch_scc0 {L}")
        a.label(D)

    def entry(g):
        a = g.a
        if g.stamps: a("s_memrealtime s[92:93]")
        a(f"""s_cmp_ge_u32 s2, 256
        s_cbranch_scc1 L_end
        s_load_dwordx16 s[24:39], s[0:1], 0
        s_load_dwordx4 s[40:43], s[0:1], 64
        s_load_dwordx2 s[{SWS}:{SWS+1}], s[0:1], 80
        v_lshrrev_b32 v1, 6, v0
        v_and_b32 v0, 63, v0
        v_readfirstlane_b32 s{S_W}, v1
        s_and_b32 s{S_XCD}, s2, 7
        s_lshr_b32 s{S_CB}, s2, 5
        s_and_b32 s{T}, s2, 1
        s_lshl_b32 s{T}, s{T}, 3
        s_add_u32 s{S_CB}, s{S_CB}, s{T}
        s_bfe_u32 s{S_RB}, s2, 0x20003
        s_and_b32 s{T}, s2, 6
        s_lshl_b32 s{T}, s{T}, 1
        s_add_u32 s{S_RB}, s{S_RB}, s{T}
        s_mov_b32 s{S_L}, 0
        s_mov_b32 s{S_FB}, 0
        s_mov_b32 s{S_MODE}, 1
        s_mov_b32 s{SWS+2}, {WSZ}
        s_mov_b32 s{SWS+3}, 0x20000
        v_mov_b32 v{VST}, 0
        s_cmp_ge_u32 s{S_W}, 4
        s_cbranch_scc0 L_compute
        s_sub_u32 s{S_W}, s{S_W}, 4""")

    def finish(g, role):
        a = g.a
        wv = 0 if role == "c" else 4
        a(f"""s_lshl_b32 s{T}, s{S_RB}, 18
        s_lshl_b32 s{T+1}, s{S_CB}, 7
        s_add_u32 s{T+1}, s{T+1}, s{T}
        s_add_u32 s{T+2}, s{S_W}, {wv}
        s_lshl_b32 s{T+3}, s{T+2}, 15
        s_add_u32 s{T+1}, s{T+1}, s{T+3}
        s_lshl_b32 s{T+2}, s{T+2}, 11
        s_add_u32 s{T+2}, s{T+2}, {RES}""")
        g.srd(SM, P_OUT, 2048*2048)
        a(f"""v_lshrrev_b32 v20, 3, v0
        v_and_b32 v21, 7, v0
        v_lshlrev_b32 v22, 11, v20
        v_lshl_add_u32 v22, v21, 4, v22
        v_lshrrev_b32 v23, 4, v0
        v_xor_b32 v21, v21, v23
        v_lshlrev_b32 v21, 4, v21
        v_lshl_add_u32 v21, v20, 7, v21
        v_add_u32 v21, s{T+2}, v21
        v_xor_b32 v20, 64, v21
        v_add_u32 v23, 16384, v22
        s_waitcnt lgkmcnt(0)
        s_barrier
        ds_read_b128 v[24:27], v21
        ds_read_b128 v[28:31], v20 offset:1024
        s_waitcnt lgkmcnt(1)
        buffer_store_dwordx4 v[24:27], v22, s[{SM}:{SM+3}], s{T+1} offen {g.opt.get("ofl", "")}
        s_waitcnt lgkmcnt(0)
        buffer_store_dwordx4 v[28:31], v23, s[{SM}:{SM+3}], s{T+1} offen {g.opt.get("ofl", "")}""")
        if g.stamps:
            a("s_waitcnt vmcnt(0)")
            g.stamp(role, "end")
            if g.opt.get("echo") and role == "c":
                (l0, n0), (l1, n1), k = g.opt["echo"]
                E = a.uid("echo")
                a(f"""v_readlane_b32 s{T+4}, v{VST}, {32*l0 + g.stn['c'].index(n0)}
                v_readlane_b32 s{T+5}, v{VST}, {32*l1 + g.stn['c'].index(n1)}
                s_nop 3
                s_sub_u32 s{T+4}, s{T+5}, s{T+4}
                s_mul_i32 s{T+4}, s{T+4}, {k}
                s_min_u32 s{T+4}, s{T+4}, 20000
                s_mov_b32 s{T+5}, s{S_ST}
                {E}:
                s_memrealtime s[{S_ST}:{S_ST+1}]
                s_waitcnt lgkmcnt(0)
                s_sub_u32 s{T+6}, s{S_ST}, s{T+5}
                s_cmp_lt_u32 s{T+6}, s{T+4}
                s_cbranch_scc1 {E}""")
            a(f"""s_lshl_b32 s{T}, s2, 3
            s_add_u32 s{T}, s{T}, s{S_W}
            s_add_u32 s{T}, s{T}, {wv}
            s_lshl_b32 s{T}, s{T}, 8
            s_add_u32 s{T}, s{T}, {TS}
            v_lshlrev_b32 v20, 2, v0
            buffer_store_dword v{VST}, v20, s[{SWS}:{SWS+3}], s{T} offen""")
        a("s_endpgm")

    def l_setup_w(g, p, natural=False):
        a = g.a; t0, t1, t2 = LV_T, LV_T+1, LV_T+2
        a(f"s_mov_b32 s{T+1}, {p.ldb}")
        krow = LV_KN if natural else LV_KF
        a(f"""v_mul_lo_u32 v{t0}, v{krow}, s{T+1}
        v_add_u32 v{t0}, v{t0}, v{LV_CH}
        v_xor_b32 v{t1}, 64, v{t0}
        v_add_u32 v{t1}, {(8 if natural else 4)*p.ldb - 1024}, v{t1}""")
        r = LV_W
        for t, w in enumerate(p.subt):
            if w == 128:
                a(f"v_add_u32 v{r}, s{S_COL+t}, v{t0}\nv_add_u32 v{r+1}, s{S_COL+t}, v{t1}"); r += 2
            else:
                a(f"v_mul_lo_u32 v{t2}, v{LV_KH}, s{T+1}\nv_add3_u32 v{r}, v{t2}, v{LV_CHH}, s{S_COL+t}"); r += 1
    def l_issue_x(g, p, i):
        a = g.a
        a(f"s_add_u32 m0, s{S_LX}, {p.x0 + (i % p.NST)*p.xp}")
        for k in range(4):
            a(f"buffer_load_dwordx4 v{LV_X+k}, s[{SX}:{SX+3}], s{S_KX} offen offset:{1024*k} sc1 lds")
        return 4
    def l_issue_w(g, p, i):
        a = g.a; r = LV_W
        for t, w in enumerate(p.subt[:nsub(p, i)]):
            wb = ((i % 8) >> 1)*p.wp + (i & 1)*8192 if (p is G2 and g.opt.get("w8", 1)) else p.w0 + (i % p.NST)*p.wp
            a(f"s_add_u32 m0, s{S_LW if w == 128 else S_LH}, {wb + p.woff[t]}")
            for q in range(2 if w == 128 else 1):
                a(f"buffer_load_dwordx4 v{r}, s[{SW}:{SW+3}], s{S_KW} offen offset:{1024*q} lds"); r += 1
        return r - LV_W
    def kline(g, p, d, i):
        a = g.a
        if p is not G4: a(f"s_bfe_u32 s{d}, s{S_TAB + i//8}, {(4 << 16) | (4*(i % 8)):#x}")
        elif i < 16:
            a(f"s_add_u32 s{d}, s{S_J2}, {i}\ns_and_b32 s{d}, s{d}, 7\ns_add_u32 s{d}, s{d}, s{S_K24}")
            if i & 8: a(f"s_add_u32 s{d}, s{d}, 8")
        else:
            a(f"s_add_u32 s{d}, s{S_J2}, {2*i}\ns_and_b32 s{d}, s{d}, 6")
            if 20 <= i < 24: return
            a(f"s_lshr_b32 s{d}, s{d}, 1")
            if i < 28: a(f"s_add_u32 s{d}, s{d}, s{S_K24}\ns_add_u32 s{d}, s{d}, {20 if i < 20 else 16}")
            else: a(f"s_sub_u32 s{d}, s{d}, s{S_K24}\ns_add_u32 s{d}, s{d}, 40")
    def wrow(g, p, d, i):
        a = g.a
        a(f"s_lshl_b32 s{d}, s{d}, 6")
        if p is G4 and 20 <= i < 24:
            a(f"s_and_b32 s{T+1}, s{S_CB}, 8\ns_lshl_b32 s{T+1}, s{T+1}, 2\ns_add_u32 s{d}, s{d}, s{T+1}\ns_add_u32 s{d}, s{d}, {48*64}")
    def l_line(g, p, i, x=True, w=True):
        a = g.a
        g.kline(p, S_LINE, i)
        virt = p is G4 and 20 <= i < 24
        if x:
            if p is G1: a(f"s_mul_i32 s{S_KX}, s{S_LINE}, s{S_XSTR}")
            elif p is G2: a(f"s_and_b32 s{T+1}, s{S_LINE}, 8\ns_lshl_b32 s{T+1}, s{T+1}, 1\ns_add_u32 s{S_KX}, s{S_LINE}, s{T+1}\ns_lshl_b32 s{S_KX}, s{S_KX}, {LT}")
            elif virt: a(f"s_and_b32 s{T+1}, s{S_CB}, 8\ns_add_u32 s{S_KX}, s{S_LINE}, s{T+1}\ns_lshl_b32 s{S_KX}, s{S_KX}, {LT-1}\ns_add_u32 s{S_KX}, s{S_KX}, {48*TL}")
            else: a(f"s_lshl_b32 s{S_KX}, s{S_LINE}, {LT}")
        if w:
            g.wrow(p, S_LINE, i)
            if virt: a(f"s_and_b32 s{T+1}, s{S_W}, 2\ns_lshl_b32 s{T+1}, s{T+1}, 4\ns_add_u32 s{S_LINE}, s{S_LINE}, s{T+1}")
            a(f"s_mul_i32 s{S_KW}, s{S_LINE}, {p.ldb}")
    def tab_first(g):
        g.a(f"""s_mov_b32 s{T}, 0x76543210
        s_mov_b32 s{T+1}, 0xfedcba98
        s_lshl_b32 s{T+4}, s{S_J2}, 3
        s_lshr_b64 s[{S_TAB}:{S_TAB+1}], s[{T}:{T+1}], s{T+4}
        s_sub_u32 s{T+4}, 64, s{T+4}
        s_lshl_b64 s[{T}:{T+1}], s[{T}:{T+1}], s{T+4}
        s_or_b64 s[{S_TAB}:{S_TAB+1}], s[{S_TAB}:{S_TAB+1}], s[{T}:{T+1}]
        s_and_b32 s{T}, s{S_RB}, 3
        s_mul_i32 s{T}, s{T}, 0x1111
        s_xor_b32 s{S_TAB}, s{S_TAB}, s{T}""")
    def tab_local(g):
        g.a(f"""s_mov_b32 s{T}, 0x76543210
        s_mov_b32 s{T+1}, 0x76543210
        s_lshl_b32 s{T+4}, s{S_J2}, 2
        s_lshr_b64 s[{T}:{T+1}], s[{T}:{T+1}], s{T+4}
        s_cmp_ge_u32 s{S_CB}, 8
        s_cselect_b32 s{T+1}, 0x88888888, 0
        s_or_b32 s{S_TAB}, s{T}, s{T+1}
        s_xor_b32 s{S_TAB+1}, s{S_TAB}, 0x88888888""")
    def l_cols(g, p):
        a = g.a
        if p is G1:
            a(f"s_lshl_b32 s{S_COL}, s{S_CB}, 7\ns_add_u32 s{S_COL+1}, s{S_COL}, 2048\ns_add_u32 s{S_COL+2}, s{S_COL}, 4096")
        elif p is G3:
            a(f"""s_and_b32 s{T}, s{S_CB}, 7
            s_lshl_b32 s{T}, s{T}, 7
            s_lshr_b32 s{T+1}, s{S_CB}, 3
            s_mul_i32 s{S_COL}, s{T+1}, 3072
            s_add_u32 s{S_COL}, s{S_COL}, s{T}
            s_add_u32 s{S_COL+1}, s{S_COL}, 1024
            s_add_u32 s{S_COL+2}, s{S_COL}, 2048
            s_lshl_b32 s{T+1}, s{T+1}, 6
            s_add_u32 s{S_COL+3}, s{T}, s{T+1}
            s_add_u32 s{S_COL+3}, s{S_COL+3}, 6144""")
        else:
            a(f"s_lshl_b32 s{S_COL}, s{S_CB}, 7\ns_xor_b32 s{S_COL+1}, s{S_COL}, 1024")
    def l_next_setup(g, p):
        g.srd(SW, WPTR[p], {G1: 1024*6144, G2: 1024*2048, G3: 1024*7168, G4: 3584*2048}[p])
        g.l_cols(p); g.l_setup_w(p)
    def l_xsrd(g, xbase, xrb):
        g.a(f"s_mul_i32 s{T}, s{S_RB}, {xrb}\ns_add_u32 s{T}, s{T}, {xbase}")
        g.srd(SX, SWS, xrb, T)
    def l_pf(g, p, i):
        a = g.a; wp = WPTR[p]
        g.kline(p, T, i); g.wrow(p, T, i)
        a(f"s_add_u32 s{T}, s{T}, s{S_PFR}")
        if p is G4 and 20 <= i < 24: a(f"s_and_b32 s{T+1}, s{S_PFR}, 32\ns_add_u32 s{T}, s{T}, s{T+1}")
        a(f"s_mul_i32 s{T}, s{T}, {p.ldb}\ns_add_u32 s{T}, s{T}, s{S_PFH}")
        if p is G3 or nsub(p, i) == 2:
            a(f"s_add_u32 s{S_PFA}, s{wp}, s{T}\ns_addc_u32 s{S_PFA+1}, s{wp+1}, 0")
            for o in ([51*128] if p is G3 else [384, 1408]): a(f"s_load_dword s{S_PFD}, s[{S_PFA}:{S_PFA+1}], {o}")
        if nsub(p, i) != 2:
            a(f"""s_and_b32 s{T+1}, s{S_CB}, 8
            s_mul_i32 s{T+1}, s{T+1}, {384 if p is G3 else 128}
            s_add_u32 s{T}, s{T}, s{T+1}
            s_add_u32 s{S_PFA+2}, s{wp}, s{T}
            s_addc_u32 s{S_PFA+3}, s{wp+1}, 0""")
            for t in range(min(3, nsub(p, i))): a(f"s_load_dword s{S_PFD}, s[{S_PFA+2}:{S_PFA+3}], {384 + t*(2048 if p is G1 else 1024)}")
    def rows_target(g, code, own=True):
        g.a(f"""s_add_u32 s{S_TGT}, s{S_FB}, {code}
        s_cmp_{'ge' if own else 'lt'}_u32 s{S_CB}, 8
        s_cselect_b32 s{S_MASK}, 0, -1
        s_cselect_b32 s{S_MASK+1}, -1, 0""")
    def l_wait_rows(g, code):
        g.rows_target(code)
        g.poll(LV_PA, "0", LV_PV)
    def flag_jobs(g, add, s_issue, s_check, code, own, name, skip_l0=False):
        a = g.a; so = "0" if own else f"s{T+4}"
        def issue(q):
            if not own: a(f"s_movk_i32 s{T+4}, {RXF}")
            a(f"buffer_load_dword v{LV_PV}, v{LV_PA}, s[{SWS}:{SWS+3}], {so} offen sc1"); q.append(s_check)
        def check(q):
            D = a.uid("fc")
            if skip_l0: a(f"s_cmp_eq_u32 s{S_L}, 0\ns_cbranch_scc1 {D}")
            g.rows_target(code, own)
            if not own: a(f"s_movk_i32 s{T+4}, {RXF}")
            g.poll(LV_PA, so, LV_PV, first_done=True, acquire=own)
            a.label(D)
            g.stamp("l", name)
        add((s_issue, "pre"), issue); add((s_check, "pre"), check)
    def l_main(g, p, q0=None, nxt=None, cond_nxt=None):
        a = g.a; N, n = p.NST, p.n
        jobs = g.jobs(p)
        def run(key):
            for f in jobs.get(key, []): f(q)
        if q0 is None:
            q = []
            for s in range(N - 1):
                g.l_line(p, s, w=False); q += [s]*g.l_issue_x(p, s)
        else: q = list(q0)
        w8 = p is G2 and g.opt.get("w8", 1)
        fill = g.opt.get("fill", 1) and q0 is None
        if fill:
            g.l_line(p, N - 1); q += [N - 1]*(g.l_issue_x(p, N - 1) + (0 if w8 else g.l_issue_w(p, N - 1)))
        def wait(s):
            last = max(i for i, t in enumerate(q) if t == s)
            assert len(q) - 1 - last <= 63
            a(f"s_waitcnt vmcnt({len(q) - 1 - last})")
            nc = q[last:].count(-2)
            if nc:
                S = a.uid("wc")
                a(f"s_cmp_eq_u32 s{S_L}, 0\ns_cbranch_scc1 {S}\ns_waitcnt vmcnt({len(q) - 1 - last - nc})")
                a.label(S)
        g.qwait = wait
        if N == 3: ra = {n: list(range(g.opt.get("w8a", 4))) if (nxt is G2 and g.opt.get("w8", 1)) else [1, 2, 0]}
        else:
            e = g.opt.get("early", 3)
            ra = {n - e: [0], n - e + 1: [1]} if e else {n: [0, 1]}
        def runahead(s):
            if s not in ra and s != n: return
            if cond_nxt:
                S = a.uid("ra"); a(f"s_cmp_lg_u32 s{S_L}, 0\ns_cbranch_scc1 {S}")
            if s == min(ra): g.l_next_setup(nxt)
            for t in ra.get(s, []):
                g.l_line(nxt, t, x=False)
                q.extend([-2 if cond_nxt else -1]*g.l_issue_w(nxt, t))
            if s == n:
                k0 = 8 if (nxt is G2 and g.opt.get("w8", 1)) else nxt.NST - 1
                for k in range(k0, max(k0, nxt.NST - 1 + PFD[nxt])): g.l_pf(nxt, k)
            if cond_nxt: a.label(S)
        for s in range(n):
            i = s + N - 1
            skip = s == 0 and (fill or (p is G1 and g.opt.get("fill", 1)))
            if i < n and not skip: g.l_line(p, i, w=not (w8 and i < 8))
            wait(s); a("s_barrier")
            if g.opt.get("stepst") == p.name and s < 16: g.stamp("l", f"s{s}")
            run((s, "pre"))
            if skip and p is G1:
                S = a.uid("f0"); a(f"s_cmp_lg_u32 s{S_L}, 0\ns_cbranch_scc1 {S}")
                g.l_line(p, i); q += [i]*(g.l_issue_x(p, i) + g.l_issue_w(p, i))
                a.label(S)
            if i < n and not skip: q += [i]*(g.l_issue_x(p, i) + (0 if (w8 and i < 8) else g.l_issue_w(p, i)))
            k = i + PFD[p]
            if k < n:
                if not (w8 and k < 8): g.l_pf(p, k)
            elif N == 4 and k - n < 2: g.l_pf(nxt, k - n)
            run((s, "post"))
            runahead(s)
        a("s_waitcnt lgkmcnt(0)\ns_barrier")
        run((n, "pre"))
        runahead(n)
        run((n, "post"))

    def job_colsum(g, p, s, u, q):
        a = g.a; D = a.uid("csd"); Hf = a.uid("csh"); St = a.uid("css")
        F, A0, ONE, U = 64, 96, 112, LV_T
        base = p.w0 + (s % p.NST)*p.wp
        if u is None: a(f"s_cmp_lg_u32 s{S_L}, 0\ns_cbranch_scc1 {D}")
        else: a(f"s_and_b32 s{T}, s{S_RB}, 3\ns_add_u32 s{T}, s{T}, s{S_FB}\ns_cmp_lg_u32 s{T}, {u}\ns_cbranch_scc1 {D}")
        for i in range(4): a(f"v_mov_b32 v{ONE+i}, 0x3f803f80")
        if p is G3: a(f"s_cmp_eq_u32 s{S_W}, 3\ns_cbranch_scc1 {Hf}")
        a(f"s_lshl_b32 s{T}, s{S_W}, 13\ns_add_u32 s{T}, s{T}, {base}\nv_add_u32 v{U}, s{T}, v{LV_TRF}")
        def blk(nseg, w):
            for seg in range(nseg):
                a(f"v_xor_b32 v{U+1}, {32*seg}, v{U}")
                for kk in range(2):
                    for h in range(2):
                        a(f"ds_read_b64_tr_b16 {vr(F+seg*8+kk*4+h*2,2)}, v{U+1} offset:{(32*kk+4*h)*w}")
            a("s_waitcnt lgkmcnt(0)")
            for seg in range(nseg):
                for kk in range(2):
                    a(f"v_mfma_f32_16x16x32_bf16 {vr(A0+4*seg,4)}, {vr(ONE,4)}, {vr(F+seg*8+kk*4,4)}, {'0' if kk == 0 else vr(A0+4*seg,4)}")
        blk(4, 128)
        if p is G3:
            a(f"s_branch {St}")
            a.label(Hf)
            a(f"v_add_u32 v{U}, {base + p.woff[3]}, v{LV_TRH}\nv_mov_b32 v{A0+8}, 0\nv_mov_b32 v{A0+12}, 0")
            blk(2, 64)
            a.label(St)
        a(f"""s_lshl_b32 s{T}, s{S_CB}, 14
        s_lshl_b32 s{T+1}, s{S_RB}, 10
        s_add_u32 s{T}, s{T}, s{T+1}
        s_add_u32 s{T}, s{T}, {CSP + (CSP_I if p is G3 else 0)}
        v_cmp_gt_u32 vcc, 16, v0
        s_nop 5
        v_cndmask_b32 v{A0}, v{A0+4}, v{A0}, vcc
        v_cmp_gt_u32 vcc, 48, v0
        v_cndmask_b32 v{A0+8}, v{A0+12}, v{A0+8}, vcc
        v_cmp_gt_u32 vcc, 32, v0
        v_cndmask_b32 v{A0}, v{A0+8}, v{A0}, vcc
        buffer_store_dword v{A0}, v{LV_T4}, s[{SWS}:{SWS+3}], s{T} offen sc1""")
        a.label(D)
        if u is None: q.append(-2)
    def job_stats(g, inst, store=True):
        a = g.a; F = 16; U = 32; SQ = 36
        a(f"""v_bfe_u32 v{U}, v0, 2, 2
        v_lshlrev_b32 v{U}, 4, v{U}
        v_lshl_add_u32 v{U}, v0, 6, v{U}
        s_lshl_b32 s{T}, s{S_W}, 12
        s_add_u32 s{T}, s{T}, {RES}
        v_add_u32 v{U}, s{T}, v{U}""")
        for i in range(4):
            a(f"v_xor_b32 v{U+1}, {16*i}, v{U}\nds_read_b128 {vr(F+4*i,4)}, v{U+1}")
        for i in range(4): a(f"v_mov_b32 v{SQ+i}, 0")
        a(f"""s_mov_b32 s{T+2}, 0x3f803f80
        s_lshl_b32 s{T}, {inst}, 18
        s_lshl_b32 s{T+1}, s{S_RB}, 14
        s_add_u32 s{T}, s{T}, s{T+1}
        s_lshl_b32 s{T+1}, s{S_CB}, 10
        s_add_u32 s{T}, s{T}, s{T+1}
        s_lshl_b32 s{T+1}, s{S_W}, 8
        s_add_u32 s{T}, s{T}, s{T+1}
        s_add_u32 s{T}, s{T}, {STAT}""")
        for i in range(16):
            if i % 4 == 0: a(f"s_waitcnt lgkmcnt({3 - i//4})")
            a(f"v_dot2c_f32_bf16 v{SQ + i%2}, s{T+2}, v{F+i}\nv_dot2c_f32_bf16 v{SQ + 2 + i%2}, v{F+i}, v{F+i}")
        a(f"""v_and_b32 v{U}, 1, v0
        v_cmp_eq_u32 vcc, 0, v{U}
        v_lshlrev_b32 v{U}, 2, v0
        v_add_f32 v{SQ}, v{SQ}, v{SQ+1}
        v_add_f32 v{SQ+2}, v{SQ+2}, v{SQ+3}
        v_add_f32_dpp v{SQ+1}, v{SQ}, v{SQ} quad_perm:[1,0,3,2] row_mask:0xf bank_mask:0xf
        v_add_f32_dpp v{SQ+3}, v{SQ+2}, v{SQ+2} quad_perm:[1,0,3,2] row_mask:0xf bank_mask:0xf
        v_cndmask_b32 v{V_SS}, v{SQ+3}, v{SQ+1}, vcc""")
        if store: a(f"buffer_store_dword v{V_SS}, v{U}, s[{SWS}:{SWS+3}], s{T} offen sc1")
        else: a(f"s_mov_b32 s{T+13}, s{T}")
    def job_boot_issue(g, q):
        a = g.a; D = a.uid("jpd")
        a(f"s_cmp_lg_u32 s{S_L}, 0\ns_cbranch_scc1 {D}")
        g.srd(SM, P_DBG, 256)
        a(f"buffer_load_dword v{LV_PV}, v{LV_L4}, s[{SM}:{SM+3}], 0 offen sc1")
        a.label(D); q.append(-2)
    def gather_loads(g, p):
        a = g.a; E = a.uid("jge")
        a(f"""s_lshl_b32 s{T}, s{S_L}, 19
        s_lshl_b32 s{T+1}, s{S_RB}, 14
        s_add_u32 s{T}, s{T}, s{T+1}
        s_add_u32 s{T}, s{T}, {STAT + (STAT_I if p is G3 else 0)}""")
        for i in range(4):
            a(f"buffer_load_dwordx4 {vr(64+4*i,4)}, v{LV_GA}, s[{SWS}:{SWS+3}], s{T} offen offset:{1024*i} sc1")
        a(f"""s_cmp_lg_u32 s{S_L}, 0
        s_cbranch_scc1 {E}
        s_lshl_b32 s{T}, s{S_CB}, 14
        s_add_u32 s{T}, s{T}, {CSP + (CSP_I if p is G3 else 0)}""")
        for i in range(4):
            a(f"buffer_load_dwordx4 {vr(80+4*i,4)}, v{LV_GA}, s[{SWS}:{SWS+3}], s{T} offen offset:{1024*i} sc1")
        a.label(E)
    def job_gather(g, p, q):
        a = g.a; D = a.uid("jgd")
        a(f"s_cmp_lg_u32 s{S_L}, 0\ns_cbranch_scc1 {D}")
        if p is G1:
            g.srd(SM, P_DBG, 256)
            a(f"s_mov_b32 s{S_TGT}, 32\ns_mov_b32 s{S_MASK}, 0x01010101\ns_mov_b32 s{S_MASK+1}, 0x01010101")
            g.poll(LV_L4, "0", LV_PV, srd=SM, first_done=True, andmask=63, acquire=False)
            a(f"""s_lshl_b32 s{T}, s{S_XCD}, 3
            s_lshl_b32 s{T+1}, s{S_BOOT}, 5
            v_readlane_b32 s{T+2}, v{LV_PV}, s{T}
            s_cmp_lg_u32 s{T+2}, s{T+1}
            s_cselect_b32 s{S_MODE}, 1, {1 if g.force_slow else 0}
            v_mov_b32 v{LV_T}, {L_MODE}
            v_mov_b32 v{LV_T+1}, s{S_MODE}
            ds_write_b32 v{LV_T}, v{LV_T+1}""")
        else:
            g.srd(SM, P_B1, 3584*2)
            a(f"""s_cmp_eq_u32 s{S_W}, 1
            s_cselect_b32 s{T}, s{S_COL+1}, s{S_COL}
            s_cmp_eq_u32 s{S_W}, 2
            s_cselect_b32 s{T}, s{S_COL+2}, s{T}
            s_cmp_eq_u32 s{S_W}, 3
            s_cselect_b32 s{T}, s{S_COL+3}, s{T}
            v_lshlrev_b32 v{LV_T}, 1, v0
            buffer_load_ushort v96, v{LV_T}, s[{SM}:{SM+3}], s{T} offen""")
            g.srd(SM, P_B2, 2048)
            a(f"s_lshl_b32 s{T}, s{S_CB}, 7\nbuffer_load_ushort v97, v{LV_T}, s[{SM}:{SM+3}], s{T} offen")
            q += [-2]*2
        a.label(D)
        g.gather_loads(p)
        q += [-1]*4 + [-2]*4
        g.gpos = len(q)
    def job_reduce(g, p, q):
        a = g.a; E = a.uid("jre"); R = a.uid("jrr"); C = a.uid("jrc"); N0 = a.uid("jrn")
        def tree(b):
            for st in (8, 4):
                for i in range(0, st, 2): a(f"v_pk_add_f32 {vr(b+i,2)}, {vr(b+i,2)}, {vr(b+st+i,2)}")
            for sw in ("16", "32"):
                a(f"v_mov_b64 {vr(b+4,2)}, {vr(b,2)}\nv_mov_b64 {vr(b+6,2)}, {vr(b+2,2)}")
                for i in range(4): a(f"v_permlane{sw}_swap_b32 v{b+i}, v{b+4+i}")
                for i in (0, 2): a(f"v_pk_add_f32 {vr(b+i,2)}, {vr(b+i,2)}, {vr(b+4+i,2)}")
        young = q[g.gpos:]
        a(f"""s_mov_b32 s{S_SPIN}, {SPIN}
        s_waitcnt vmcnt({len(young)})
        s_cmp_eq_u32 s{S_L}, 0
        s_cbranch_scc1 {C}
        s_waitcnt vmcnt({len(young) - young.count(-2)})""")
        a.label(C)
        keep, g.a = g.a, Asm(); g.a._uid = keep._uid + 1000
        g.a.label(R); g.gather_loads(p); g.a(f"s_waitcnt vmcnt(0)\ns_branch {C}")
        g.cold.append(g.a.text()); g.a = keep
        tree(64)
        a(f"v_pk_add_f32 v[98:99], v[64:65], v[66:67]\ns_cmp_lg_u32 s{S_L}, 0\ns_cbranch_scc1 {N0}")
        tree(80)
        if p is G3: a("v_pk_add_f32 v[98:99], v[98:99], v[80:81]\nv_pk_add_f32 v[98:99], v[98:99], v[82:83]")
        a.label(N0)
        a("v_cmp_u_f32 vcc, v98, v99")
        g.retry(R)
        a(f"""s_mov_b32 s{T+2}, {f2u(1/1024):#x}
        v_pk_mul_f32 v[64:65], v[64:65], s[{T+2}:{T+3}] op_sel_hi:[1,0]
        v_pk_mul_f32 v[66:67], v[66:67], s[{T+2}:{T+3}] op_sel_hi:[1,0]
        v_fma_f32 v68, -v64, v64, v65
        v_fma_f32 v69, -v66, v66, v67
        v_max_f32 v68, 0, v68
        v_max_f32 v69, 0, v69
        v_add_f32 v68, {f2u(1e-5):#x}, v68
        v_add_f32 v69, {f2u(1e-5):#x}, v69
        v_rsq_f32 v68, v68
        v_rsq_f32 v69, v69
        v_and_b32 v72, 15, v0
        s_lshl_b32 s{T}, s{S_W}, 7
        s_add_u32 s{T}, s{T}, {L_RSTD}
        v_lshl_add_u32 v73, v72, 3, s{T}
        v_mul_f32 v70, -v64, v68
        v_mul_f32 v71, -v66, v69
        ds_write_b64 v73, v[68:69]
        ds_write_b64 v73, v[70:71] offset:512
        s_cmp_lg_u32 s{S_L}, 0
        s_cbranch_scc1 {E}
        s_lshl_b32 s{T}, s{S_W}, 8
        s_add_u32 s{T}, s{T}, {L_CSQ if p is G1 else L_CS1}
        v_lshl_add_u32 v73, v72, 4, s{T}
        ds_write_b128 v73, v[80:83]""")
        if p is G3:
            a(f"""v_add_u32 v71, {L_B1}, v{LV_T4}
            v_lshlrev_b32 v96, 16, v96
            ds_write_b32 v71, v96
            v_lshlrev_b32 v97, 16, v97
            v_add_u32 v71, {L_B2}, v{LV_L4}
            ds_write_b32 v71, v97""")
        a.label(E)
    def job_clears(g, q):
        a = g.a; D = a.uid("jc")
        g.clear_xb(LV_T); q += [-1]*4
        a(f"s_cmp_lg_u32 s{S_L}, 0\ns_cbranch_scc1 {D}")
        g.clear_kv(1, LV_T)
        a(f"s_lshl_b32 s{T}, s{S_RB}, 14\ns_lshl_b32 s{T+1}, s{S_CB}, 10\ns_add_u32 s{T}, s{T}, s{T+1}\ns_add_u32 s{T}, s{T}, {STAT}")
        for i in range(1, 4):
            a(f"s_add_u32 s{T}, s{T}, {STAT_I}\nbuffer_store_dword v{V_SEN}, v{LV_T4}, s[{SWS}:{SWS+3}], s{T} offen sc1")
        a.label(D); q += [-2]*5
    def job_trickle(g, items, S_PFA=S_PFA, S_PFD=S_PFD):
        a = g.a; D = a.uid("jt")
        a(f"s_cmp_lg_u32 s{S_L}, 0\ns_cbranch_scc1 {D}\ns_lshl_b32 s{T}, s2, 2\ns_add_u32 s{T}, s{T}, s{S_W}")
        cur = None
        for ptr, sec in items:
            if ptr != cur:
                cur = ptr
                a(f"""s_mul_i32 s{T+1}, s{T}, {2048 if ptr == P_WO else 7168}
                s_add_u32 s{S_PFA}, s{ptr}, s{T+1}
                s_addc_u32 s{S_PFA+1}, s{ptr+1}, 0""")
            a(f"s_load_dword s{S_PFD}, s[{S_PFA}:{S_PFA+1}], {64*sec}")
        a.label(D)
    def job_wtouch(g, ptr, first, q):
        a = g.a; D = a.uid("jw")
        per = 2048 if ptr == P_WO else 7168
        a(f"s_cmp_lg_u32 s{S_L}, 0\ns_cbranch_scc1 {D}")
        g.srd(SM, ptr, 1024*per)
        a(f"""s_lshl_b32 s{T}, s2, 2
        s_add_u32 s{T}, s{T}, s{S_W}
        s_mul_i32 s{T}, s{T}, {per}
        s_add_u32 s{T}, s{T}, {128*first}
        v_min_u32 v{LV_T}, {per//128 - 1 - first}, v0
        v_lshlrev_b32 v{LV_T}, 7, v{LV_T}
        buffer_load_dword v{LV_DUM}, v{LV_T}, s[{SM}:{SM+3}], s{T} offen""")
        a.label(D); q.append(-2)
    def jobs(g, p):
        a = g.a; J = {}
        def add(key, fn): J.setdefault(key, []).append(fn)
        if p is G2:
            g.flag_jobs(add, g.opt.get("g2p", 4), 5, 1, False, "orem")
            return J
        if p is G4:
            g.flag_jobs(add, 4, 5, 7, True, "hall")
            g.flag_jobs(add, 19, 21, 7, False, "hrem")
            return J
        add((14, "pre"), lambda q: g.job_gather(p, q))
        g.flag_jobs(add, 5, 6, 3 if p is G3 else -7, False, p.name + "rem", skip_l0=p is G1)
        if p is G1:
            add((0, "post"), lambda q: g.job_colsum(G1, 0, None, q))
            add((12, "pre"), g.job_boot_issue)
            add((14, "post"), lambda q: (g.job_clears(q), g.tab_local()))
        else:
            for u, st in enumerate((0, 1, 8, 9)): add((st, "post"), lambda q, u=u, st=st: g.job_colsum(G3, st, u, q))
        ntr = g.opt.get("tr1" if p is G1 else "tr3", 4); t0 = g.opt.get("tr0", 2) if p is G1 else 0
        secs = ([(P_WO, k) for k in range(32)] if p is G1 else []) + [(P_W1 if p is G1 else P_W2, k) for k in range(112)]
        for st in range(t0, 14):
            it, secs = secs[:ntr], secs[ntr:]
            if it: add((st, "post"), lambda q, it=it: g.job_trickle(it))
        if p is G1:
            it, secs = secs[:g.opt.get("trl", 0)], secs[g.opt.get("trl", 0):]
            if it: add((16, "post"), lambda q, it=it: g.job_trickle(it))
            g.ctrickle, secs = secs[:g.opt.get("trc", 0)], secs[g.opt.get("trc", 0):]
        rest = {}
        for ptr, k in secs: rest.setdefault(ptr, k // 2)
        if not g.opt.get("wt", 1): rest = {}
        for ptr, first in rest.items(): add((14, "post"), lambda q, ptr=ptr, first=first: g.job_wtouch(ptr, first, q))
        add((15, "post"), lambda q: g.job_reduce(p, q))
        return J

    def l_kv_gather(g):
        a = g.a; F = 64; Z = 128; U = 132; S = 144
        P = a.uid("kvp"); D = a.uid("kvd"); P1 = a.uid("kv1"); PZ = a.uid("kvz")
        a(f"""s_lshl_b32 s{T}, s{S_L}, 20
        s_lshl_b32 s{T+1}, s{S_CB}, 16
        s_add_u32 s{T}, s{T}, s{T+1}
        s_lshl_b32 s{T+1}, s{S_W}, 14
        s_add_u32 s{T}, s{T}, s{T+1}
        s_lshr_b32 s{T+4}, s{T}, 4
        s_add_u32 s{T}, s{T}, {KVP}
        s_mov_b32 s{T+5}, s{T}
        s_add_u32 s{T+4}, s{T+4}, {ZP}""")
        for k in range(4):
            a(f"s_add_u32 s{T+k}, s{S_J2}, {2*k + 2}\ns_and_b32 s{T+k}, s{T+k}, 6\ns_lshl_b32 s{T+k}, s{T+k}, 11\ns_add_u32 s{T+k}, s{T+k}, s{T+5}")
        a(f"""v_and_b32 v{U}, 15, v0
        v_lshlrev_b32 v{U}, 6, v{U}
        v_and_b32 v{U+1}, 48, v0
        v_add_u32 v{U}, v{U}, v{U+1}
        s_lshr_b32 s{T+5}, s{S_W}, 1
        s_lshl_b32 s{T+5}, s{T+5}, 10
        s_and_b32 s{T+6}, s{S_W}, 1
        s_lshl_b32 s{T+6}, s{T+6}, 3
        s_add_u32 s{T+5}, s{T+5}, s{T+6}
        s_add_u32 s{T+5}, s{T+5}, {L_ZF}
        v_add_u32 v{U+2}, s{T+5}, v{LV_L16}
        s_add_u32 s{T+5}, s{S_LH}, {L_KVF}
        v_add_u32 v{U+3}, s{T+5}, v{LV_L16}
        s_mov_b32 s{T+8}, 0x3f80
        s_mov_b32 s{T+9}, 0x3f800000
        s_mov_b32 s{S_SPIN}, {SPIN}
        s_mov_b32 s{S_ISS}, 15
        s_barrier""")
        kf = g.opt.get("kvf", "sc1"); sl = g.opt.get("kvsl", 4)
        if g.opt.get("w8", 1) and g.opt.get("w8a", 4) < 8:
            a(f"s_sleep {g.opt.get('jsl', 6)}")
            for t in range(g.opt.get("w8a", 4), 8):
                g.l_line(G2, t, x=False); g.l_issue_w(G2, t)
        if g.opt.get("junk", 1):
            J = a.uid("jk"); J2 = a.uid("jk")
            a(f"""s_cmp_lg_u32 s{S_L}, 0
            s_cbranch_scc1 {J}
            s_mul_i32 s{T+5}, s{S_RB}, {H_RB}
            s_and_b32 s{T+6}, s{S_CB}, 7
            s_add_u32 s{T+6}, s{T+6}, s{S_K24}
            s_lshl_b32 s{T+6}, s{T+6}, {LT}
            s_add_u32 s{T+6}, s{T+6}, s{T+5}
            s_add_u32 s{T+6}, s{T+6}, {HB + 8*TL}
            s_lshr_b32 s{T+7}, s{S_CB}, 1
            s_lshl_b32 s{T+7}, s{T+7}, {LT}
            s_add_u32 s{T+5}, s{T+5}, s{T+7}
            s_and_b32 s{T+7}, s{S_CB}, 1
            s_lshl_b32 s{T+7}, s{T+7}, {LK}
            s_add_u32 s{T+5}, s{T+5}, s{T+7}
            s_add_u32 s{T+5}, s{T+5}, {HB + 48*TL}
            s_sleep {0 if g.opt.get("w8", 1) and g.opt.get("w8a", 4) < 8 else g.opt.get("jsl", 6)}""")
            st = lambda sr, k: a(f"buffer_store_dwordx4 v[{LV_W}:{LV_W+3}], v{LV_X+k}, s[{SWS}:{SWS+3}], s{sr} offen offset:{1024*k}")
            for i in range(4): st(T+6, i)
            for i in range(2): st(T+5, 2*i)
            a(f"s_add_u32 s{T+6}, s{T+6}, {8*TL}\ns_bitcmp1_b32 s{S_CB}, 2\ns_cbranch_scc0 {J2}")
            for i in range(4): st(T+6, i)
            a.label(J2)
            if g.opt.get("jsl2", 0): a(f"s_sleep {g.opt.get('jsl2', 0)}")
            a(f"s_branch {P1}")
            a.label(J)
        if sl: a(f"s_sleep {sl}")
        zl = f"buffer_load_dwordx4 {vr(Z,4)}, v{U}, s[{SWS}:{SWS+3}], s{T+4} offen {kf}"
        def loads(k):
            for i in range(4): g.a(f"buffer_load_dwordx4 {vr(F+16*k+4*i,4)}, v{LV_L16}, s[{SWS}:{SWS+3}], s{T+k} offen offset:{1024*i} {kf}")
        def accum(k, K, cnt=None):
            sk = S + 8*k; a = g.a
            for i in range(4):
                if cnt is not None: a(f"s_waitcnt vmcnt({cnt - i})")
                for d in range(4):
                    x = F + 16*k + 4*i + d
                    if i == 0: a(f"v_lshlrev_b32 v{sk+2*d}, 16, v{x}\nv_and_b32 v{sk+2*d+1}, 0xffff0000, v{x}")
                    else: a(f"v_dot2c_f32_bf16 v{sk+2*d}, s{T+8}, v{x}\nv_dot2c_f32_bf16 v{sk+2*d+1}, s{T+9}, v{x}")
            a(f"""v_add_f32 v{U+4}, v{sk}, v{sk+2}
            v_add_f32 v{U+5}, v{sk+4}, v{sk+6}
            v_cmp_u_f32 vcc, v{U+4}, v{U+5}
            s_cbranch_vccnz {K}
            s_bitset0_b32 s{S_ISS}, {k}""")
            a.label(K)
        keep, g.a = g.a, Asm(); g.a._uid = keep._uid + 2000
        g.a.label(P); g.a(zl)
        for k in range(4):
            K = g.a.uid("kvl")
            g.a(f"s_bitcmp1_b32 s{S_ISS}, {k}\ns_cbranch_scc0 {K}"); loads(k); g.a.label(K)
        g.a("s_waitcnt vmcnt(0)")
        for k in range(4):
            K = g.a.uid("kva")
            g.a(f"s_bitcmp1_b32 s{S_ISS}, {k}\ns_cbranch_scc0 {K}"); accum(k, K)
        g.a(f"s_branch {PZ}")
        g.cold.append(g.a.text()); g.a = keep
        a.label(P1)
        for k in range(4): loads(k)
        a(zl)
        for k in range(4): accum(k, a.uid("kva"), 16 - 4*k)
        a("s_waitcnt vmcnt(0)")
        a.label(PZ)
        a(f"""v_max3_u32 v{U+1}, v{Z}, v{Z+1}, v{Z+2}
        v_max_u32 v{U+1}, v{U+1}, v{Z+3}
        v_cmp_eq_u32 vcc, -1, v{U+1}
        s_nop 0
        s_or_b32 s{T+5}, vcc_lo, vcc_hi
        s_or_b32 s{T+5}, s{T+5}, s{S_ISS}
        s_cbranch_scc0 {D}
        s_sub_u32 s{S_SPIN}, s{S_SPIN}, 1
        s_cbranch_scc0 {P}""")
        a.label(D)
        g.stamp("l", "kvflag")
        zs = [f"v_add_f32_dpp v{Z+i}, v{Z+i}, v{Z+i} row_ror:{st} row_mask:0xf bank_mask:0xf" for st in (8, 4, 2, 1) for i in range(4)]
        ks = [f"v_pk_add_f32 {vr(S+x+d,2)}, {vr(S+x+d,2)}, {vr(S+y+d,2)}" for x, y in ((0, 8), (16, 24), (0, 16)) for d in range(0, 8, 2)]
        ks += [f"v_cvt_pk_bf16_f32 v{U+4+d}, v{S+2*d}, v{S+2*d+1}" for d in range(4)]
        for l in ks: a(l)
        a(f"ds_write_b128 v{U+3}, {vr(U+4,4)}")
        for l in zs: a(l)
        a(f"""v_cvt_pk_bf16_f32 v{Z}, v{Z}, v{Z+1}
        v_cvt_pk_bf16_f32 v{Z+1}, v{Z+2}, v{Z+3}
        ds_write_b64 v{U+2}, {vr(Z,2)}
        s_waitcnt lgkmcnt(0)
        s_barrier""")

    def boot_val(g):
        g.a(f"""s_getreg_b32 s{T}, hwreg(HW_REG_XCC_ID, 0, 4)
        s_and_b32 s{T}, s{T}, 7
        s_mul_i32 s{T+1}, s{T}, s{T}
        s_lshl_b32 s{T}, s{T}, 6
        s_lshl_b32 s{T+1}, s{T+1}, 14
        s_add_u32 s{S_BOOT}, s{T}, s{T+1}
        s_add_u32 s{S_BOOT}, s{S_BOOT}, 1""")
    def loader(g):
        a = g.a; t0, t1, t2 = LV_T, LV_T+1, LV_T+2
        g.stamp("l", "start")
        if g.opt.get("lprio"): a(f"s_setprio {g.opt['lprio']}")
        a(f"""s_lshl_b32 s{S_LX}, s{S_W}, 12
        s_lshl_b32 s{S_LW}, s{S_W}, 11
        s_lshl_b32 s{S_LH}, s{S_W}, 10
        v_lshrrev_b32 v{t0}, 3, v0
        s_lshl_b32 s{T}, s{S_W}, 4
        v_add_u32 v{LV_KN}, s{T}, v{t0}
        v_and_b32 v{t2}, 7, v0
        v_and_b32 v{t1}, 2, v{t0}
        v_xor_b32 v{t1}, v{t1}, v{t2}
        v_lshlrev_b32 v{LV_CH}, 4, v{t1}
        s_lshl_b32 s{T}, s{S_W}, 5
        v_add_u32 v{t0}, s{T}, v{t0}
        v_lshlrev_b32 v{t0}, 11, v{t0}
        v_lshrrev_b32 v{t1}, 4, v0
        v_xor_b32 v{t1}, v{t1}, v{t2}
        v_lshl_add_u32 v{LV_X}, v{t1}, 4, v{t0}
        v_xor_b32 v{LV_X+1}, 64, v{LV_X}
        v_add_u32 v{LV_X+1}, {8*2048 - 1024}, v{LV_X+1}
        v_add_u32 v{LV_X+2}, {16*2048 - 2048}, v{LV_X}
        v_add_u32 v{LV_X+3}, {16*2048 - 2048}, v{LV_X+1}
        s_mov_b32 s{S_XSTR}, 128
        s_and_b32 s{S_K24}, s2, 1
        s_mul_i32 s{S_K24}, s{S_K24}, 24
        s_and_b32 s{S_J2}, s2, 6""")
        g.tab_first()
        g.l_cols(G1); g.l_setup_w(G1, natural=True)
        a(f"s_lshl_b32 s{T}, s{S_RB}, 18\ns_waitcnt lgkmcnt(0)")
        g.srd(SX, P_X, 128*2048, T)
        g.srd(SW, P_WQKV, 1024*6144)
        g.stamp("l", "karg")
        g.l_line(G1, 0); g.l_issue_w(G1, 0); g.l_issue_x(G1, 0)
        g.stamp("l", "iss0")
        g.l_line(G1, 1); g.l_issue_w(G1, 1); g.l_issue_x(G1, 1)
        a(f"""s_lshr_b32 s{T}, s{S_W}, 1
        s_lshl_b32 s{T}, s{T}, 5
        s_and_b32 s{T+1}, s{S_W}, 1
        s_lshl_b32 s{T+1}, s{T+1}, 3
        s_add_u32 s{T}, s{T}, s{T+1}
        v_bfe_u32 v{t0}, v0, 3, 2
        v_lshrrev_b32 v{t1}, 5, v0
        v_lshl_add_u32 v{t0}, v{t1}, 4, v{t0}
        v_add_u32 v{LV_KF}, s{T}, v{t0}
        v_bfe_u32 v{t0}, v0, 2, 2
        v_lshl_add_u32 v{t0}, v{t1}, 2, v{t0}
        v_and_b32 v{t2}, 16, v0
        v_add3_u32 v{LV_KH}, v{t0}, v{t2}, s{T}
        v_lshlrev_b32 v{t1}, 1, v{t1}
        v_and_b32 v{t2}, 3, v0
        v_xor_b32 v{t1}, v{t1}, v{t2}
        v_lshlrev_b32 v{LV_CHH}, 4, v{t1}
        v_lshlrev_b32 v{LV_L4}, 2, v0
        v_lshlrev_b32 v{LV_L16}, 4, v0
        s_lshl_b32 s{T}, s{S_W}, 8
        v_add_u32 v{LV_T4}, s{T}, v{LV_L4}
        s_lshl_b32 s{T}, s{S_RB}, 8
        v_add_u32 v{LV_PA}, s{T}, v{LV_L4}
        v_lshrrev_b32 v{t1}, 4, v0
        v_and_b32 v{t0}, 15, v0
        v_lshlrev_b32 v{t0}, 4, v{t0}
        v_lshl_add_u32 v{t0}, v{t1}, 12, v{t0}
        s_lshl_b32 s{T}, s{S_W}, 8
        v_add_u32 v{LV_GA}, s{T}, v{t0}
        v_bfe_u32 v{t0}, v0, 2, 2
        v_lshl_add_u32 v{t0}, v{t1}, 3, v{t0}
        v_lshlrev_b32 v{t2}, 3, v{t2}
        v_bfe_u32 v{t1}, v0, 3, 2
        v_lshl_add_u32 v{LV_TRF}, v{t1}, 5, v{t2}
        v_lshl_add_u32 v{LV_TRF}, v{t0}, 7, v{LV_TRF}
        v_lshrrev_b32 v{t1}, 1, v{t1}
        v_lshl_add_u32 v{LV_TRH}, v{t1}, 5, v{t2}
        v_lshl_add_u32 v{LV_TRH}, v{t0}, 6, v{LV_TRH}
        s_lshr_b32 s{S_PFR}, s2, 3
        s_lshl_b32 s{S_PFR}, s{S_PFR}, 1
        s_lshr_b32 s{T}, s{S_W}, 1
        s_add_u32 s{S_PFR}, s{S_PFR}, s{T}
        s_and_b32 s{S_PFH}, s{S_W}, 1
        s_lshl_b32 s{S_PFH}, s{S_PFH}, 6""")
        g.boot_val()
        a(f"s_waitcnt vmcnt({G1.P})")
        g.stamp("l", "land0")
        a("s_branch L_l_g1b")
        a.label("L_l_layer")
        for s in range(2):
            g.l_line(G1, s, w=False); g.l_issue_x(G1, s)
        if g.opt.get("fill", 1):
            g.l_line(G1, 2); g.l_issue_x(G1, 2); g.l_issue_w(G1, 2)
        a(f"s_waitcnt vmcnt({4 + G1.P if g.opt.get('fill', 1) else 4})")
        a.label("L_l_g1b")
        g.l_main(G1, q0=[0] + [-1]*50 + [1]*4, nxt=G2)
        g.stamp("l", "g1end")
        a(f"v_add_u32 v{LV_X}, s{S_LX}, v{LV_L16}\ns_mov_b32 s{S_XSTR}, {TL}")
        if SKIP: a(f"v_add_u32 v{LV_X+1}, 128, v{LV_X}\nv_cmp_gt_u32 vcc, 24, v0\nv_cndmask_b32 v{LV_X}, v{LV_X+1}, v{LV_X}, vcc")
        a(f"v_add_u32 v{LV_X+1}, {KS - 1024}, v{LV_X}\nv_mov_b32 v{LV_X+2}, v{LV_X}\nv_mov_b32 v{LV_X+3}, v{LV_X+1}")
        g.l_xsrd(HB, H_RB)
        g.l_kv_gather()
        g.stamp("l", "kvdone")
        g.l_wait_rows(1)
        g.stamp("l", "oflag")
        g.l_main(G2, nxt=G3)
        g.l_xsrd(XA, 16*TL)
        a("s_barrier")
        g.l_wait_rows(3)
        g.stamp("l", "x1flag")
        g.l_main(G3, nxt=G4)
        g.l_xsrd(HB, H_RB)
        g.l_wait_rows(5)
        g.stamp("l", "hflag")
        g.l_main(G4, nxt=G1, cond_nxt=True)
        a(f"s_cmp_lg_u32 s{S_L}, 0\ns_cbranch_scc1 L_l_fin")
        g.l_xsrd(XA, 16*TL)
        a("s_barrier")
        g.l_wait_rows(9)
        g.stamp("l", "x2flag")
        a(f"s_mov_b32 s{S_L}, 1\ns_mov_b32 s{S_FB}, 16\ns_branch L_l_layer")
        a.label("L_l_fin")
        if g.opt.get("wbl"):
            D = a.uid("wb"); a(f"s_cmp_lg_u32 s{S_W}, 0\ns_cbranch_scc1 {D}\ns_cmp_ge_u32 s2, {g.opt['wbl']}\ns_cbranch_scc1 {D}\nbuffer_wbl2 sc1"); a.label(D)
        g.finish("l")

    def c_frag(g, p):
        RW = 3 if p.NB == 6 else 4
        def xr(par): return [f"ds_read_b128 {vr(XF + par*32 + mb*8 + kk*4, 4)}, v{V_XA+kk} offset:{mb*2048}" for mb in range(4) for kk in range(2)]
        def wr(nb, slot=None):
            ri, off, w = p.nblk[nb]; slot = nb % RW if slot is None else slot
            return [f"ds_read_b64_tr_b16 {vr(WF + slot*8 + kk*4 + 2*h, 2)}, v{V_WA+ri} offset:{off + (32*kk + 4*h)*w}" for kk in range(2) for h in range(2)]
        def mf(par, nb, slot=None):
            out = []; slot = nb % RW if slot is None else slot
            for mb in range(4):
                for kk in range(2):
                    d = vr(ACC + 4*(nb*4 + mb), 4)
                    X, W = vr(XF + par*32 + mb*8 + kk*4, 4), vr(WF + slot*8 + kk*4, 4)
                    A, B = (W, X) if p.swapped[nb] else (X, W)
                    out.append(f"v_mfma_f32_16x16x32_bf16 {d}, {A}, {B}, {d}")
            return out
        def inter(ms, rs):
            rs = list(rs)
            for m in ms:
                g.a(m)
                if rs: g.a(rs.pop(0))
            assert not rs
        nwa = 3 if 64 in p.subt else 2
        nxt = [f"s_add_u32 s{S_SLOT}, s{S_SLOT}, 1\ns_cmp_eq_u32 s{S_SLOT}, {p.NST}", f"s_cselect_b32 s{S_DLX}, s{S_KX}, {p.xp}",
               f"s_cselect_b32 s{S_DLW}, s{S_KW}, {p.wp}", f"s_cselect_b32 s{S_SLOT}, 0, s{S_SLOT}"]
        up = [f"v_add_u32 v{r}, s{S_DLX}, v{r}" for r in range(V_XA, V_XA+2)] + [f"v_add_u32 v{r}, s{S_DLW}, v{r}" for r in range(V_WA, V_WA+nwa)]
        up = ["\n".join(up[0:2]), "\n".join(up[2:4])] + up[4:]
        return xr, wr, mf, inter, nxt, up
    def c_pre(g, p, reps):
        a = g.a; xr, wr, mf, inter, nxt, up = g.c_frag(p)
        if p is not G1: a(f"v_add_u32 v{V_XA}, {p.x0}, v{V_XA0}\nv_add_u32 v{V_XA+1}, {p.x0 + 1024}, v{V_XA0}")
        for i in range(3 if 64 in p.subt else 2): a(f"v_mov_b32 v{V_WA+i}, v{V_WA0+i}")
        for i in range(0, p.NB*16, 2): a(f"v_mov_b64 {vr(ACC+i,2)}, 0")
        a(f"s_mov_b32 s{S_CNT}, {reps}\ns_mov_b32 s{S_SLOT}, 0\ns_mov_b32 s{S_KX}, {(-(p.NST-1)*p.xp) & 0xffffffff:#x}\ns_mov_b32 s{S_KW}, {(-(p.NST-1)*p.wp) & 0xffffffff:#x}")
        a("s_waitcnt lgkmcnt(0)\ns_barrier")
        g.stamp("c", p.name + "b0")
        for r in wr(0) + xr(0) + wr(1): a(r)
    def c_loop(g, p):
        a = g.a; NB = p.NB; xr, wr, mf, inter, nxt, up = g.c_frag(p)
        L = a.uid("cl")
        its = g.stamps and g.opt.get("itst") == p.name
        if its:
            k = g.nst["c"]; g.nst["c"] += 16; g.stn["c"] += [f"i{i}" for i in range(16)]
            a(f"s_lshl_b32 m0, s{S_L}, 5\ns_add_u32 m0, m0, {k}")
        cnt = f"\ns_sub_u32 s{S_CNT}, s{S_CNT}, 1\ns_cmp_lg_u32 s{S_CNT}, 0"
        if NB == 2:
            def nx2(par): return [f"s_add_u32 s{S_SLOT}, s{S_SLOT}, 1\ns_cmp_eq_u32 s{S_SLOT}, 4", f"s_cselect_b32 s{S_DLX}, s{S_KX}, {p.xp}\ns_cselect_b32 s{S_SLOT}, 0, s{S_SLOT}",
                                  f"s_add_u32 s{S_LH}, s{S_LINE}, s{S_LW if par == 0 else S_LX}\ns_and_b32 s{S_LH}, s{S_LH}, 0x1ffff", f"s_sub_u32 s{S_DLW}, s{S_LH}, s{S_LINE}\ns_mov_b32 s{S_LINE}, s{S_LH}"]
            a(f"s_mov_b32 s{S_LINE}, 0")
            for l in nx2(1) + up: a(l)
        a(".p2align 3")
        a.label(L)
        for par in range(2):
            if NB == 2:
                a("s_waitcnt lgkmcnt(0)\ns_barrier")
                nx = wr(0, 2*(1-par)) + xr(1 - par) + wr(1, 2*(1-par) + 1)
                ex = nx2(par) + list(up)
                if par == 1: ex[-1] += cnt
                inter(mf(par, 0, 2*par) + mf(par, 1, 2*par + 1), [nx[2*i] + "\n" + nx[2*i+1] for i in range(8)] + ex)
                continue
            for nb in range(NB):
                if nb < NB - 2:
                    a("s_waitcnt lgkmcnt(4)")
                    if its and nb == NB - 3: a(f"s_memrealtime s[{S_ST}:{S_ST+1}]")
                    inter(mf(par, nb), wr(nb + 2) + (nxt if nb == 0 else up if nb == NB - 3 else []))
                elif nb == NB - 2:
                    a("s_waitcnt lgkmcnt(0)\ns_barrier")
                    if its: a(f"v_writelane_b32 v{VST}, s{S_ST}, m0\ns_add_u32 m0, m0, 1")
                    nx = wr(0) + xr(1 - par) + wr(1)
                    inter(mf(par, nb), nx[:8])
                else:
                    nx = nx[8:]
                    if par == 1: nx[6] += cnt
                    inter(mf(par, nb), nx)
        a(f"s_cbranch_scc1 {L}")
        return L
    def remote_flag(g, vt):
        g.a(f"s_movk_i32 s{T}, {RXF}\nbuffer_store_dword v{vt}, v{V_FLG}, s[{SWS}:{SWS+3}], s{T} offen sc1")
    def deferred(g):
        g.remote_flag(V_HK)
        g.a(f"v_lshlrev_b32 v{V_CS}, 2, v0\nbuffer_store_dword v{V_SS}, v{V_CS}, s[{SWS}:{SWS+3}], s{T+13} offen sc1")
    def c_g1(g):
        a = g.a; D = a.uid("st0"); HA, HB_ = a.uid("hka"), a.uid("hkb")
        g.c_pre(G1, f"s{T+12}")
        if g.opt.get("defer", 1): g.deferred()
        else:
            a(f"""s_cmp_lg_u32 s{S_L}, 0
            s_cbranch_scc1 {D}
            v_lshlrev_b32 v{V_CS}, 2, v0
            buffer_store_dword v{V_SS}, v{V_CS}, s[{SWS}:{SWS+3}], s{T+13} offen sc1""")
            a.label(D)
        L = g.c_loop(G1)
        a(f"s_cmp_lg_u32 s{S_HOOK}, 0\ns_cbranch_scc1 {HA}")
        g.cold.append(f"""{HA}:
        s_cmp_eq_u32 s{S_HOOK}, 1
        s_cbranch_scc1 {HB_}
        s_mov_b32 s{S_HOOK}, 1
        s_mov_b32 s{S_CNT}, 1
        s_waitcnt vmcnt(0)
        s_branch {L}
        {HB_}:
        s_mov_b32 s{S_HOOK}, 0
        s_mov_b32 s{S_CNT}, {8 - 1 - HOOKA}
        s_cmp_lg_u32 s{S_W}, 0
        s_cbranch_scc1 {L}
        s_mov_b32 s{SM}, s{P_DBG}
        s_mov_b32 s{SM+1}, s{P_DBG+1}
        s_mov_b32 s{SM+2}, 256
        s_mov_b32 s{SM+3}, 0x20000
        s_lshl_b32 s{T}, s{S_XCD}, 5
        v_mov_b32 v{V_HK}, s{S_BOOT}
        buffer_atomic_add v{V_HK}, v{V_ONE}, s[{SM}:{SM+3}], s{T} offen sc1
        s_branch {L}""")
        a("s_waitcnt lgkmcnt(0)")
        g.stamp("c", "g1loop")
    def c_g4a(g):
        a = g.a; D = a.uid("hkd"); SD = 176
        g.c_pre(G4, 1)
        a(f"s_mov_b32 s{S_HOOK}, 1")
        L = g.c_loop(G4)
        a(f"s_cmp_eq_u32 s{S_HOOK}, 0\ns_cbranch_scc1 {D}\ns_mov_b32 s{S_CNT}, 11\ns_mov_b32 s{S_HOOK}, 0")
        g.signal_row(7, V_HK); g.remote_flag(V_HK)
        a(f"s_branch {L}")
        a.label(D)
        a(f"""s_lshl_b32 s{T+1}, s2, 14
        s_lshl_b32 s{T+2}, s{S_W}, 12
        s_add_u32 s{T+1}, s{T+1}, s{T+2}
        s_xor_b32 s{T+2}, s{T+1}, {1 << 14}
        s_add_u32 s{T+7}, s{T+1}, {XB}
        s_add_u32 s{T+5}, s{T+2}, {XB}
        v_lshlrev_b32 v{V_L16}, 4, v0
        s_mov_b32 s{S_CNT}, {4 - g.opt.get("xbl", 1)}
        s_mov_b32 s{S_HOOK}, 1""")
        for mb in range(4):
            for b in range(2):
                for h in range(2):
                    t = ACC + 4*((2+b)*4 + mb) + 2*h
                    a(f"v_cvt_pk_bf16_f32 v{SD+4*mb+2*b+h}, v{t}, v{t+1}")
            a(f"buffer_store_dwordx4 {vr(SD+4*mb,4)}, v{V_L16}, s[{SWS}:{SWS+3}], s{T+5} offen offset:{1024*mb} sc1")
    def xb_loads(g): return [f"buffer_load_dwordx4 {vr(V_PP+4*mb,4)}, v{V_L16}, s[{SWS}:{SWS+3}], s{T+7} offen offset:{1024*mb} sc1" for mb in range(4)]
    def c_nb2(g):
        a = g.a; D = a.uid("hkd")
        L = g.c_loop(G2)
        a(f"s_cmp_eq_u32 s{S_HOOK}, 0\ns_cbranch_scc1 {D}\ns_mov_b32 s{S_CNT}, {g.opt.get('xbl', 1)}\ns_mov_b32 s{S_HOOK}, 0")
        for l in g.xb_loads(): a(l)
        if g.opt.get("xbl", 1): a(f"s_branch {L}")
        a.label(D)
        a("s_waitcnt lgkmcnt(0)")
        g.stamp("c", "loop", True)

    def phi(g, t, u, dst):
        c = f"s[{S_C}:{S_C+1}]"
        return [f"v_pk_fma_f32 {vr(u,2)}, {vr(t,2)}, {c}, {c} op_sel:[0,0,1] op_sel_hi:[1,0,1]",
                f"v_max_f32 v{t}, s{S_C+2}, v{t}", f"v_max_f32 v{t+1}, s{S_C+2}, v{t+1}",
                f"v_exp_f32 v{u}, v{u} clamp", f"v_exp_f32 v{u+1}, v{u+1} clamp",
                f"v_pk_add_f32 {vr(t,2)}, {vr(t,2)}, {vr(u,2)}",
                f"v_cvt_pk_bf16_f32 v{dst}, v{t}, v{t+1}"]
    def zipemit(g, streams):
        streams = [list(s) for s in streams]
        while any(streams):
            for s in streams:
                if s: g.a(s.pop(0))

    def clear_kv(g, layer, t0):
        g.a(f"""v_lshlrev_b32 v{t0}, 4, v0
        v_and_b32 v{t0+1}, 15, v0
        v_lshlrev_b32 v{t0+1}, 2, v{t0+1}
        s_lshl_b32 s{T}, s{S_CB}, 16
        s_lshl_b32 s{T+1}, s{S_RB}, 10
        s_add_u32 s{T}, s{T}, s{T+1}
        s_lshl_b32 s{T+1}, s{S_W}, 14
        s_add_u32 s{T}, s{T}, s{T+1}
        s_lshr_b32 s{T+1}, s{T}, 4
        s_add_u32 s{T}, s{T}, {KVP + layer*KVP_L}
        s_add_u32 s{T+1}, s{T+1}, {ZP + layer*ZP_L}
        buffer_store_dwordx4 {vr(V_SEN,4)}, v{t0}, s[{SWS}:{SWS+3}], s{T} offen sc1
        buffer_store_dword v{V_SEN}, v{t0+1}, s[{SWS}:{SWS+3}], s{T+1} offen sc1""")
    def clear_xb(g, t0):
        g.a(f"""v_mov_b64 {vr(V_SEN,2)}, -1
        v_mov_b64 {vr(V_SEN+2,2)}, -1
        v_lshlrev_b32 v{t0}, 4, v0
        s_lshl_b32 s{T}, s2, 14
        s_lshl_b32 s{T+1}, s{S_W}, 12
        s_add_u32 s{T}, s{T}, s{T+1}
        s_add_u32 s{T}, s{T}, {XB}""")
        for mb in range(4): g.a(f"buffer_store_dwordx4 {vr(V_SEN,4)}, v{t0}, s[{SWS}:{SWS+3}], s{T} offen offset:{1024*mb} sc1")
    def c_epi_g1(g):
        a = g.a
        acc = lambda nb, mb: ACC + 4*(nb*4 + mb)
        R, NM, CSN, RQ, CSQ_ = 16, 32, 48, 56, 64
        PK, VV, PQ, KV, U, ONE = 72, 88, 208, 224, 104, 248
        eps2 = f"s[{S_C+2}:{S_C+3}]"
        a(f"""s_mov_b32 s{S_C}, {f2u(LOG2E):#x}
        s_mov_b32 s{S_C+1}, {f2u(-EPS*LOG2E):#x}
        s_mov_b32 s{S_C+2}, {f2u(EPS):#x}
        s_mov_b32 s{S_C+3}, 0
        v_and_b32 v{U}, 48, v0
        v_and_b32 v{U+1}, 15, v0
        v_lshlrev_b32 v{U+1}, 2, v{U+1}
        s_lshl_b32 s{T}, s{S_WM}, 8
        s_add_u32 s{T}, s{T}, {L_RSTD}
        s_lshl_b32 s{T+1}, s{S_WN}, 7
        s_add_u32 s{T+1}, s{T+1}, {L_CSQ}
        v_add_u32 v{U+2}, s{T}, v{U}
        v_add_u32 v{U+3}, s{T+1}, v{U+1}
        v_add_u32 v{U+4}, s{T}, v{U+1}
        v_add_u32 v{U+5}, s{T+1}, v{U}
        v_mov_b32 v{U+6}, {L_MODE}""")
        for i in range(4): a(f"ds_read_b32 v{CSN+2*i}, v{U+3} offset:{256*(1 + i//2) + 64*(i%2)}")
        for mb in range(4):
            a(f"ds_read_b128 {vr(NM+4*mb,4)}, v{U+2} offset:{512 + 64*mb}\nds_read_b128 {vr(R+4*mb,4)}, v{U+2} offset:{64*mb}")
        a(f"ds_read_b32 v{U+7}, v{U+6}")
        a("s_waitcnt vmcnt(0) lgkmcnt(0)")
        for mb in range(4): a(f"ds_read2_b32 {vr(RQ+2*mb,2)}, v{U+4} offset0:{16*mb} offset1:{128 + 16*mb}")
        for b in range(2): a(f"ds_read_b128 {vr(CSQ_+4*b,4)}, v{U+5} offset:{64*b}")
        a(f"v_readfirstlane_b32 s{S_MODE}, v{U+7}")
        for i in range(4): a(f"v_mov_b32 v{ONE+i}, 0x3f803f80")
        for mb in range(4):
            st = []
            for b in range(2):
                for h in range(2):
                    t = acc(2+b, mb) + 2*h; u = U + 2*(2*b + h)
                    st.append([f"v_pk_fma_f32 {vr(u,2)}, {vr(NM+4*mb+2*h,2)}, {vr(CSN+2*b,2)}, {eps2} op_sel_hi:[1,0,0]",
                               f"v_pk_fma_f32 {vr(t,2)}, {vr(t,2)}, {vr(R+4*mb+2*h,2)}, {vr(u,2)}"]
                              + g.phi(t, u, PK + 8*b + 2*mb + h))
            g.zipemit(st)
            st = []
            for b in range(2):
                for h in range(2):
                    t = acc(4+b, mb) + 2*h; u = U + 2*(2*b + h)
                    st.append([f"v_pk_mul_f32 {vr(u,2)}, {vr(NM+4*mb+2*h,2)}, {vr(CSN+4+2*b,2)} op_sel_hi:[1,0]",
                               f"v_pk_fma_f32 {vr(t,2)}, {vr(t,2)}, {vr(R+4*mb+2*h,2)}, {vr(u,2)}",
                               f"v_cvt_pk_bf16_f32 v{VV + 8*b + 2*mb + h}, v{t}, v{t+1}"])
            g.zipemit(st)
            if mb % 2 == 1:
                u2 = mb // 2
                for eb in range(3):
                    for db in range(2):
                        d = vr(KV + 8*eb + 4*db, 4)
                        B = vr(VV + 8*eb + 4*u2, 4) if eb < 2 else vr(ONE, 4)
                        a(f"v_mfma_f32_16x16x32_bf16 {d}, {vr(PK + 8*db + 4*u2, 4)}, {B}, {'0' if u2 == 0 else d}")
        W1 = a.uid("kvw"); W2 = a.uid("kvx")
        a(f"""s_mul_i32 s{T}, s{S_W}, 3072
        s_add_u32 s{T}, s{T}, {L_XCH}
        s_xor_b32 s{T+1}, s{S_W}, 2
        s_mul_i32 s{T+1}, s{T+1}, 3072
        s_add_u32 s{T+1}, s{T+1}, {L_XCH}
        v_lshl_add_u32 v{U}, v0, 4, s{T}
        v_lshl_add_u32 v{U+1}, v0, 4, s{T+1}
        s_lshl_b32 s{T}, s{S_L}, 20
        s_lshl_b32 s{T+1}, s{S_CB}, 16
        s_add_u32 s{T}, s{T}, s{T+1}
        s_lshl_b32 s{T+1}, s{S_WN}, 15
        s_add_u32 s{T}, s{T}, s{T+1}
        s_lshl_b32 s{T+1}, s{S_WM}, 14
        s_add_u32 s{T}, s{T}, s{T+1}
        s_lshl_b32 s{T+1}, s{S_RB}, 10
        s_add_u32 s{T}, s{T}, s{T+1}
        s_lshr_b32 s{T+1}, s{T}, 4
        s_add_u32 s{T}, s{T}, {KVP}
        s_add_u32 s{T+1}, s{T+1}, {ZP}
        v_lshlrev_b32 v{U+2}, 4, v0
        v_and_b32 v{U+3}, 15, v0
        v_cmp_eq_u32 vcc, 0, v{U+3}
        v_mov_b32 v{U+3}, {WSZ}
        v_cndmask_b32 v{U+3}, v{U+3}, v0, vcc
        s_cmp_eq_u32 s{S_WM}, 0
        s_cbranch_scc0 {W1}""")
        for wm in range(2):
            if wm == 1: a.label(W1)
            keep = [KV + 8*wm, KV + 8*wm + 4, KV + 16 + 4*wm]
            send = [KV + 8*(1-wm), KV + 8*(1-wm) + 4, KV + 16 + 4*(1-wm)]
            for i in range(3): a(f"ds_write_b128 v{U}, {vr(send[i],4)} offset:{1024*i}")
            a("s_waitcnt lgkmcnt(0)\ns_barrier")
            for i in range(3): a(f"ds_read_b128 {vr(R+4*i,4)}, v{U+1} offset:{1024*i}")
            for i in range(3):
                a(f"s_waitcnt lgkmcnt({2-i})")
                for h in range(2): a(f"v_pk_add_f32 {vr(R+4*i+2*h,2)}, {vr(R+4*i+2*h,2)}, {vr(keep[i]+2*h,2)}")
            if wm == 0: a(f"s_branch {W2}")
        a.label(W2)
        for d in range(4): a(f"v_cvt_pk_bf16_f32 v{NM+d}, v{R+2*d}, v{R+2*d+1}")
        a(f"""buffer_store_dwordx4 {vr(NM,4)}, v{U+2}, s[{SWS}:{SWS+3}], s{T} offen sc1
        buffer_store_dwordx4 {vr(R+8,4)}, v{U+3}, s[{SWS}:{SWS+3}], s{T+1} offen sc1""")
        g.stamp("c", "kvst")
        for mb in range(4):
            st = []
            for b in range(2):
                for h in range(2):
                    t = acc(b, mb) + 2*h; u = U + 2*(2*b + h)
                    st.append([f"v_pk_fma_f32 {vr(u,2)}, {vr(CSQ_+4*b+2*h,2)}, {vr(RQ+2*mb,2)}, {eps2} op_sel:[0,1,0] op_sel_hi:[1,1,0]",
                               f"v_pk_fma_f32 {vr(t,2)}, {vr(t,2)}, {vr(RQ+2*mb,2)}, {vr(u,2)} op_sel_hi:[1,0,1]"]
                              + g.phi(t, u, PQ + 4*mb + 2*b + h))
            g.zipemit(st)
        if g.ctrickle: g.job_trickle(g.ctrickle, T+4, T+6)
        a(f"""s_lshl_b32 s{T}, s{S_WN}, 11
        s_add_u32 s{T}, s{T}, {L_KVF}
        v_lshl_add_u32 v{U+1}, v0, 4, s{T}
        s_lshl_b32 s{T}, s{S_WN}, 10
        s_add_u32 s{T}, s{T}, {L_ZF}
        v_lshl_add_u32 v{U+2}, v0, 4, s{T}
        s_mul_i32 s{T}, s{S_RB}, {H_RB}
        s_and_b32 s{T+1}, s{S_CB}, 8
        s_lshl_b32 s{T+1}, s{T+1}, 1
        s_add_u32 s{T+1}, s{T+1}, s{S_CB}
        s_lshl_b32 s{T+1}, s{T+1}, {LT}
        s_add_u32 s{T}, s{T}, s{T+1}
        s_add_u32 s{T+2}, s{T}, {HB}
        s_add_u32 s{T+3}, s{T+2}, 4096""")
        g.stamp("c", "kvflag")
        if g.ctrickle: a("s_waitcnt lgkmcnt(0)")
        a(f"""s_barrier
        ds_read_b128 {vr(R+8,4)}, v{U+2}
        ds_read_b128 {vr(R,4)}, v{U+1}
        ds_read_b128 {vr(R+4,4)}, v{U+1} offset:1024""")
        g.stamp("c", "bk2")
        a("s_waitcnt lgkmcnt(2)")
        for mb in range(4): a(f"v_mfma_f32_16x16x32_bf16 {vr(acc(2,mb),4)}, {vr(R+8,4)}, {vr(PQ+4*mb,4)}, 0")
        a("s_waitcnt lgkmcnt(0)")
        for mb in range(4):
            for eb in range(2): a(f"v_mfma_f32_16x16x32_bf16 {vr(acc(eb,mb),4)}, {vr(R+4*eb,4)}, {vr(PQ+4*mb,4)}, 0")
        for mb in range(4): a(f"v_add_f32 v{acc(2,mb)}, s{S_C+2}, v{acc(2,mb)}")
        for mb in range(4): a(f"v_rcp_f32 v{acc(2,mb)}, v{acc(2,mb)}")
        ln = []
        for mb in range(4):
            for eb in range(2):
                for h in range(2):
                    t = acc(eb, mb) + 2*h
                    ln.append(f"v_pk_mul_f32 {vr(t,2)}, {vr(t,2)}, {vr(acc(2,mb),2)} op_sel_hi:[1,0]")
            for eb in range(2):
                for h in range(2):
                    t = acc(eb, mb) + 2*h
                    ln.append(f"v_cvt_pk_bf16_f32 v{acc(3,mb) + 2*eb + h}, v{t}, v{t+1}")
            ln.append(f"buffer_store_dwordx4 {vr(acc(3,mb),4)}, v{V_FS}, s[{SWS}:{SWS+3}], s{T+2+mb//2} offen offset:{2048*(mb%2)}")
        for l in ln: a(l + (" sc1" if l.startswith("buffer") else ""))
        g.signal_row(1, V_HK)
        if not g.opt.get("odef", 0): g.remote_flag(V_HK)
        g.stamp("c", "osig")

    def c_epi_g24(g):
        a = g.a
        acc = lambda nb, mb: ACC + 4*(nb*4 + mb)
        RS, BI, U, XO, B2 = 16, 32, 40, 80, 96
        NB_ = a.uid("nob"); PL = a.uid("xpl"); PC = a.uid("xpc")
        for mb in range(4):
            for b in range(2): a(f"ds_read_b64 {vr(RS+4*mb+2*b,2)}, v{V_RES+b} offset:{2048*mb}")
        a(f"""s_lshl_b32 s{T+1}, s{S_RB}, {LT+4}
        s_lshl_b32 s{T+2}, s{S_CB}, {LT}
        s_add_u32 s{T+2}, s{T+2}, s{T+1}
        s_add_u32 s{T+2}, s{T+2}, {XA}
        s_add_u32 s{T+3}, s{T+2}, 4096
        s_mul_i32 s{T+9}, s{S_G4}, 6
        s_add_u32 s{T+9}, s{T+9}, 3
        s_and_b32 s{T+4}, s{S_G4}, s{S_L}
        s_cselect_b32 s{T}, {WSZ}, 0
        v_add_u32 v{U+2}, s{T}, v{V_FS}
        s_cmp_eq_u32 s{S_G4}, 0
        s_cbranch_scc1 {NB_}
        s_lshl_b32 s{T}, s{S_WN}, 7
        s_add_u32 s{T}, s{T}, {L_B2}
        v_and_b32 v{U+1}, 48, v0
        v_add_u32 v{U+1}, s{T}, v{U+1}
        s_mov_b32 s{S_SPIN}, {SPIN}""")
        for b in range(2): a(f"ds_read_b128 {vr(B2+4*b,4)}, v{U+1} offset:{64*b}")
        g.cold.append(f"{PL}:\n" + "\n".join(g.xb_loads()) + f"\ns_branch {PC}")
        a.label(PC)
        a("s_waitcnt vmcnt(0)")
        for mb in range(4):
            p0 = V_PP + 4*mb
            if mb == 0: a(f"v_max3_u32 v{U+3}, v{p0}, v{p0+1}, v{p0+2}\nv_max_u32 v{U+3}, v{U+3}, v{p0+3}")
            else: a(f"v_max3_u32 v{U+3}, v{U+3}, v{p0}, v{p0+1}\nv_max3_u32 v{U+3}, v{U+3}, v{p0+2}, v{p0+3}")
        a(f"v_cmp_eq_u32 vcc, -1, v{U+3}")
        g.retry(PL)
        g.stamp("c", "g4pflag")
        a("s_waitcnt lgkmcnt(0)")
        def unp(src, mb, tail):
            st = []
            for b in range(2):
                for h in range(2):
                    t = acc(b, mb) + 2*h; u = BI + 2*(2*b+h); r = src + 4*mb + 2*b + h
                    st.append([f"v_lshlrev_b32 v{u}, 16, v{r}", f"v_and_b32 v{u+1}, 0xffff0000, v{r}", f"v_pk_add_f32 {vr(t,2)}, {vr(t,2)}, {vr(u,2)}", tail(t, b, h)])
            g.zipemit(st)
        for mb in range(4): unp(V_PP, mb, lambda t, b, h: f"v_pk_add_f32 {vr(t,2)}, {vr(t,2)}, {vr(B2+4*b+2*h,2)}")
        a.label(NB_)
        for mb in range(4):
            a(f"s_waitcnt lgkmcnt(6)")
            unp(RS, mb, lambda t, b, h: f"v_cvt_pk_bf16_f32 v{XO+4*mb+2*b+h}, v{t}, v{t+1}")
            a(f"buffer_store_dwordx4 {vr(XO+4*mb,4)}, v{U+2}, s[{SWS}:{SWS+3}], s{T+2+mb//2} offen offset:{2048*(mb%2)} sc1")
            for b in range(2): a(f"ds_write_b64 v{V_RES+b}, {vr(XO+4*mb+2*b,2)} offset:{2048*mb}")
        a(f"s_cmp_lg_u32 s{T+4}, 0\ns_cbranch_scc1 L_c_fin")
        df = g.opt.get("defer", 1)
        g.signal_row(f"s{T+9}", V_HK)
        if not df: g.remote_flag(V_HK)
        g.stamp("c", "xsig", True)
        a("s_waitcnt lgkmcnt(0)\ns_barrier")
        a(f"s_lshl_b32 s{T+10}, s{S_L}, 1\ns_add_u32 s{T+10}, s{T+10}, s{S_G4}\ns_add_u32 s{T+10}, s{T+10}, 1")
        g.job_stats(f"s{T+10}", store=not df)

    def c_epi_g3(g):
        a = g.a
        acc = lambda nb, mb: ACC + 4*(nb*4 + mb)
        CS, B1, RQ, U, HO = 16, 44, 72, 80, 224
        c = f"s[{S_C}:{S_C+1}]"
        a(f"""s_mov_b32 s{S_C}, {f2u(GC2):#x}
        s_mov_b32 s{S_C+1}, {f2u(GC1):#x}
        v_and_b32 v{U}, 48, v0
        v_and_b32 v{U+1}, 15, v0
        s_lshl_b32 s{T}, s{S_WM}, 8
        s_add_u32 s{T}, s{T}, {L_RSTD}
        v_lshl_add_u32 v{U+1}, v{U+1}, 2, s{T}
        s_lshl_b32 s{T+1}, s{S_WN}, 7
        s_add_u32 s{T+1}, s{T+1}, {L_CS1}
        v_add_u32 v{U+2}, s{T+1}, v{U}
        s_lshl_b32 s{T+1}, s{S_WN}, 6
        s_add_u32 s{T+1}, s{T+1}, {L_CS1 + 768}
        v_add_u32 v{U+3}, s{T+1}, v{U}""")
        for mb in range(4): a(f"ds_read2_b32 {vr(RQ+2*mb,2)}, v{U+1} offset0:{16*mb} offset1:{128 + 16*mb}")
        for nb in range(7):
            ad, off = (U+2, 256*(nb//2) + 64*(nb%2)) if nb < 6 else (U+3, 0)
            a(f"ds_read_b128 {vr(CS+4*nb,4)}, v{ad} offset:{off}\nds_read_b128 {vr(B1+4*nb,4)}, v{ad} offset:{off + L_B1 - L_CS1}")
            if nb == 3: a("s_waitcnt lgkmcnt(4)")
        a(f"""s_mul_i32 s{T}, s{S_RB}, {H_RB}
        s_add_u32 s{T}, s{T}, {HB}
        s_and_b32 s{T+1}, s{S_CB}, 7
        s_lshl_b32 s{T+1}, s{T+1}, {LT}
        s_add_u32 s{T}, s{T}, s{T+1}
        s_lshr_b32 s{T+1}, s{S_CB}, 3
        s_mul_i32 s{T+2}, s{T+1}, {24*TL}
        s_add_u32 s{T+2}, s{T+2}, s{T}
        s_add_u32 s{T+3}, s{T+2}, 4096
        s_mul_i32 s{T+4}, s{S_RB}, {H_RB}
        s_lshr_b32 s{T+1}, s{S_CB}, 1
        s_lshl_b32 s{T+1}, s{T+1}, {LT}
        s_add_u32 s{T+4}, s{T+4}, s{T+1}
        s_and_b32 s{T+1}, s{S_CB}, 1
        s_lshl_b32 s{T+1}, s{T+1}, {LK}
        s_add_u32 s{T+4}, s{T+4}, s{T+1}
        s_add_u32 s{T+4}, s{T+4}, {HB + 48*TL}
        s_mul_i32 s{T+1}, s{S_WN}, {KS - 8}
        s_sub_u32 s{T+4}, s{T+4}, s{T+1}
        s_add_u32 s{T+5}, s{T+4}, 4096""")
        def gelu(nb, mb, h, u, dst):
            t = acc(nb, mb) + 2*h
            return [f"v_pk_fma_f32 {vr(u,2)}, {vr(CS+4*nb+2*h,2)}, {vr(RQ+2*mb,2)}, {vr(B1+4*nb+2*h,2)} op_sel:[0,1,0] op_sel_hi:[1,1,1]",
                    f"v_pk_fma_f32 {vr(t,2)}, {vr(t,2)}, {vr(RQ+2*mb,2)}, {vr(u,2)} op_sel_hi:[1,0,1]",
                    f"v_pk_mul_f32 {vr(u,2)}, {vr(t,2)}, {vr(t,2)}",
                    f"v_pk_fma_f32 {vr(u,2)}, {vr(u,2)}, {c}, {c} op_sel:[0,0,1] op_sel_hi:[1,0,1]",
                    f"v_pk_mul_f32 {vr(u,2)}, {vr(u,2)}, {vr(t,2)}",
                    f"v_exp_f32 v{u}, v{u}\nv_exp_f32 v{u+1}, v{u+1}",
                    f"v_pk_add_f32 {vr(u,2)}, {vr(u,2)}, 1.0 op_sel_hi:[1,0]",
                    f"v_rcp_f32 v{u}, v{u}\nv_rcp_f32 v{u+1}, v{u+1}",
                    f"v_pk_mul_f32 {vr(t,2)}, {vr(t,2)}, {vr(u,2)}",
                    f"v_cvt_pk_bf16_f32 v{dst}, v{t}, v{t+1}"]
        k = 0
        a(f"s_and_b32 s{T+6}, s{S_CB}, 4")
        for t3 in (0, 1, 3, 2):
            if t3 == 1: a("s_waitcnt lgkmcnt(0)")
            if t3 == 3:
                for m2 in range(2):
                    o = HO + 4*(k % 4); k += 1
                    g.zipemit([gelu(6, 2*m2 + b, h, U + 4 + 2*(2*b+h), o + 2*b + h) for b in range(2) for h in range(2)])
                    for b in range(2):
                        a(f"buffer_store_dwordx2 {vr(o+2*b,2)}, v{V_FS}, s[{SWS}:{SWS+3}], s{T+4+m2} offen offset:{2048*b}")
                continue
            for mb in range(4):
                o = HO + 4*(k % 4); k += 1
                g.zipemit([gelu(2*t3 + b, mb, h, U + 4 + 2*(2*b+h), o + 2*b + h) for b in range(2) for h in range(2)])
                st = f"buffer_store_dwordx4 {vr(o,4)}, v{V_FS}, s[{SWS}:{SWS+3}], s{T+2+mb//2} offen offset:{2048*(mb%2)}"
                if t3 == 2: g.stores_by_mode([st], T+6, 4)
                else: a(st)
                if (t3, mb) == (1, g.opt.get("h0sig", 1)):
                    g.signal_row(5, V_HK, mb + 1)
                    g.stamp("c", "h0sig")
            if t3 < 2: a(f"s_add_u32 s{T+2}, s{T+2}, {8*TL}\ns_add_u32 s{T+3}, s{T+3}, {8*TL}")
        g.stamp("c", "hsig")

    def compute(g):
        a = g.a; t0, t1, t2, t3 = 16, 17, 18, 19
        a(".p2align 3")
        a.label("L_compute")
        g.stamp("c", "start")
        if g.stamps:
            a(f"v_writelane_b32 v{VST}, s92, {g.nst['c']}"); g.nst["c"] += 1; g.stn["c"].append("t00")
        a(f"""s_getpc_b64 s[{T}:{T+1}]
        L_pc:
        s_sub_u32 s{T}, s{T}, L_pc-{NAME}
        s_subb_u32 s{T+1}, s{T+1}, 0
        s_lshr_b32 s{T+2}, s2, 3
        s_lshl_b32 s{T+2}, s{T+2}, 2
        s_add_u32 s{T+2}, s{T+2}, s{S_W}
        s_lshl_b32 s{T+2}, s{T+2}, 9
        v_and_b32 v{t0}, 3, v0
        v_lshl_add_u32 v{t0}, v{t0}, 7, s{T+2}
        v_min_u32 v{t0}, L_end-{NAME}, v{t0}
        global_load_dword v{V_HK}, v{t0}, s[{T}:{T+1}]""")
        a(f"""s_lshr_b32 s{S_WM}, s{S_W}, 1
        s_and_b32 s{S_WN}, s{S_W}, 1
        v_and_b32 v{t0}, 15, v0
        v_lshrrev_b32 v{t1}, 4, v0
        v_lshrrev_b32 v{t2}, 1, v{t0}
        v_xor_b32 v{t3}, v{t2}, v{t1}
        v_lshlrev_b32 v{t3}, 4, v{t3}
        v_lshl_add_u32 v{t3}, v{t0}, 7, v{t3}
        s_lshl_b32 s{T}, s{S_WM}, 13
        v_add_u32 v{V_XA}, s{T}, v{t3}
        v_add_u32 v{V_XA}, {G1.x0}, v{V_XA}
        v_xor_b32 v{V_XA+1}, 64, v{V_XA}
        v_lshl_add_u32 v{V_XA0}, v0, 4, s{T}
        s_lshl_b32 s{T+1}, s{S_WN}, {LK}
        v_add_u32 v{V_FS}, s{T+1}, v{V_XA0}
        v_add_u32 v{V_RES}, {128 if SKIP else 0}, v{V_FS}
        v_cmp_gt_u32 vcc, 24, v0
        v_cndmask_b32 v{V_FS}, v{V_RES}, v{V_FS}, vcc
        s_lshl_b32 s{T+1}, s{S_WN}, 2
        v_lshrrev_b32 v{t3}, 5, v0
        v_add_u32 v{t3}, s{T+1}, v{t3}
        v_xor_b32 v{t3}, v{t3}, v{t2}
        v_lshlrev_b32 v{t3}, 4, v{t3}
        v_lshl_add_u32 v{t3}, v{t0}, 7, v{t3}
        v_and_b32 v{t2}, 1, v{t1}
        v_lshl_add_u32 v{t3}, v{t2}, 3, v{t3}
        s_add_u32 s{T}, s{T}, {RES}
        v_add_u32 v{V_RES}, s{T}, v{t3}
        v_xor_b32 v{V_RES+1}, 32, v{V_RES}
        v_bfe_u32 v{t0}, v0, 2, 2
        v_lshl_add_u32 v{t0}, v{t1}, 3, v{t0}
        v_bfe_u32 v{t2}, v0, 3, 2
        v_and_b32 v{t3}, 3, v0
        v_lshlrev_b32 v{t3}, 3, v{t3}
        s_lshl_b32 s{T}, s{S_WN}, 1
        v_xor_b32 v{V_WA0}, s{T}, v{t2}
        v_lshl_add_u32 v{V_WA0}, v{V_WA0}, 5, v{t3}
        v_lshl_add_u32 v{V_WA0}, v{t0}, 7, v{V_WA0}
        v_xor_b32 v{V_WA0+1}, 32, v{V_WA0}
        v_lshrrev_b32 v{t2}, 1, v{t2}
        v_xor_b32 v{t2}, s{S_WN}, v{t2}
        v_lshl_add_u32 v{t2}, v{t2}, 5, v{t3}
        v_lshl_add_u32 v{V_WA0+2}, v{t0}, 6, v{t2}
        v_cmp_eq_u32 vcc, 0, v0
        v_mov_b32 v{t0}, {WSZ}
        v_cndmask_b32 v{V_ONE}, v{t0}, 0, vcc
        s_lshl_b32 s{T}, s{S_RB}, 8
        s_lshl_b32 s{T+1}, s{S_CB}, 4
        s_add_u32 s{T}, s{T}, s{T+1}
        s_lshl_b32 s{T+1}, s{S_W}, 2
        s_add_u32 s{T}, s{T}, s{T+1}
        v_add_u32 v{V_FLG}, s{T}, v{V_ONE}""")
        a(f"""v_lshrrev_b32 v{t0}, 3, v0
        s_lshl_b32 s{T}, s{S_W}, 5
        v_add_u32 v{t0}, s{T}, v{t0}
        v_lshlrev_b32 v{t0}, 11, v{t0}
        v_lshrrev_b32 v{t1}, 4, v0
        v_and_b32 v{t2}, 7, v0
        v_xor_b32 v{t1}, v{t1}, v{t2}
        v_lshl_add_u32 v20, v{t1}, 4, v{t0}
        v_xor_b32 v21, 64, v20
        v_add_u32 v21, {8*2048 - 1024}, v21
        v_add_u32 v22, {16*2048 - 2048}, v20
        v_add_u32 v23, {16*2048 - 2048}, v21
        s_lshl_b32 s{T}, s{S_RB}, 18
        s_lshl_b32 s{T+1}, s{S_W}, 12
        s_add_u32 m0, s{T+1}, {RES}
        s_lshl_b32 s{T+2}, s{S_CB}, 7
        s_waitcnt lgkmcnt(0)""")
        g.srd(SX, P_X, 128*2048, T)
        for i in range(4): a(f"buffer_load_dwordx4 v{20+i}, s[{SX}:{SX+3}], s{T+2} offen offset:{1024*i} lds")
        a(f"""v_mov_b64 {vr(V_SEN,2)}, -1
        v_mov_b64 {vr(V_SEN+2,2)}, -1
        v_mov_b32 v{V_CS}, 0
        s_movk_i32 s{T+3}, {RXF}
        buffer_store_dword v{V_CS}, v{V_FLG}, s[{SWS}:{SWS+3}], 0 offen sc1
        buffer_store_dword v{V_CS}, v{V_FLG}, s[{SWS}:{SWS+3}], s{T+3} offen sc1
        v_lshlrev_b32 v{t1}, 2, v0
        s_lshl_b32 s{T}, s{S_CB}, 14
        s_lshl_b32 s{T+1}, s{S_RB}, 10
        s_add_u32 s{T}, s{T}, s{T+1}
        s_lshl_b32 s{T+2}, s{S_W}, 8
        s_add_u32 s{T}, s{T}, s{T+2}
        s_add_u32 s{T}, s{T}, {CSP + CSP_I}
        buffer_store_dword v{V_SEN}, v{t1}, s[{SWS}:{SWS+3}], s{T} offen sc1""")
        g.clear_kv(0, t0)
        g.boot_val()
        a("s_waitcnt vmcnt(5)")
        g.job_stats(0, store=False)
        a(f"v_mov_b32 v{V_HK}, 0")
        a(f"s_mov_b32 s{S_HOOK}, 2\ns_mov_b32 s{T+12}, {HOOKA}")
        g.stamp("c", "init")
        a.label("L_c_layer")
        g.c_g1()
        g.c_epi_g1()
        w8 = g.opt.get("w8", 1)
        a(f"s_mov_b32 s{S_G4}, 0\ns_mov_b32 s{S_LX}, {8192 if w8 else 32768}\ns_mov_b32 s{S_LW}, {24576 if w8 else 32768}")
        g.c_pre(G2, 8)
        if g.opt.get("odef", 0): g.remote_flag(V_HK)
        a.label("L_c_nb2")
        g.c_nb2()
        g.c_epi_g24()
        a(f"""s_cmp_eq_u32 s{S_G4}, 0
        s_cbranch_scc1 L_c_g3
        v_add_u32 v{V_XA}, {G1.x0}, v{V_XA0}
        v_add_u32 v{V_XA+1}, {G1.x0 + 1024}, v{V_XA0}
        s_mov_b32 s{S_L}, 1
        s_mov_b32 s{S_FB}, 16
        s_mov_b32 s{T+12}, 8
        s_branch L_c_layer""")
        a.label("L_c_g3")
        g.c_pre(G3, 8)
        if g.opt.get("defer", 1): g.deferred()
        g.c_loop(G3)
        a("s_waitcnt lgkmcnt(0)")
        g.stamp("c", "g3loop")
        g.c_epi_g3()
        a(f"s_mov_b32 s{S_G4}, 1\ns_mov_b32 s{S_LX}, 32768\ns_mov_b32 s{S_LW}, 32768")
        g.c_g4a()
        g.stamp("c", "g4send")
        a("s_branch L_c_nb2")
        a.label("L_c_fin")
        g.finish("c")

    def build(g):
        g.entry(); g.loader(); g.compute()
        for c in g.cold: g.a(c)
        g.a.label("L_end"); g.a("s_endpgm")
        rep = []
        lines = fixup.fix_hazards(g.a.lines, rep)
        lines = fixup.fix_align(lines)
        g.haz = rep
        hdr = open("cdna_kernels/" + NAME[:-7] + ".s.ref").read().split("; Override")[0]
        out = hdr + f"; @launch grid=(256,1,1) block=(512,1,1) lds={LDS_BYTES}\n"
        out += '.amdgcn_target "amdgcn-amd-amdhsa--gfx950"\n.text\n' + kernel_header(NAME) + "\n".join(lines) + "\n"
        out += '.fill 64, 4, 0xBF800000\n.section .rodata,"a"\n.p2align 6\n' + kernel_desc(NAME, 256, 256, 102)
        return out

V_FS, V_RES, V_XA, V_WA, V_XA0, V_WA0, V_ONE, V_FLG = 1, 2, 4, 6, 9, 10, 13, 14
XF, WF, ACC = 16, 80, 112
V_CS, V_SS, V_HK, V_SEN, V_L16, V_PP = 252, 253, 254, 244, 15, 192
LV_X, LV_W, LV_T = 4, 8, 16
LV_KN, LV_KF, LV_KH, LV_CH, LV_CHH, LV_TRF, LV_TRH, LV_DUM, LV_L4, LV_L16, LV_T4, LV_GA, LV_PA, LV_PV = range(24, 38)

if __name__ == "__main__":
    import argparse, json
    ap = argparse.ArgumentParser(); ap.add_argument("out"); ap.add_argument("--stamps", action="store_true"); ap.add_argument("--slow", action="store_true"); ap.add_argument("--opt", default="{}")
    ar_ = ap.parse_args()
    g = Gen(stamps=ar_.stamps, force_slow=ar_.slow, opt=eval(ar_.opt))
    txt = g.build()
    open(ar_.out, "w").write(txt)
    json.dump(g.stn, open(ar_.out + ".stamps", "w"))
    print("hazard nops:", len(g.haz))
    for h in sorted(set(g.haz)):
        if " lds" not in h[1]: print("  ", h)
```

```python
import sys, struct, math, os
from asmlib import *
import fixup

NAME = "interleave_layers__linear_attn_block__dense_activation_gelu__prompt_kernel"
MB_ = 1 << 20
ROWF = 0; RXF = 4096
STAT = 1*MB_; STAT_I = 256*1024
CSP = 2*MB_; CSP_I = 256*1024
KVP = 3*MB_; KVP_L = 1*MB_
ZP = 5*MB_; ZP_L = 64*1024
XA = 8*MB_
XB = 16*MB_
SKIP = int(os.environ.get('SKIP', 1))
LT = 15 if SKIP else 14; TL = 1 << LT; LK = 14 if SKIP else 10; KS = 1 << LK
HB = 32*MB_; H_RB = 56*TL
TS = 128*MB_
WSZ = 256*MB_
RES = 135168
L_RSTD = RES + 16384; L_NMR = L_RSTD + 512
L_CSQ = L_NMR + 512; L_CS1 = L_CSQ + 1024; L_B1 = L_CS1 + 1024
L_B2 = L_B1 + 1024
L_MODE = L_B2 + 256
L_KVF = L_MODE + 64; L_ZF = L_KVF + 4096
LDS_BYTES = L_ZF + 2048
L_XCH = 16384
assert LDS_BYTES <= 163840
XSZ = 16384
def f2u(x): return struct.unpack("<I", struct.pack("<f", x))[0]
LOG2E = 1.4426950408889634
EPS = 1e-6
GC1 = -2.0*math.sqrt(2.0/math.pi)*LOG2E
GC2 = GC1*0.044715
SPIN = 1 << 16
HOOKA = 1

S_RB, S_CB, S_XCD, S_W, S_L = 3, 4, 5, 6, 7
SX, SW, SWS, SM = 8, 12, 16, 20
P_X, P_WQKV, P_WO, P_W1, P_B1, P_W2, P_B2, P_OUT, P_DBG = 24, 26, 28, 32, 34, 36, 38, 40, 42
S_MODE, S_WM, S_WN, S_FB = 44, 45, 46, 47
T = 48
S_KX, S_KW, S_LX, S_LW, S_LH, S_LINE, S_CNT, S_SLOT, S_XSTR = 64, 65, 66, 67, 68, 69, 70, 71, 72
S_DLX, S_DLW = 73, 74
S_MASK = 76
S_PT = 78
S_COL = 80
S_TGT, S_SPIN, S_G4, S_BOOT = 84, 85, 86, 87
S_HOOK, S_ISS, S_JH = 75, 98, 99
S_TAB, S_J2, S_K24 = 100, 62, 63
S_C = 88
S_ST = 96
S_PFR, S_PFH, S_PFA, S_PFD = 88, 89, 90, 94
VST = 255

class Ph:
    def __init__(s, name, subt, NST, n, ldb, swapped):
        s.name, s.subt, s.NST, s.n, s.ldb, s.swapped = name, subt, NST, n, ldb, swapped
        s.woff = []; o = 0
        for w in subt: s.woff.append(o); o += 64*w
        if NST == 3: s.w0, s.wp, s.x0, s.xp = 0, 28672, 86016, 16384
        else: s.w0, s.wp, s.x0, s.xp = 0, 32768, 16384, 32768
        s.PW = sum(2 if w == 128 else 1 for w in subt); s.P = 4 + s.PW
        s.nblk = []
        for t, w in enumerate(subt):
            s.nblk += [(0, s.woff[t], w), (1, s.woff[t], w)] if w == 128 else [(2, s.woff[t], w)]
        s.NB = len(s.nblk)
G1 = Ph("g1", [128]*3, 3, 16, 6144, [True]*2 + [False]*4)
G3 = Ph("g3", [128]*3 + [64], 3, 16, 7168, [True]*7)
G2 = Ph("g2", [128], 4, 16, 2048, [True]*2)
G4 = Ph("g4", [128]*2, 4, 32, 2048, [True]*4)
def nsub(p, i): return 1 if (p is G4 and i >= 24) else len(p.subt)

WPTR = {G1: P_WQKV, G2: P_WO, G3: P_W1, G4: P_W2}
PFD = {G1: 2, G2: 3, G3: 2, G4: 3}

class Gen:
    def __init__(g, stamps=False, force_slow=False, opt=None):
        g.opt = opt or {}; g.cold = []
        g.a = Asm(); g.stamps = stamps; g.force_slow = force_slow
        g.nst = {"c": 0, "l": 0}; g.stn = {"c": [], "l": []}
    def stamp(g, role, name, g24=False):
        if not g.stamps: return
        if g.opt.get("minst") and not (name in ("start", "end") or (role == "c" and (name.endswith("b0") or name.endswith("loop")))): return
        k = g.nst[role]; g.nst[role] += 2 if g24 else 1; assert g.nst[role] <= 32
        g.stn[role] += ["g2" + name, "g4" + name] if g24 else [name]
        g.a(f"""s_memrealtime s[{S_ST}:{S_ST+1}]
        s_lshl_b32 m0, s{S_L}, 5
        s_add_u32 m0, m0, {k}
        {f"s_add_u32 m0, m0, s{S_G4}" if g24 else ""}
        s_waitcnt lgkmcnt(0)
        v_writelane_b32 v{VST}, s{S_ST}, m0""")
    def srd(g, d, ptr, size, off_s=None):
        a = g.a
        if off_s is None: a(f"s_mov_b32 s{d}, s{ptr}\ns_mov_b32 s{d+1}, s{ptr+1}")
        else: a(f"s_add_u32 s{d}, s{ptr}, s{off_s}\ns_addc_u32 s{d+1}, s{ptr+1}, 0")
        a(f"s_mov_b32 s{d+2}, {size}\ns_mov_b32 s{d+3}, 0x20000")
    def poll(g, voff, soff, vt, srd=SWS, first_done=False, andmask=None, acquire=True):
        a = g.a; L = a.uid("poll"); C = a.uid("pollc"); D = a.uid("polld")
        a(f"s_mov_b32 s{S_SPIN}, {SPIN}")
        if first_done: a(f"s_branch {C}")
        a.label(L)
        a(f"buffer_load_dword v{vt}, v{voff}, s[{srd}:{srd+3}], {soff} offen sc1\ns_waitcnt vmcnt(0)")
        a.label(C)
        if andmask is not None:
            a(f"v_and_b32 v{vt+1}, {andmask}, v{vt}\nv_cmp_le_u32 vcc, s{S_TGT}, v{vt+1}")
        else:
            a(f"v_cmp_le_u32 vcc, s{S_TGT}, v{vt}")
        a(f"""s_andn2_b64 s[{S_PT}:{S_PT+1}], s[{S_MASK}:{S_MASK+1}], vcc
        s_cbranch_scc0 {D}
        s_sub_u32 s{S_SPIN}, s{S_SPIN}, 1
        s_cbranch_scc0 {L}""")
        a.label(D)
        if acquire:
            E = a.uid("polle")
            a(f"s_cmp_eq_u32 s{S_MODE}, 0\ns_cbranch_scc1 {E}\nbuffer_inv sc1\ns_waitcnt vmcnt(0)")
            a.label(E)
    def signal_row(g, code, vt, cnt=0):
        a = g.a; S = a.uid("sigs"); D = a.uid("sigd")
        a(f"""s_add_u32 s{T}, s{S_FB}, {code}
        v_mov_b32 v{vt}, s{T}
        s_cmp_eq_u32 s{S_MODE}, 0
        s_waitcnt vmcnt({cnt})
        s_cbranch_scc0 {S}
        buffer_store_dword v{vt}, v{V_FLG}, s[{SWS}:{SWS+3}], 0 offen""")
        a.label(D)
        g.cold.append(f"""{S}:
        s_waitcnt vmcnt(0)
        buffer_wbl2 sc1
        s_waitcnt vmcnt(0)
        buffer_store_dword v{vt}, v{V_FLG}, s[{SWS}:{SWS+3}], 0 offen sc1
        s_branch {D}""")
    def stores_by_mode(g, lines, sreg, val):
        a = g.a; S = a.uid("sms"); D = a.uid("smd")
        a(f"s_cmp_eq_u32 s{sreg}, {val}\ns_cbranch_scc0 {S}")
        for l in lines: a(l)
        a.label(D)
        g.cold.append(f"{S}:\n" + "\n".join(l + (" sc1" if l.startswith("buffer_store") else "") for l in lines) + f"\ns_branch {D}")
    def retry(g, L):
        a = g.a; D = a.uid("rtd")
        a(f"s_cbranch_vccz {D}\ns_sub_u32 s{S_SPIN}, s{S_SPIN}, 1\ns_cbranch_scc0 {L}")
        a.label(D)

    def entry(g):
        a = g.a
        if g.stamps: a("s_memrealtime s[92:93]")
        a(f"""s_cmp_ge_u32 s2, 256
        s_cbranch_scc1 L_end
        s_load_dwordx16 s[24:39], s[0:1], 0
        s_load_dwordx4 s[40:43], s[0:1], 64
        s_load_dwordx2 s[{SWS}:{SWS+1}], s[0:1], 80
        v_lshrrev_b32 v1, 6, v0
        v_and_b32 v0, 63, v0
        v_readfirstlane_b32 s{S_W}, v1
        s_and_b32 s{S_XCD}, s2, 7
        s_lshr_b32 s{S_CB}, s2, 5
        s_and_b32 s{T}, s2, 1
        s_lshl_b32 s{T}, s{T}, 3
        s_add_u32 s{S_CB}, s{S_CB}, s{T}
        s_bfe_u32 s{S_RB}, s2, 0x20003
        s_and_b32 s{T}, s2, 6
        s_lshl_b32 s{T}, s{T}, 1
        s_add_u32 s{S_RB}, s{S_RB}, s{T}
        s_mov_b32 s{S_L}, 0
        s_mov_b32 s{S_FB}, 0
        s_mov_b32 s{S_MODE}, 1
        s_mov_b32 s{SWS+2}, {WSZ}
        s_mov_b32 s{SWS+3}, 0x20000
        v_mov_b32 v{VST}, 0
        s_cmp_ge_u32 s{S_W}, 4
        s_cbranch_scc0 L_compute
        s_sub_u32 s{S_W}, s{S_W}, 4""")

    def finish(g, role):
        a = g.a
        wv = 0 if role == "c" else 4
        a(f"""s_lshl_b32 s{T}, s{S_RB}, 18
        s_lshl_b32 s{T+1}, s{S_CB}, 7
        s_add_u32 s{T+1}, s{T+1}, s{T}
        s_add_u32 s{T+2}, s{S_W}, {wv}
        s_lshl_b32 s{T+3}, s{T+2}, 15
        s_add_u32 s{T+1}, s{T+1}, s{T+3}
        s_lshl_b32 s{T+2}, s{T+2}, 11
        s_add_u32 s{T+2}, s{T+2}, {RES}""")
        g.srd(SM, P_OUT, 2048*2048)
        a(f"""v_lshrrev_b32 v20, 3, v0
        v_and_b32 v21, 7, v0
        v_lshlrev_b32 v22, 11, v20
        v_lshl_add_u32 v22, v21, 4, v22
        v_lshrrev_b32 v23, 4, v0
        v_xor_b32 v21, v21, v23
        v_lshlrev_b32 v21, 4, v21
        v_lshl_add_u32 v21, v20, 7, v21
        v_add_u32 v21, s{T+2}, v21
        v_xor_b32 v20, 64, v21
        v_add_u32 v23, 16384, v22
        s_waitcnt lgkmcnt(0)
        s_barrier
        ds_read_b128 v[24:27], v21
        ds_read_b128 v[28:31], v20 offset:1024
        s_waitcnt lgkmcnt(1)
        buffer_store_dwordx4 v[24:27], v22, s[{SM}:{SM+3}], s{T+1} offen {g.opt.get("ofl", "")}
        s_waitcnt lgkmcnt(0)
        buffer_store_dwordx4 v[28:31], v23, s[{SM}:{SM+3}], s{T+1} offen {g.opt.get("ofl", "")}""")
        if g.stamps:
            a("s_waitcnt vmcnt(0)")
            g.stamp(role, "end")
            if g.opt.get("echo") and role == "c":
                (l0, n0), (l1, n1), k = g.opt["echo"]
                E = a.uid("echo")
                a(f"""v_readlane_b32 s{T+4}, v{VST}, {32*l0 + g.stn['c'].index(n0)}
                v_readlane_b32 s{T+5}, v{VST}, {32*l1 + g.stn['c'].index(n1)}
                s_nop 3
                s_sub_u32 s{T+4}, s{T+5}, s{T+4}
                s_mul_i32 s{T+4}, s{T+4}, {k}
                s_min_u32 s{T+4}, s{T+4}, 20000
                s_mov_b32 s{T+5}, s{S_ST}
                {E}:
                s_memrealtime s[{S_ST}:{S_ST+1}]
                s_waitcnt lgkmcnt(0)
                s_sub_u32 s{T+6}, s{S_ST}, s{T+5}
                s_cmp_lt_u32 s{T+6}, s{T+4}
                s_cbranch_scc1 {E}""")
            a(f"""s_lshl_b32 s{T}, s2, 3
            s_add_u32 s{T}, s{T}, s{S_W}
            s_add_u32 s{T}, s{T}, {wv}
            s_lshl_b32 s{T}, s{T}, 8
            s_add_u32 s{T}, s{T}, {TS}
            v_lshlrev_b32 v20, 2, v0
            buffer_store_dword v{VST}, v20, s[{SWS}:{SWS+3}], s{T} offen""")
        a("s_endpgm")

    def l_setup_w(g, p, natural=False):
        a = g.a; t0, t1, t2 = LV_T, LV_T+1, LV_T+2
        a(f"s_mov_b32 s{T+1}, {p.ldb}")
        krow = LV_KN if natural else LV_KF
        a(f"""v_mul_lo_u32 v{t0}, v{krow}, s{T+1}
        v_add_u32 v{t0}, v{t0}, v{LV_CH}
        v_xor_b32 v{t1}, 64, v{t0}
        v_add_u32 v{t1}, {(8 if natural else 4)*p.ldb - 1024}, v{t1}""")
        r = LV_W
        for t, w in enumerate(p.subt):
            if w == 128:
                a(f"v_add_u32 v{r}, s{S_COL+t}, v{t0}\nv_add_u32 v{r+1}, s{S_COL+t}, v{t1}"); r += 2
            else:
                a(f"v_mul_lo_u32 v{t2}, v{LV_KH}, s{T+1}\nv_add3_u32 v{r}, v{t2}, v{LV_CHH}, s{S_COL+t}"); r += 1
    def l_issue_x(g, p, i):
        a = g.a
        a(f"s_add_u32 m0, s{S_LX}, {p.x0 + (i % p.NST)*p.xp}")
        for k in range(4):
            a(f"buffer_load_dwordx4 v{LV_X+k}, s[{SX}:{SX+3}], s{S_KX} offen offset:{1024*k} sc1 lds")
        return 4
    def l_issue_w(g, p, i):
        a = g.a; r = LV_W
        for t, w in enumerate(p.subt[:nsub(p, i)]):
            wb = ((i % 8) >> 1)*p.wp + (i & 1)*8192 if (p is G2 and g.opt.get("w8", 1)) else p.w0 + (i % p.NST)*p.wp
            a(f"s_add_u32 m0, s{S_LW if w == 128 else S_LH}, {wb + p.woff[t]}")
            for q in range(2 if w == 128 else 1):
                a(f"buffer_load_dwordx4 v{r}, s[{SW}:{SW+3}], s{S_KW} offen offset:{1024*q} lds"); r += 1
        return r - LV_W
    def kline(g, p, d, i):
        a = g.a
        if p is not G4: a(f"s_bfe_u32 s{d}, s{S_TAB + i//8}, {(4 << 16) | (4*(i % 8)):#x}")
        elif i < 16:
            a(f"s_add_u32 s{d}, s{S_J2}, {i}\ns_and_b32 s{d}, s{d}, 7\ns_add_u32 s{d}, s{d}, s{S_K24}")
            if i & 8: a(f"s_add_u32 s{d}, s{d}, 8")
        else:
            a(f"s_add_u32 s{d}, s{S_J2}, {2*i}\ns_and_b32 s{d}, s{d}, 6")
            if 20 <= i < 24: return
            a(f"s_lshr_b32 s{d}, s{d}, 1")
            if i < 28: a(f"s_add_u32 s{d}, s{d}, s{S_K24}\ns_add_u32 s{d}, s{d}, {20 if i < 20 else 16}")
            else: a(f"s_sub_u32 s{d}, s{d}, s{S_K24}\ns_add_u32 s{d}, s{d}, 40")
    def wrow(g, p, d, i):
        a = g.a
        a(f"s_lshl_b32 s{d}, s{d}, 6")
        if p is G4 and 20 <= i < 24:
            a(f"s_and_b32 s{T+1}, s{S_CB}, 8\ns_lshl_b32 s{T+1}, s{T+1}, 2\ns_add_u32 s{d}, s{d}, s{T+1}\ns_add_u32 s{d}, s{d}, {48*64}")
    def l_line(g, p, i, x=True, w=True):
        a = g.a
        g.kline(p, S_LINE, i)
        virt = p is G4 and 20 <= i < 24
        if x:
            if p is G1: a(f"s_mul_i32 s{S_KX}, s{S_LINE}, s{S_XSTR}")
            elif p is G2: a(f"s_and_b32 s{T+1}, s{S_LINE}, 8\ns_lshl_b32 s{T+1}, s{T+1}, 1\ns_add_u32 s{S_KX}, s{S_LINE}, s{T+1}\ns_lshl_b32 s{S_KX}, s{S_KX}, {LT}")
            elif virt: a(f"s_and_b32 s{T+1}, s{S_CB}, 8\ns_add_u32 s{S_KX}, s{S_LINE}, s{T+1}\ns_lshl_b32 s{S_KX}, s{S_KX}, {LT-1}\ns_add_u32 s{S_KX}, s{S_KX}, {48*TL}")
            else: a(f"s_lshl_b32 s{S_KX}, s{S_LINE}, {LT}")
        if w:
            g.wrow(p, S_LINE, i)
            if virt: a(f"s_and_b32 s{T+1}, s{S_W}, 2\ns_lshl_b32 s{T+1}, s{T+1}, 4\ns_add_u32 s{S_LINE}, s{S_LINE}, s{T+1}")
            a(f"s_mul_i32 s{S_KW}, s{S_LINE}, {p.ldb}")
    def tab_first(g):
        g.a(f"""s_mov_b32 s{T}, 0x76543210
        s_mov_b32 s{T+1}, 0xfedcba98
        s_lshl_b32 s{T+4}, s{S_J2}, 3
        s_lshr_b64 s[{S_TAB}:{S_TAB+1}], s[{T}:{T+1}], s{T+4}
        s_sub_u32 s{T+4}, 64, s{T+4}
        s_lshl_b64 s[{T}:{T+1}], s[{T}:{T+1}], s{T+4}
        s_or_b64 s[{S_TAB}:{S_TAB+1}], s[{S_TAB}:{S_TAB+1}], s[{T}:{T+1}]
        s_and_b32 s{T}, s{S_RB}, 3
        s_mul_i32 s{T}, s{T}, 0x1111
        s_xor_b32 s{S_TAB}, s{S_TAB}, s{T}""")
    def tab_local(g):
        g.a(f"""s_mov_b32 s{T}, 0x76543210
        s_mov_b32 s{T+1}, 0x76543210
        s_lshl_b32 s{T+4}, s{S_J2}, 2
        s_lshr_b64 s[{T}:{T+1}], s[{T}:{T+1}], s{T+4}
        s_cmp_ge_u32 s{S_CB}, 8
        s_cselect_b32 s{T+1}, 0x88888888, 0
        s_or_b32 s{S_TAB}, s{T}, s{T+1}
        s_xor_b32 s{S_TAB+1}, s{S_TAB}, 0x88888888""")
    def l_cols(g, p):
        a = g.a
        if p is G1:
            a(f"s_lshl_b32 s{S_COL}, s{S_CB}, 7\ns_add_u32 s{S_COL+1}, s{S_COL}, 2048\ns_add_u32 s{S_COL+2}, s{S_COL}, 4096")
        elif p is G3:
            a(f"""s_and_b32 s{T}, s{S_CB}, 7
            s_lshl_b32 s{T}, s{T}, 7
            s_lshr_b32 s{T+1}, s{S_CB}, 3
            s_mul_i32 s{S_COL}, s{T+1}, 3072
            s_add_u32 s{S_COL}, s{S_COL}, s{T}
            s_add_u32 s{S_COL+1}, s{S_COL}, 1024
            s_add_u32 s{S_COL+2}, s{S_COL}, 2048
            s_lshl_b32 s{T+1}, s{T+1}, 6
            s_add_u32 s{S_COL+3}, s{T}, s{T+1}
            s_add_u32 s{S_COL+3}, s{S_COL+3}, 6144""")
        else:
            a(f"s_lshl_b32 s{S_COL}, s{S_CB}, 7\ns_xor_b32 s{S_COL+1}, s{S_COL}, 1024")
    def l_next_setup(g, p):
        g.srd(SW, WPTR[p], {G1: 1024*6144, G2: 1024*2048, G3: 1024*7168, G4: 3584*2048}[p])
        g.l_cols(p); g.l_setup_w(p)
    def l_xsrd(g, xbase, xrb):
        g.a(f"s_mul_i32 s{T}, s{S_RB}, {xrb}\ns_add_u32 s{T}, s{T}, {xbase}")
        g.srd(SX, SWS, xrb, T)
    def l_pf(g, p, i):
        a = g.a; wp = WPTR[p]
        g.kline(p, T, i); g.wrow(p, T, i)
        a(f"s_add_u32 s{T}, s{T}, s{S_PFR}")
        if p is G4 and 20 <= i < 24: a(f"s_and_b32 s{T+1}, s{S_PFR}, 32\ns_add_u32 s{T}, s{T}, s{T+1}")
        a(f"s_mul_i32 s{T}, s{T}, {p.ldb}\ns_add_u32 s{T}, s{T}, s{S_PFH}")
        if p is G3 or nsub(p, i) == 2:
            a(f"s_add_u32 s{S_PFA}, s{wp}, s{T}\ns_addc_u32 s{S_PFA+1}, s{wp+1}, 0")
            for o in ([51*128] if p is G3 else [384, 1408]): a(f"s_load_dword s{S_PFD}, s[{S_PFA}:{S_PFA+1}], {o}")
        if nsub(p, i) != 2:
            a(f"""s_and_b32 s{T+1}, s{S_CB}, 8
            s_mul_i32 s{T+1}, s{T+1}, {384 if p is G3 else 128}
            s_add_u32 s{T}, s{T}, s{T+1}
            s_add_u32 s{S_PFA+2}, s{wp}, s{T}
            s_addc_u32 s{S_PFA+3}, s{wp+1}, 0""")
            for t in range(min(3, nsub(p, i))): a(f"s_load_dword s{S_PFD}, s[{S_PFA+2}:{S_PFA+3}], {384 + t*(2048 if p is G1 else 1024)}")
    def rows_target(g, code, own=True):
        g.a(f"""s_add_u32 s{S_TGT}, s{S_FB}, {code}
        s_cmp_{'ge' if own else 'lt'}_u32 s{S_CB}, 8
        s_cselect_b32 s{S_MASK}, 0, -1
        s_cselect_b32 s{S_MASK+1}, -1, 0""")
    def l_wait_rows(g, code):
        g.rows_target(code)
        g.poll(LV_PA, "0", LV_PV)
    def flag_jobs(g, add, s_issue, s_check, code, own, name, skip_l0=False):
        a = g.a; so = "0" if own else f"s{T+4}"
        def issue(q):
            if not own: a(f"s_movk_i32 s{T+4}, {RXF}")
            a(f"buffer_load_dword v{LV_PV}, v{LV_PA}, s[{SWS}:{SWS+3}], {so} offen sc1"); q.append(s_check)
        def check(q):
            D = a.uid("fc")
            if skip_l0: a(f"s_cmp_eq_u32 s{S_L}, 0\ns_cbranch_scc1 {D}")
            g.rows_target(code, own)
            if not own: a(f"s_movk_i32 s{T+4}, {RXF}")
            g.poll(LV_PA, so, LV_PV, first_done=True, acquire=own)
            a.label(D)
            g.stamp("l", name)
        add((s_issue, "pre"), issue); add((s_check, "pre"), check)
    def l_main(g, p, q0=None, nxt=None, cond_nxt=None):
        a = g.a; N, n = p.NST, p.n
        jobs = g.jobs(p)
        def run(key):
            for f in jobs.get(key, []): f(q)
        if q0 is None:
            q = []
            for s in range(N - 1):
                g.l_line(p, s, w=False); q += [s]*g.l_issue_x(p, s)
        else: q = list(q0)
        w8 = p is G2 and g.opt.get("w8", 1)
        fill = g.opt.get("fill", 1) and q0 is None
        if fill:
            g.l_line(p, N - 1); q += [N - 1]*(g.l_issue_x(p, N - 1) + (0 if w8 else g.l_issue_w(p, N - 1)))
        def wait(s):
            last = max(i for i, t in enumerate(q) if t == s)
            assert len(q) - 1 - last <= 63
            a(f"s_waitcnt vmcnt({len(q) - 1 - last})")
            nc = q[last:].count(-2)
            if nc:
                S = a.uid("wc")
                a(f"s_cmp_eq_u32 s{S_L}, 0\ns_cbranch_scc1 {S}\ns_waitcnt vmcnt({len(q) - 1 - last - nc})")
                a.label(S)
        g.qwait = wait
        if N == 3: ra = {n: list(range(g.opt.get("w8a", 4))) if (nxt is G2 and g.opt.get("w8", 1)) else [1, 2, 0]}
        else:
            e = g.opt.get("early", 3)
            ra = {n - e: [0], n - e + 1: [1]} if e else {n: [0, 1]}
        def runahead(s):
            if s not in ra and s != n: return
            if cond_nxt:
                S = a.uid("ra"); a(f"s_cmp_lg_u32 s{S_L}, 0\ns_cbranch_scc1 {S}")
            if s == min(ra): g.l_next_setup(nxt)
            for t in ra.get(s, []):
                g.l_line(nxt, t, x=False)
                q.extend([-2 if cond_nxt else -1]*g.l_issue_w(nxt, t))
            if s == n:
                k0 = 8 if (nxt is G2 and g.opt.get("w8", 1)) else nxt.NST - 1
                for k in range(k0, max(k0, nxt.NST - 1 + PFD[nxt])): g.l_pf(nxt, k)
            if cond_nxt: a.label(S)
        for s in range(n):
            i = s + N - 1
            skip = s == 0 and (fill or (p is G1 and g.opt.get("fill", 1)))
            if i < n and not skip: g.l_line(p, i, w=not (w8 and i < 8))
            wait(s); a("s_barrier")
            if g.opt.get("stepst") == p.name and s < 16: g.stamp("l", f"s{s}")
            run((s, "pre"))
            if skip and p is G1:
                S = a.uid("f0"); a(f"s_cmp_lg_u32 s{S_L}, 0\ns_cbranch_scc1 {S}")
                g.l_line(p, i); q += [i]*(g.l_issue_x(p, i) + g.l_issue_w(p, i))
                a.label(S)
            if i < n and not skip: q += [i]*(g.l_issue_x(p, i) + (0 if (w8 and i < 8) else g.l_issue_w(p, i)))
            k = i + PFD[p]
            if k < n:
                if not (w8 and k < 8): g.l_pf(p, k)
            elif N == 4 and k - n < 2: g.l_pf(nxt, k - n)
            run((s, "post"))
            runahead(s)
        a("s_waitcnt lgkmcnt(0)\ns_barrier")
        run((n, "pre"))
        runahead(n)
        run((n, "post"))

    def job_colsum(g, p, s, u, q):
        a = g.a; D = a.uid("csd"); Hf = a.uid("csh"); St = a.uid("css")
        F, A0, ONE, U = 64, 96, 112, LV_T
        base = p.w0 + (s % p.NST)*p.wp
        if u is None: a(f"s_cmp_lg_u32 s{S_L}, 0\ns_cbranch_scc1 {D}")
        else: a(f"s_and_b32 s{T}, s{S_RB}, 3\ns_add_u32 s{T}, s{T}, s{S_FB}\ns_cmp_lg_u32 s{T}, {u}\ns_cbranch_scc1 {D}")
        for i in range(4): a(f"v_mov_b32 v{ONE+i}, 0x3f803f80")
        if p is G3: a(f"s_cmp_eq_u32 s{S_W}, 3\ns_cbranch_scc1 {Hf}")
        a(f"s_lshl_b32 s{T}, s{S_W}, 13\ns_add_u32 s{T}, s{T}, {base}\nv_add_u32 v{U}, s{T}, v{LV_TRF}")
        def blk(nseg, w):
            for seg in range(nseg):
                a(f"v_xor_b32 v{U+1}, {32*seg}, v{U}")
                for kk in range(2):
                    for h in range(2):
                        a(f"ds_read_b64_tr_b16 {vr(F+seg*8+kk*4+h*2,2)}, v{U+1} offset:{(32*kk+4*h)*w}")
            a("s_waitcnt lgkmcnt(0)")
            for seg in range(nseg):
                for kk in range(2):
                    a(f"v_mfma_f32_16x16x32_bf16 {vr(A0+4*seg,4)}, {vr(ONE,4)}, {vr(F+seg*8+kk*4,4)}, {'0' if kk == 0 else vr(A0+4*seg,4)}")
        blk(4, 128)
        if p is G3:
            a(f"s_branch {St}")
            a.label(Hf)
            a(f"v_add_u32 v{U}, {base + p.woff[3]}, v{LV_TRH}\nv_mov_b32 v{A0+8}, 0\nv_mov_b32 v{A0+12}, 0")
            blk(2, 64)
            a.label(St)
        a(f"""s_lshl_b32 s{T}, s{S_CB}, 14
        s_lshl_b32 s{T+1}, s{S_RB}, 10
        s_add_u32 s{T}, s{T}, s{T+1}
        s_add_u32 s{T}, s{T}, {CSP + (CSP_I if p is G3 else 0)}
        v_cmp_gt_u32 vcc, 16, v0
        s_nop 5
        v_cndmask_b32 v{A0}, v{A0+4}, v{A0}, vcc
        v_cmp_gt_u32 vcc, 48, v0
        v_cndmask_b32 v{A0+8}, v{A0+12}, v{A0+8}, vcc
        v_cmp_gt_u32 vcc, 32, v0
        v_cndmask_b32 v{A0}, v{A0+8}, v{A0}, vcc
        buffer_store_dword v{A0}, v{LV_T4}, s[{SWS}:{SWS+3}], s{T} offen sc1""")
        a.label(D)
        if u is None: q.append(-2)
    def job_stats(g, inst, store=True):
        a = g.a; F = 16; U = 32; SQ = 36
        a(f"""v_bfe_u32 v{U}, v0, 2, 2
        v_lshlrev_b32 v{U}, 4, v{U}
        v_lshl_add_u32 v{U}, v0, 6, v{U}
        s_lshl_b32 s{T}, s{S_W}, 12
        s_add_u32 s{T}, s{T}, {RES}
        v_add_u32 v{U}, s{T}, v{U}""")
        for i in range(4):
            a(f"v_xor_b32 v{U+1}, {16*i}, v{U}\nds_read_b128 {vr(F+4*i,4)}, v{U+1}")
        for i in range(4): a(f"v_mov_b32 v{SQ+i}, 0")
        a(f"""s_mov_b32 s{T+2}, 0x3f803f80
        s_lshl_b32 s{T}, {inst}, 18
        s_lshl_b32 s{T+1}, s{S_RB}, 14
        s_add_u32 s{T}, s{T}, s{T+1}
        s_lshl_b32 s{T+1}, s{S_CB}, 10
        s_add_u32 s{T}, s{T}, s{T+1}
        s_lshl_b32 s{T+1}, s{S_W}, 8
        s_add_u32 s{T}, s{T}, s{T+1}
        s_add_u32 s{T}, s{T}, {STAT}""")
        for i in range(16):
            if i % 4 == 0: a(f"s_waitcnt lgkmcnt({3 - i//4})")
            a(f"v_dot2c_f32_bf16 v{SQ + i%2}, s{T+2}, v{F+i}\nv_dot2c_f32_bf16 v{SQ + 2 + i%2}, v{F+i}, v{F+i}")
        a(f"""v_and_b32 v{U}, 1, v0
        v_cmp_eq_u32 vcc, 0, v{U}
        v_lshlrev_b32 v{U}, 2, v0
        v_add_f32 v{SQ}, v{SQ}, v{SQ+1}
        v_add_f32 v{SQ+2}, v{SQ+2}, v{SQ+3}
        v_add_f32_dpp v{SQ+1}, v{SQ}, v{SQ} quad_perm:[1,0,3,2] row_mask:0xf bank_mask:0xf
        v_add_f32_dpp v{SQ+3}, v{SQ+2}, v{SQ+2} quad_perm:[1,0,3,2] row_mask:0xf bank_mask:0xf
        v_cndmask_b32 v{V_SS}, v{SQ+3}, v{SQ+1}, vcc""")
        if store: a(f"buffer_store_dword v{V_SS}, v{U}, s[{SWS}:{SWS+3}], s{T} offen sc1")
        else: a(f"s_mov_b32 s{T+13}, s{T}")
    def job_boot_issue(g, q):
        a = g.a; D = a.uid("jpd")
        a(f"s_cmp_lg_u32 s{S_L}, 0\ns_cbranch_scc1 {D}")
        g.srd(SM, P_DBG, 256)
        a(f"buffer_load_dword v{LV_PV}, v{LV_L4}, s[{SM}:{SM+3}], 0 offen sc1")
        a.label(D); q.append(-2)
    def gather_loads(g, p):
        a = g.a; E = a.uid("jge")
        a(f"""s_lshl_b32 s{T}, s{S_L}, 19
        s_lshl_b32 s{T+1}, s{S_RB}, 14
        s_add_u32 s{T}, s{T}, s{T+1}
        s_add_u32 s{T}, s{T}, {STAT + (STAT_I if p is G3 else 0)}""")
        for i in range(4):
            a(f"buffer_load_dwordx4 {vr(64+4*i,4)}, v{LV_GA}, s[{SWS}:{SWS+3}], s{T} offen offset:{1024*i} sc1")
        a(f"""s_cmp_lg_u32 s{S_L}, 0
        s_cbranch_scc1 {E}
        s_lshl_b32 s{T}, s{S_CB}, 14
        s_add_u32 s{T}, s{T}, {CSP + (CSP_I if p is G3 else 0)}""")
        for i in range(4):
            a(f"buffer_load_dwordx4 {vr(80+4*i,4)}, v{LV_GA}, s[{SWS}:{SWS+3}], s{T} offen offset:{1024*i} sc1")
        a.label(E)
    def job_gather(g, p, q):
        a = g.a; D = a.uid("jgd")
        a(f"s_cmp_lg_u32 s{S_L}, 0\ns_cbranch_scc1 {D}")
        if p is G1:
            g.srd(SM, P_DBG, 256)
            a(f"s_mov_b32 s{S_TGT}, 32\ns_mov_b32 s{S_MASK}, 0x01010101\ns_mov_b32 s{S_MASK+1}, 0x01010101")
            g.poll(LV_L4, "0", LV_PV, srd=SM, first_done=True, andmask=63, acquire=False)
            a(f"""s_lshl_b32 s{T}, s{S_XCD}, 3
            s_lshl_b32 s{T+1}, s{S_BOOT}, 5
            v_readlane_b32 s{T+2}, v{LV_PV}, s{T}
            s_cmp_lg_u32 s{T+2}, s{T+1}
            s_cselect_b32 s{S_MODE}, 1, {1 if g.force_slow else 0}
            v_mov_b32 v{LV_T}, {L_MODE}
            v_mov_b32 v{LV_T+1}, s{S_MODE}
            ds_write_b32 v{LV_T}, v{LV_T+1}""")
        else:
            g.srd(SM, P_B1, 3584*2)
            a(f"""s_cmp_eq_u32 s{S_W}, 1
            s_cselect_b32 s{T}, s{S_COL+1}, s{S_COL}
            s_cmp_eq_u32 s{S_W}, 2
            s_cselect_b32 s{T}, s{S_COL+2}, s{T}
            s_cmp_eq_u32 s{S_W}, 3
            s_cselect_b32 s{T}, s{S_COL+3}, s{T}
            v_lshlrev_b32 v{LV_T}, 1, v0
            buffer_load_ushort v96, v{LV_T}, s[{SM}:{SM+3}], s{T} offen""")
            g.srd(SM, P_B2, 2048)
            a(f"s_lshl_b32 s{T}, s{S_CB}, 7\nbuffer_load_ushort v97, v{LV_T}, s[{SM}:{SM+3}], s{T} offen")
            q += [-2]*2
        a.label(D)
        g.gather_loads(p)
        q += [-1]*4 + [-2]*4
        g.gpos = len(q)
    def job_reduce(g, p, q):
        a = g.a; E = a.uid("jre"); R = a.uid("jrr"); C = a.uid("jrc"); N0 = a.uid("jrn")
        def tree(b):
            for st in (8, 4):
                for i in range(0, st, 2): a(f"v_pk_add_f32 {vr(b+i,2)}, {vr(b+i,2)}, {vr(b+st+i,2)}")
            for sw in ("16", "32"):
                a(f"v_mov_b64 {vr(b+4,2)}, {vr(b,2)}\nv_mov_b64 {vr(b+6,2)}, {vr(b+2,2)}")
                for i in range(4): a(f"v_permlane{sw}_swap_b32 v{b+i}, v{b+4+i}")
                for i in (0, 2): a(f"v_pk_add_f32 {vr(b+i,2)}, {vr(b+i,2)}, {vr(b+4+i,2)}")
        young = q[g.gpos:]
        a(f"""s_mov_b32 s{S_SPIN}, {SPIN}
        s_waitcnt vmcnt({len(young)})
        s_cmp_eq_u32 s{S_L}, 0
        s_cbranch_scc1 {C}
        s_waitcnt vmcnt({len(young) - young.count(-2)})""")
        a.label(C)
        keep, g.a = g.a, Asm(); g.a._uid = keep._uid + 1000
        g.a.label(R); g.gather_loads(p); g.a(f"s_waitcnt vmcnt(0)\ns_branch {C}")
        g.cold.append(g.a.text()); g.a = keep
        tree(64)
        a(f"v_pk_add_f32 v[98:99], v[64:65], v[66:67]\ns_cmp_lg_u32 s{S_L}, 0\ns_cbranch_scc1 {N0}")
        tree(80)
        if p is G3: a("v_pk_add_f32 v[98:99], v[98:99], v[80:81]\nv_pk_add_f32 v[98:99], v[98:99], v[82:83]")
        a.label(N0)
        a("v_cmp_u_f32 vcc, v98, v99")
        g.retry(R)
        a(f"""s_mov_b32 s{T+2}, {f2u(1/1024):#x}
        v_pk_mul_f32 v[64:65], v[64:65], s[{T+2}:{T+3}] op_sel_hi:[1,0]
        v_pk_mul_f32 v[66:67], v[66:67], s[{T+2}:{T+3}] op_sel_hi:[1,0]
        v_fma_f32 v68, -v64, v64, v65
        v_fma_f32 v69, -v66, v66, v67
        v_max_f32 v68, 0, v68
        v_max_f32 v69, 0, v69
        v_add_f32 v68, {f2u(1e-5):#x}, v68
        v_add_f32 v69, {f2u(1e-5):#x}, v69
        v_rsq_f32 v68, v68
        v_rsq_f32 v69, v69
        v_and_b32 v72, 15, v0
        s_lshl_b32 s{T}, s{S_W}, 7
        s_add_u32 s{T}, s{T}, {L_RSTD}
        v_lshl_add_u32 v73, v72, 3, s{T}
        v_mul_f32 v70, -v64, v68
        v_mul_f32 v71, -v66, v69
        ds_write_b64 v73, v[68:69]
        ds_write_b64 v73, v[70:71] offset:512
        s_cmp_lg_u32 s{S_L}, 0
        s_cbranch_scc1 {E}
        s_lshl_b32 s{T}, s{S_W}, 8
        s_add_u32 s{T}, s{T}, {L_CSQ if p is G1 else L_CS1}
        v_lshl_add_u32 v73, v72, 4, s{T}
        ds_write_b128 v73, v[80:83]""")
        if p is G3:
            a(f"""v_add_u32 v71, {L_B1}, v{LV_T4}
            v_lshlrev_b32 v96, 16, v96
            ds_write_b32 v71, v96
            v_lshlrev_b32 v97, 16, v97
            v_add_u32 v71, {L_B2}, v{LV_L4}
            ds_write_b32 v71, v97""")
        a.label(E)
    def job_clears(g, q):
        a = g.a; D = a.uid("jc")
        g.clear_xb(LV_T); q += [-1]*4
        a(f"s_cmp_lg_u32 s{S_L}, 0\ns_cbranch_scc1 {D}")
        g.clear_kv(1, LV_T)
        a(f"s_lshl_b32 s{T}, s{S_RB}, 14\ns_lshl_b32 s{T+1}, s{S_CB}, 10\ns_add_u32 s{T}, s{T}, s{T+1}\ns_add_u32 s{T}, s{T}, {STAT}")
        for i in range(1, 4):
            a(f"s_add_u32 s{T}, s{T}, {STAT_I}\nbuffer_store_dword v{V_SEN}, v{LV_T4}, s[{SWS}:{SWS+3}], s{T} offen sc1")
        a.label(D); q += [-2]*5
    def job_trickle(g, items, S_PFA=S_PFA, S_PFD=S_PFD):
        a = g.a; D = a.uid("jt")
        a(f"s_cmp_lg_u32 s{S_L}, 0\ns_cbranch_scc1 {D}\ns_lshl_b32 s{T}, s2, 2\ns_add_u32 s{T}, s{T}, s{S_W}")
        cur = None
        for ptr, sec in items:
            if ptr != cur:
                cur = ptr
                a(f"""s_mul_i32 s{T+1}, s{T}, {2048 if ptr == P_WO else 7168}
                s_add_u32 s{S_PFA}, s{ptr}, s{T+1}
                s_addc_u32 s{S_PFA+1}, s{ptr+1}, 0""")
            a(f"s_load_dword s{S_PFD}, s[{S_PFA}:{S_PFA+1}], {64*sec}")
        a.label(D)
    def job_wtouch(g, ptr, first, q):
        a = g.a; D = a.uid("jw")
        per = 2048 if ptr == P_WO else 7168
        a(f"s_cmp_lg_u32 s{S_L}, 0\ns_cbranch_scc1 {D}")
        g.srd(SM, ptr, 1024*per)
        a(f"""s_lshl_b32 s{T}, s2, 2
        s_add_u32 s{T}, s{T}, s{S_W}
        s_mul_i32 s{T}, s{T}, {per}
        s_add_u32 s{T}, s{T}, {128*first}
        v_min_u32 v{LV_T}, {per//128 - 1 - first}, v0
        v_lshlrev_b32 v{LV_T}, 7, v{LV_T}
        buffer_load_dword v{LV_DUM}, v{LV_T}, s[{SM}:{SM+3}], s{T} offen""")
        a.label(D); q.append(-2)
    def jobs(g, p):
        a = g.a; J = {}
        def add(key, fn): J.setdefault(key, []).append(fn)
        if p is G2:
            g.flag_jobs(add, g.opt.get("g2p", 4), 5, 1, False, "orem")
            return J
        if p is G4:
            g.flag_jobs(add, 4, 5, 7, True, "hall")
            g.flag_jobs(add, 19, 21, 7, False, "hrem")
            return J
        add((14, "pre"), lambda q: g.job_gather(p, q))
        g.flag_jobs(add, 5, 6, 3 if p is G3 else -7, False, p.name + "rem", skip_l0=p is G1)
        if p is G1:
            add((0, "post"), lambda q: g.job_colsum(G1, 0, None, q))
            add((12, "pre"), g.job_boot_issue)
            add((14, "post"), lambda q: (g.job_clears(q), g.tab_local()))
        else:
            for u, st in enumerate((0, 1, 8, 9)): add((st, "post"), lambda q, u=u, st=st: g.job_colsum(G3, st, u, q))
        ntr = g.opt.get("tr1" if p is G1 else "tr3", 4); t0 = g.opt.get("tr0", 2) if p is G1 else 0
        secs = ([(P_WO, k) for k in range(32)] if p is G1 else []) + [(P_W1 if p is G1 else P_W2, k) for k in range(112)]
        for st in range(t0, 14):
            it, secs = secs[:ntr], secs[ntr:]
            if it: add((st, "post"), lambda q, it=it: g.job_trickle(it))
        if p is G1:
            it, secs = secs[:g.opt.get("trl", 0)], secs[g.opt.get("trl", 0):]
            if it: add((16, "post"), lambda q, it=it: g.job_trickle(it))
            g.ctrickle, secs = secs[:g.opt.get("trc", 0)], secs[g.opt.get("trc", 0):]
        rest = {}
        for ptr, k in secs: rest.setdefault(ptr, k // 2)
        if not g.opt.get("wt", 1): rest = {}
        for ptr, first in rest.items(): add((14, "post"), lambda q, ptr=ptr, first=first: g.job_wtouch(ptr, first, q))
        add((15, "post"), lambda q: g.job_reduce(p, q))
        return J

    def l_kv_gather(g):
        a = g.a; F = 64; Z = 128; U = 132; S = 144
        P = a.uid("kvp"); D = a.uid("kvd"); P1 = a.uid("kv1"); PZ = a.uid("kvz")
        a(f"""s_lshl_b32 s{T}, s{S_L}, 20
        s_lshl_b32 s{T+1}, s{S_CB}, 16
        s_add_u32 s{T}, s{T}, s{T+1}
        s_lshl_b32 s{T+1}, s{S_W}, 14
        s_add_u32 s{T}, s{T}, s{T+1}
        s_lshr_b32 s{T+4}, s{T}, 4
        s_add_u32 s{T}, s{T}, {KVP}
        s_mov_b32 s{T+5}, s{T}
        s_add_u32 s{T+4}, s{T+4}, {ZP}""")
        for k in range(4):
            a(f"s_add_u32 s{T+k}, s{S_J2}, {2*k + 2}\ns_and_b32 s{T+k}, s{T+k}, 6\ns_lshl_b32 s{T+k}, s{T+k}, 11\ns_add_u32 s{T+k}, s{T+k}, s{T+5}")
        a(f"""v_and_b32 v{U}, 15, v0
        v_lshlrev_b32 v{U}, 6, v{U}
        v_and_b32 v{U+1}, 48, v0
        v_add_u32 v{U}, v{U}, v{U+1}
        s_lshr_b32 s{T+5}, s{S_W}, 1
        s_lshl_b32 s{T+5}, s{T+5}, 10
        s_and_b32 s{T+6}, s{S_W}, 1
        s_lshl_b32 s{T+6}, s{T+6}, 3
        s_add_u32 s{T+5}, s{T+5}, s{T+6}
        s_add_u32 s{T+5}, s{T+5}, {L_ZF}
        v_add_u32 v{U+2}, s{T+5}, v{LV_L16}
        s_add_u32 s{T+5}, s{S_LH}, {L_KVF}
        v_add_u32 v{U+3}, s{T+5}, v{LV_L16}
        s_mov_b32 s{T+8}, 0x3f80
        s_mov_b32 s{T+9}, 0x3f800000
        s_mov_b32 s{S_SPIN}, {SPIN}
        s_mov_b32 s{S_ISS}, 15
        s_barrier""")
        kf = g.opt.get("kvf", "sc1"); sl = g.opt.get("kvsl", 4)
        if g.opt.get("w8", 1) and g.opt.get("w8a", 4) < 8:
            a(f"s_sleep {g.opt.get('jsl', 6)}")
            for t in range(g.opt.get("w8a", 4), 8):
                g.l_line(G2, t, x=False); g.l_issue_w(G2, t)
        if g.opt.get("junk", 0):
            J = a.uid("jk"); J2 = a.uid("jk")
            a(f"""s_cmp_lg_u32 s{S_L}, 0
            s_cbranch_scc1 {J}
            s_mul_i32 s{T+5}, s{S_RB}, {H_RB}
            s_and_b32 s{T+6}, s{S_CB}, 7
            s_add_u32 s{T+6}, s{T+6}, s{S_K24}
            s_lshl_b32 s{T+6}, s{T+6}, {LT}
            s_add_u32 s{T+6}, s{T+6}, s{T+5}
            s_add_u32 s{T+6}, s{T+6}, {HB + 8*TL}
            s_lshr_b32 s{T+7}, s{S_CB}, 1
            s_lshl_b32 s{T+7}, s{T+7}, {LT}
            s_add_u32 s{T+5}, s{T+5}, s{T+7}
            s_and_b32 s{T+7}, s{S_CB}, 1
            s_lshl_b32 s{T+7}, s{T+7}, {LK}
            s_add_u32 s{T+5}, s{T+5}, s{T+7}
            s_add_u32 s{T+5}, s{T+5}, {HB + 48*TL}
            s_sleep {0 if g.opt.get("w8", 1) and g.opt.get("w8a", 4) < 8 else g.opt.get("jsl", 6)}""")
            st = lambda sr, k: a(f"buffer_store_dwordx4 v[{LV_W}:{LV_W+3}], v{LV_X+k}, s[{SWS}:{SWS+3}], s{sr} offen offset:{1024*k}")
            for i in range(4): st(T+6, i)
            for i in range(2): st(T+5, 2*i)
            a(f"s_add_u32 s{T+6}, s{T+6}, {8*TL}\ns_bitcmp1_b32 s{S_CB}, 2\ns_cbranch_scc0 {J2}")
            for i in range(4): st(T+6, i)
            a.label(J2)
            if g.opt.get("jsl2", 0): a(f"s_sleep {g.opt.get('jsl2', 0)}")
            a(f"s_branch {P1}")
            a.label(J)
        if sl: a(f"s_sleep {sl}")
        zl = f"buffer_load_dwordx4 {vr(Z,4)}, v{U}, s[{SWS}:{SWS+3}], s{T+4} offen {kf}"
        def loads(k):
            for i in range(4): g.a(f"buffer_load_dwordx4 {vr(F+16*k+4*i,4)}, v{LV_L16}, s[{SWS}:{SWS+3}], s{T+k} offen offset:{1024*i} {kf}")
        def accum(k, K, cnt=None):
            sk = S + 8*k; a = g.a
            for i in range(4):
                if cnt is not None: a(f"s_waitcnt vmcnt({cnt - i})")
                for d in range(4):
                    x = F + 16*k + 4*i + d
                    if i == 0: a(f"v_lshlrev_b32 v{sk+2*d}, 16, v{x}\nv_and_b32 v{sk+2*d+1}, 0xffff0000, v{x}")
                    else: a(f"v_dot2c_f32_bf16 v{sk+2*d}, s{T+8}, v{x}\nv_dot2c_f32_bf16 v{sk+2*d+1}, s{T+9}, v{x}")
            a(f"""v_add_f32 v{U+4}, v{sk}, v{sk+2}
            v_add_f32 v{U+5}, v{sk+4}, v{sk+6}
            v_cmp_u_f32 vcc, v{U+4}, v{U+5}
            s_cbranch_vccnz {K}
            s_bitset0_b32 s{S_ISS}, {k}""")
            a.label(K)
        keep, g.a = g.a, Asm(); g.a._uid = keep._uid + 2000
        g.a.label(P); g.a(zl)
        for k in range(4):
            K = g.a.uid("kvl")
            g.a(f"s_bitcmp1_b32 s{S_ISS}, {k}\ns_cbranch_scc0 {K}"); loads(k); g.a.label(K)
        g.a("s_waitcnt vmcnt(0)")
        for k in range(4):
            K = g.a.uid("kva")
            g.a(f"s_bitcmp1_b32 s{S_ISS}, {k}\ns_cbranch_scc0 {K}"); accum(k, K)
        g.a(f"s_branch {PZ}")
        g.cold.append(g.a.text()); g.a = keep
        a.label(P1)
        for k in range(4): loads(k)
        a(zl)
        for k in range(4): accum(k, a.uid("kva"), 16 - 4*k)
        a("s_waitcnt vmcnt(0)")
        a.label(PZ)
        a(f"""v_max3_u32 v{U+1}, v{Z}, v{Z+1}, v{Z+2}
        v_max_u32 v{U+1}, v{U+1}, v{Z+3}
        v_cmp_eq_u32 vcc, -1, v{U+1}
        s_nop 0
        s_or_b32 s{T+5}, vcc_lo, vcc_hi
        s_or_b32 s{T+5}, s{T+5}, s{S_ISS}
        s_cbranch_scc0 {D}
        s_sub_u32 s{S_SPIN}, s{S_SPIN}, 1
        s_cbranch_scc0 {P}""")
        a.label(D)
        g.stamp("l", "kvflag")
        zs = [f"v_add_f32_dpp v{Z+i}, v{Z+i}, v{Z+i} row_ror:{st} row_mask:0xf bank_mask:0xf" for st in (8, 4, 2, 1) for i in range(4)]
        ks = [f"v_pk_add_f32 {vr(S+x+d,2)}, {vr(S+x+d,2)}, {vr(S+y+d,2)}" for x, y in ((0, 8), (16, 24), (0, 16)) for d in range(0, 8, 2)]
        ks += [f"v_cvt_pk_bf16_f32 v{U+4+d}, v{S+2*d}, v{S+2*d+1}" for d in range(4)]
        for l in ks: a(l)
        a(f"ds_write_b128 v{U+3}, {vr(U+4,4)}")
        for l in zs: a(l)
        a(f"""v_cvt_pk_bf16_f32 v{Z}, v{Z}, v{Z+1}
        v_cvt_pk_bf16_f32 v{Z+1}, v{Z+2}, v{Z+3}
        ds_write_b64 v{U+2}, {vr(Z,2)}
        s_waitcnt lgkmcnt(0)
        s_barrier""")

    def boot_val(g):
        g.a(f"""s_getreg_b32 s{T}, hwreg(HW_REG_XCC_ID, 0, 4)
        s_and_b32 s{T}, s{T}, 7
        s_mul_i32 s{T+1}, s{T}, s{T}
        s_lshl_b32 s{T}, s{T}, 6
        s_lshl_b32 s{T+1}, s{T+1}, 14
        s_add_u32 s{S_BOOT}, s{T}, s{T+1}
        s_add_u32 s{S_BOOT}, s{S_BOOT}, 1""")
    def loader(g):
        a = g.a; t0, t1, t2 = LV_T, LV_T+1, LV_T+2
        g.stamp("l", "start")
        if g.opt.get("lprio"): a(f"s_setprio {g.opt['lprio']}")
        a(f"""s_lshl_b32 s{S_LX}, s{S_W}, 12
        s_lshl_b32 s{S_LW}, s{S_W}, 11
        s_lshl_b32 s{S_LH}, s{S_W}, 10
        v_lshrrev_b32 v{t0}, 3, v0
        s_lshl_b32 s{T}, s{S_W}, 4
        v_add_u32 v{LV_KN}, s{T}, v{t0}
        v_and_b32 v{t2}, 7, v0
        v_and_b32 v{t1}, 2, v{t0}
        v_xor_b32 v{t1}, v{t1}, v{t2}
        v_lshlrev_b32 v{LV_CH}, 4, v{t1}
        s_lshl_b32 s{T}, s{S_W}, 5
        v_add_u32 v{t0}, s{T}, v{t0}
        v_lshlrev_b32 v{t0}, 11, v{t0}
        v_lshrrev_b32 v{t1}, 4, v0
        v_xor_b32 v{t1}, v{t1}, v{t2}
        v_lshl_add_u32 v{LV_X}, v{t1}, 4, v{t0}
        v_xor_b32 v{LV_X+1}, 64, v{LV_X}
        v_add_u32 v{LV_X+1}, {8*2048 - 1024}, v{LV_X+1}
        v_add_u32 v{LV_X+2}, {16*2048 - 2048}, v{LV_X}
        v_add_u32 v{LV_X+3}, {16*2048 - 2048}, v{LV_X+1}
        s_mov_b32 s{S_XSTR}, 128
        s_and_b32 s{S_K24}, s2, 1
        s_mul_i32 s{S_K24}, s{S_K24}, 24
        s_and_b32 s{S_J2}, s2, 6""")
        g.tab_first()
        g.l_cols(G1); g.l_setup_w(G1, natural=True)
        a(f"s_lshl_b32 s{T}, s{S_RB}, 18\ns_waitcnt lgkmcnt(0)")
        g.srd(SX, P_X, 128*2048, T)
        g.srd(SW, P_WQKV, 1024*6144)
        g.stamp("l", "karg")
        g.l_line(G1, 0); g.l_issue_w(G1, 0); g.l_issue_x(G1, 0)
        g.stamp("l", "iss0")
        g.l_line(G1, 1); g.l_issue_w(G1, 1); g.l_issue_x(G1, 1)
        a(f"""s_lshr_b32 s{T}, s{S_W}, 1
        s_lshl_b32 s{T}, s{T}, 5
        s_and_b32 s{T+1}, s{S_W}, 1
        s_lshl_b32 s{T+1}, s{T+1}, 3
        s_add_u32 s{T}, s{T}, s{T+1}
        v_bfe_u32 v{t0}, v0, 3, 2
        v_lshrrev_b32 v{t1}, 5, v0
        v_lshl_add_u32 v{t0}, v{t1}, 4, v{t0}
        v_add_u32 v{LV_KF}, s{T}, v{t0}
        v_bfe_u32 v{t0}, v0, 2, 2
        v_lshl_add_u32 v{t0}, v{t1}, 2, v{t0}
        v_and_b32 v{t2}, 16, v0
        v_add3_u32 v{LV_KH}, v{t0}, v{t2}, s{T}
        v_lshlrev_b32 v{t1}, 1, v{t1}
        v_and_b32 v{t2}, 3, v0
        v_xor_b32 v{t1}, v{t1}, v{t2}
        v_lshlrev_b32 v{LV_CHH}, 4, v{t1}
        v_lshlrev_b32 v{LV_L4}, 2, v0
        v_lshlrev_b32 v{LV_L16}, 4, v0
        s_lshl_b32 s{T}, s{S_W}, 8
        v_add_u32 v{LV_T4}, s{T}, v{LV_L4}
        s_lshl_b32 s{T}, s{S_RB}, 8
        v_add_u32 v{LV_PA}, s{T}, v{LV_L4}
        v_lshrrev_b32 v{t1}, 4, v0
        v_and_b32 v{t0}, 15, v0
        v_lshlrev_b32 v{t0}, 4, v{t0}
        v_lshl_add_u32 v{t0}, v{t1}, 12, v{t0}
        s_lshl_b32 s{T}, s{S_W}, 8
        v_add_u32 v{LV_GA}, s{T}, v{t0}
        v_bfe_u32 v{t0}, v0, 2, 2
        v_lshl_add_u32 v{t0}, v{t1}, 3, v{t0}
        v_lshlrev_b32 v{t2}, 3, v{t2}
        v_bfe_u32 v{t1}, v0, 3, 2
        v_lshl_add_u32 v{LV_TRF}, v{t1}, 5, v{t2}
        v_lshl_add_u32 v{LV_TRF}, v{t0}, 7, v{LV_TRF}
        v_lshrrev_b32 v{t1}, 1, v{t1}
        v_lshl_add_u32 v{LV_TRH}, v{t1}, 5, v{t2}
        v_lshl_add_u32 v{LV_TRH}, v{t0}, 6, v{LV_TRH}
        s_lshr_b32 s{S_PFR}, s2, 3
        s_lshl_b32 s{S_PFR}, s{S_PFR}, 1
        s_lshr_b32 s{T}, s{S_W}, 1
        s_add_u32 s{S_PFR}, s{S_PFR}, s{T}
        s_and_b32 s{S_PFH}, s{S_W}, 1
        s_lshl_b32 s{S_PFH}, s{S_PFH}, 6""")
        g.boot_val()
        a(f"s_waitcnt vmcnt({G1.P})")
        g.stamp("l", "land0")
        a("s_branch L_l_g1b")
        a.label("L_l_layer")
        for s in range(2):
            g.l_line(G1, s, w=False); g.l_issue_x(G1, s)
        if g.opt.get("fill", 1):
            g.l_line(G1, 2); g.l_issue_x(G1, 2); g.l_issue_w(G1, 2)
        a(f"s_waitcnt vmcnt({4 + G1.P if g.opt.get('fill', 1) else 4})")
        a.label("L_l_g1b")
        g.l_main(G1, q0=[0] + [-1]*50 + [1]*4, nxt=G2)
        g.stamp("l", "g1end")
        a(f"v_add_u32 v{LV_X}, s{S_LX}, v{LV_L16}\ns_mov_b32 s{S_XSTR}, {TL}")
        if SKIP: a(f"v_add_u32 v{LV_X+1}, 128, v{LV_X}\nv_cmp_gt_u32 vcc, 24, v0\nv_cndmask_b32 v{LV_X}, v{LV_X+1}, v{LV_X}, vcc")
        a(f"v_add_u32 v{LV_X+1}, {KS - 1024}, v{LV_X}\nv_mov_b32 v{LV_X+2}, v{LV_X}\nv_mov_b32 v{LV_X+3}, v{LV_X+1}")
        g.l_xsrd(HB, H_RB)
        g.l_kv_gather()
        g.stamp("l", "kvdone")
        g.l_wait_rows(1)
        g.stamp("l", "oflag")
        g.l_main(G2, nxt=G3)
        g.l_xsrd(XA, 16*TL)
        a("s_barrier")
        g.l_wait_rows(3)
        g.stamp("l", "x1flag")
        g.l_main(G3, nxt=G4)
        g.l_xsrd(HB, H_RB)
        g.l_wait_rows(5)
        g.stamp("l", "hflag")
        g.l_main(G4, nxt=G1, cond_nxt=True)
        a(f"s_cmp_lg_u32 s{S_L}, 0\ns_cbranch_scc1 L_l_fin")
        g.l_xsrd(XA, 16*TL)
        a("s_barrier")
        g.l_wait_rows(9)
        g.stamp("l", "x2flag")
        a(f"s_mov_b32 s{S_L}, 1\ns_mov_b32 s{S_FB}, 16\ns_branch L_l_layer")
        a.label("L_l_fin")
        g.wbl("fin")
        g.finish("l")

    def c_frag(g, p):
        RW = 3 if p.NB == 6 else 4
        def xr(par): return [f"ds_read_b128 {vr(XF + par*32 + mb*8 + kk*4, 4)}, v{V_XA+kk} offset:{mb*2048}" for mb in range(4) for kk in range(2)]
        def wr(nb, slot=None):
            ri, off, w = p.nblk[nb]; slot = nb % RW if slot is None else slot
            return [f"ds_read_b64_tr_b16 {vr(WF + slot*8 + kk*4 + 2*h, 2)}, v{V_WA+ri} offset:{off + (32*kk + 4*h)*w}" for kk in range(2) for h in range(2)]
        def mf(par, nb, slot=None):
            out = []; slot = nb % RW if slot is None else slot
            for mb in range(4):
                for kk in range(2):
                    d = vr(ACC + 4*(nb*4 + mb), 4)
                    X, W = vr(XF + par*32 + mb*8 + kk*4, 4), vr(WF + slot*8 + kk*4, 4)
                    A, B = (W, X) if p.swapped[nb] else (X, W)
                    out.append(f"v_mfma_f32_16x16x32_bf16 {d}, {A}, {B}, {d}")
            return out
        def inter(ms, rs):
            rs = list(rs)
            for m in ms:
                g.a(m)
                if rs: g.a(rs.pop(0))
            assert not rs
        nwa = 3 if 64 in p.subt else 2
        nxt = [f"s_add_u32 s{S_SLOT}, s{S_SLOT}, 1\ns_cmp_eq_u32 s{S_SLOT}, {p.NST}", f"s_cselect_b32 s{S_DLX}, s{S_KX}, {p.xp}",
               f"s_cselect_b32 s{S_DLW}, s{S_KW}, {p.wp}", f"s_cselect_b32 s{S_SLOT}, 0, s{S_SLOT}"]
        up = [f"v_add_u32 v{r}, s{S_DLX}, v{r}" for r in range(V_XA, V_XA+2)] + [f"v_add_u32 v{r}, s{S_DLW}, v{r}" for r in range(V_WA, V_WA+nwa)]
        up = ["\n".join(up[0:2]), "\n".join(up[2:4])] + up[4:]
        return xr, wr, mf, inter, nxt, up
    def c_pre(g, p, reps):
        a = g.a; xr, wr, mf, inter, nxt, up = g.c_frag(p)
        if p is not G1: a(f"v_add_u32 v{V_XA}, {p.x0}, v{V_XA0}\nv_add_u32 v{V_XA+1}, {p.x0 + 1024}, v{V_XA0}")
        for i in range(3 if 64 in p.subt else 2): a(f"v_mov_b32 v{V_WA+i}, v{V_WA0+i}")
        for i in range(0, p.NB*16, 2): a(f"v_mov_b64 {vr(ACC+i,2)}, 0")
        a(f"s_mov_b32 s{S_CNT}, {reps}\ns_mov_b32 s{S_SLOT}, 0\ns_mov_b32 s{S_KX}, {(-(p.NST-1)*p.xp) & 0xffffffff:#x}\ns_mov_b32 s{S_KW}, {(-(p.NST-1)*p.wp) & 0xffffffff:#x}")
        a("s_waitcnt lgkmcnt(0)\ns_barrier")
        g.stamp("c", p.name + "b0")
        for r in wr(0) + xr(0) + wr(1): a(r)
    def c_loop(g, p):
        a = g.a; NB = p.NB; xr, wr, mf, inter, nxt, up = g.c_frag(p)
        L = a.uid("cl")
        its = g.stamps and g.opt.get("itst") == p.name
        if its:
            k = g.nst["c"]; g.nst["c"] += 16; g.stn["c"] += [f"i{i}" for i in range(16)]
            a(f"s_lshl_b32 m0, s{S_L}, 5\ns_add_u32 m0, m0, {k}")
        cnt = f"\ns_sub_u32 s{S_CNT}, s{S_CNT}, 1\ns_cmp_lg_u32 s{S_CNT}, 0"
        if NB == 2:
            def nx2(par): return [f"s_add_u32 s{S_SLOT}, s{S_SLOT}, 1\ns_cmp_eq_u32 s{S_SLOT}, 4", f"s_cselect_b32 s{S_DLX}, s{S_KX}, {p.xp}\ns_cselect_b32 s{S_SLOT}, 0, s{S_SLOT}",
                                  f"s_add_u32 s{S_LH}, s{S_LINE}, s{S_LW if par == 0 else S_LX}\ns_and_b32 s{S_LH}, s{S_LH}, 0x1ffff", f"s_sub_u32 s{S_DLW}, s{S_LH}, s{S_LINE}\ns_mov_b32 s{S_LINE}, s{S_LH}"]
            a(f"s_mov_b32 s{S_LINE}, 0")
            for l in nx2(1) + up: a(l)
        a(".p2align 3")
        a.label(L)
        for par in range(2):
            if NB == 2:
                a("s_waitcnt lgkmcnt(0)\ns_barrier")
                nx = wr(0, 2*(1-par)) + xr(1 - par) + wr(1, 2*(1-par) + 1)
                ex = nx2(par) + list(up)
                if par == 1: ex[-1] += cnt
                inter(mf(par, 0, 2*par) + mf(par, 1, 2*par + 1), [nx[2*i] + "\n" + nx[2*i+1] for i in range(8)] + ex)
                continue
            for nb in range(NB):
                if nb < NB - 2:
                    a("s_waitcnt lgkmcnt(4)")
                    if its and nb == NB - 3: a(f"s_memrealtime s[{S_ST}:{S_ST+1}]")
                    inter(mf(par, nb), wr(nb + 2) + (nxt if nb == 0 else up if nb == NB - 3 else []))
                elif nb == NB - 2:
                    a("s_waitcnt lgkmcnt(0)\ns_barrier")
                    if its: a(f"v_writelane_b32 v{VST}, s{S_ST}, m0\ns_add_u32 m0, m0, 1")
                    nx = wr(0) + xr(1 - par) + wr(1)
                    inter(mf(par, nb), nx[:8])
                else:
                    nx = nx[8:]
                    if par == 1: nx[6] += cnt
                    inter(mf(par, nb), nx)
        a(f"s_cbranch_scc1 {L}")
        return L
    def wbl(g, where):
        if where not in g.opt.get("wbl", ()): return
        a = g.a; D = a.uid("wb")
        a(f"""s_lshr_b32 s{T}, s2, 3
        s_or_b32 s{T}, s{T}, s{S_W}
        s_cmp_ge_u32 s{T}, s{S_L}
        s_cbranch_scc1 {D}
        buffer_wbl2 sc1""")
        a.label(D)
    def remote_flag(g, vt):
        g.a(f"s_movk_i32 s{T}, {RXF}\nbuffer_store_dword v{vt}, v{V_FLG}, s[{SWS}:{SWS+3}], s{T} offen sc1")
    def deferred(g):
        g.remote_flag(V_HK)
        g.a(f"v_lshlrev_b32 v{V_CS}, 2, v0\nbuffer_store_dword v{V_SS}, v{V_CS}, s[{SWS}:{SWS+3}], s{T+13} offen sc1")
    def c_g1(g):
        a = g.a; D = a.uid("st0"); HA, HB_ = a.uid("hka"), a.uid("hkb")
        g.c_pre(G1, f"s{T+12}")
        if g.opt.get("defer", 1): g.deferred()
        else:
            a(f"""s_cmp_lg_u32 s{S_L}, 0
            s_cbranch_scc1 {D}
            v_lshlrev_b32 v{V_CS}, 2, v0
            buffer_store_dword v{V_SS}, v{V_CS}, s[{SWS}:{SWS+3}], s{T+13} offen sc1""")
            a.label(D)
        L = g.c_loop(G1)
        a(f"s_cmp_lg_u32 s{S_HOOK}, 0\ns_cbranch_scc1 {HA}")
        g.cold.append(f"""{HA}:
        s_cmp_eq_u32 s{S_HOOK}, 1
        s_cbranch_scc1 {HB_}
        s_mov_b32 s{S_HOOK}, 1
        s_mov_b32 s{S_CNT}, 1
        s_waitcnt vmcnt(0)
        s_branch {L}
        {HB_}:
        s_mov_b32 s{S_HOOK}, 0
        s_mov_b32 s{S_CNT}, {8 - 1 - HOOKA}
        s_cmp_lg_u32 s{S_W}, 0
        s_cbranch_scc1 {L}
        s_mov_b32 s{SM}, s{P_DBG}
        s_mov_b32 s{SM+1}, s{P_DBG+1}
        s_mov_b32 s{SM+2}, 256
        s_mov_b32 s{SM+3}, 0x20000
        s_lshl_b32 s{T}, s{S_XCD}, 5
        v_mov_b32 v{V_HK}, s{S_BOOT}
        buffer_atomic_add v{V_HK}, v{V_ONE}, s[{SM}:{SM+3}], s{T} offen sc1
        s_branch {L}""")
        a("s_waitcnt lgkmcnt(0)")
        g.stamp("c", "g1loop")
    def c_g4a(g):
        a = g.a; D = a.uid("hkd"); SD = 176
        g.c_pre(G4, 1)
        a(f"s_mov_b32 s{S_HOOK}, 1")
        L = g.c_loop(G4)
        a(f"s_cmp_eq_u32 s{S_HOOK}, 0\ns_cbranch_scc1 {D}\ns_mov_b32 s{S_CNT}, 11\ns_mov_b32 s{S_HOOK}, 0")
        g.signal_row(7, V_HK); g.remote_flag(V_HK); g.wbl("hook")
        a(f"s_branch {L}")
        a.label(D)
        a(f"""s_lshl_b32 s{T+1}, s2, 14
        s_lshl_b32 s{T+2}, s{S_W}, 12
        s_add_u32 s{T+1}, s{T+1}, s{T+2}
        s_xor_b32 s{T+2}, s{T+1}, {1 << 14}
        s_add_u32 s{T+7}, s{T+1}, {XB}
        s_add_u32 s{T+5}, s{T+2}, {XB}
        v_lshlrev_b32 v{V_L16}, 4, v0
        s_mov_b32 s{S_CNT}, {4 - g.opt.get("xbl", 1)}
        s_mov_b32 s{S_HOOK}, 1""")
        for mb in range(4):
            for b in range(2):
                for h in range(2):
                    t = ACC + 4*((2+b)*4 + mb) + 2*h
                    a(f"v_cvt_pk_bf16_f32 v{SD+4*mb+2*b+h}, v{t}, v{t+1}")
            a(f"buffer_store_dwordx4 {vr(SD+4*mb,4)}, v{V_L16}, s[{SWS}:{SWS+3}], s{T+5} offen offset:{1024*mb} sc1")
        g.wbl("send")
    def xb_loads(g): return [f"buffer_load_dwordx4 {vr(V_PP+4*mb,4)}, v{V_L16}, s[{SWS}:{SWS+3}], s{T+7} offen offset:{1024*mb} sc1" for mb in range(4)]
    def c_nb2(g):
        a = g.a; D = a.uid("hkd")
        L = g.c_loop(G2)
        a(f"s_cmp_eq_u32 s{S_HOOK}, 0\ns_cbranch_scc1 {D}\ns_mov_b32 s{S_CNT}, {g.opt.get('xbl', 1)}\ns_mov_b32 s{S_HOOK}, 0")
        for l in g.xb_loads(): a(l)
        if g.opt.get("xbl", 1): a(f"s_branch {L}")
        a.label(D)
        a("s_waitcnt lgkmcnt(0)")
        g.stamp("c", "loop", True)

    def phi(g, t, u, dst):
        c = f"s[{S_C}:{S_C+1}]"
        return [f"v_pk_fma_f32 {vr(u,2)}, {vr(t,2)}, {c}, {c} op_sel:[0,0,1] op_sel_hi:[1,0,1]",
                f"v_max_f32 v{t}, s{S_C+2}, v{t}", f"v_max_f32 v{t+1}, s{S_C+2}, v{t+1}",
                f"v_exp_f32 v{u}, v{u} clamp", f"v_exp_f32 v{u+1}, v{u+1} clamp",
                f"v_pk_add_f32 {vr(t,2)}, {vr(t,2)}, {vr(u,2)}",
                f"v_cvt_pk_bf16_f32 v{dst}, v{t}, v{t+1}"]
    def zipemit(g, streams):
        streams = [list(s) for s in streams]
        while any(streams):
            for s in streams:
                if s: g.a(s.pop(0))

    def clear_kv(g, layer, t0):
        g.a(f"""v_lshlrev_b32 v{t0}, 4, v0
        v_and_b32 v{t0+1}, 15, v0
        v_lshlrev_b32 v{t0+1}, 2, v{t0+1}
        s_lshl_b32 s{T}, s{S_CB}, 16
        s_lshl_b32 s{T+1}, s{S_RB}, 10
        s_add_u32 s{T}, s{T}, s{T+1}
        s_lshl_b32 s{T+1}, s{S_W}, 14
        s_add_u32 s{T}, s{T}, s{T+1}
        s_lshr_b32 s{T+1}, s{T}, 4
        s_add_u32 s{T}, s{T}, {KVP + layer*KVP_L}
        s_add_u32 s{T+1}, s{T+1}, {ZP + layer*ZP_L}
        buffer_store_dwordx4 {vr(V_SEN,4)}, v{t0}, s[{SWS}:{SWS+3}], s{T} offen sc1
        buffer_store_dword v{V_SEN}, v{t0+1}, s[{SWS}:{SWS+3}], s{T+1} offen sc1""")
    def clear_xb(g, t0):
        g.a(f"""v_mov_b64 {vr(V_SEN,2)}, -1
        v_mov_b64 {vr(V_SEN+2,2)}, -1
        v_lshlrev_b32 v{t0}, 4, v0
        s_lshl_b32 s{T}, s2, 14
        s_lshl_b32 s{T+1}, s{S_W}, 12
        s_add_u32 s{T}, s{T}, s{T+1}
        s_add_u32 s{T}, s{T}, {XB}""")
        for mb in range(4): g.a(f"buffer_store_dwordx4 {vr(V_SEN,4)}, v{t0}, s[{SWS}:{SWS+3}], s{T} offen offset:{1024*mb} sc1")
    def c_epi_g1(g):
        a = g.a
        acc = lambda nb, mb: ACC + 4*(nb*4 + mb)
        R, NM, CSN, RQ, CSQ_ = 16, 32, 48, 56, 64
        PK, VV, PQ, KV, U, ONE = 72, 88, 208, 224, 104, 248
        eps2 = f"s[{S_C+2}:{S_C+3}]"
        a(f"""s_mov_b32 s{S_C}, {f2u(LOG2E):#x}
        s_mov_b32 s{S_C+1}, {f2u(-EPS*LOG2E):#x}
        s_mov_b32 s{S_C+2}, {f2u(EPS):#x}
        s_mov_b32 s{S_C+3}, 0
        v_and_b32 v{U}, 48, v0
        v_and_b32 v{U+1}, 15, v0
        v_lshlrev_b32 v{U+1}, 2, v{U+1}
        s_lshl_b32 s{T}, s{S_WM}, 8
        s_add_u32 s{T}, s{T}, {L_RSTD}
        s_lshl_b32 s{T+1}, s{S_WN}, 7
        s_add_u32 s{T+1}, s{T+1}, {L_CSQ}
        v_add_u32 v{U+2}, s{T}, v{U}
        v_add_u32 v{U+3}, s{T+1}, v{U+1}
        v_add_u32 v{U+4}, s{T}, v{U+1}
        v_add_u32 v{U+5}, s{T+1}, v{U}
        v_mov_b32 v{U+6}, {L_MODE}""")
        for i in range(4): a(f"ds_read_b32 v{CSN+2*i}, v{U+3} offset:{256*(1 + i//2) + 64*(i%2)}")
        for mb in range(4):
            a(f"ds_read_b128 {vr(NM+4*mb,4)}, v{U+2} offset:{512 + 64*mb}\nds_read_b128 {vr(R+4*mb,4)}, v{U+2} offset:{64*mb}")
        a(f"ds_read_b32 v{U+7}, v{U+6}")
        a("s_waitcnt vmcnt(0) lgkmcnt(0)")
        for mb in range(4): a(f"ds_read2_b32 {vr(RQ+2*mb,2)}, v{U+4} offset0:{16*mb} offset1:{128 + 16*mb}")
        for b in range(2): a(f"ds_read_b128 {vr(CSQ_+4*b,4)}, v{U+5} offset:{64*b}")
        a(f"v_readfirstlane_b32 s{S_MODE}, v{U+7}")
        for i in range(4): a(f"v_mov_b32 v{ONE+i}, 0x3f803f80")
        for mb in range(4):
            st = []
            for b in range(2):
                for h in range(2):
                    t = acc(2+b, mb) + 2*h; u = U + 2*(2*b + h)
                    st.append([f"v_pk_fma_f32 {vr(u,2)}, {vr(NM+4*mb+2*h,2)}, {vr(CSN+2*b,2)}, {eps2} op_sel_hi:[1,0,0]",
                               f"v_pk_fma_f32 {vr(t,2)}, {vr(t,2)}, {vr(R+4*mb+2*h,2)}, {vr(u,2)}"]
                              + g.phi(t, u, PK + 8*b + 2*mb + h))
            g.zipemit(st)
            st = []
            for b in range(2):
                for h in range(2):
                    t = acc(4+b, mb) + 2*h; u = U + 2*(2*b + h)
                    st.append([f"v_pk_mul_f32 {vr(u,2)}, {vr(NM+4*mb+2*h,2)}, {vr(CSN+4+2*b,2)} op_sel_hi:[1,0]",
                               f"v_pk_fma_f32 {vr(t,2)}, {vr(t,2)}, {vr(R+4*mb+2*h,2)}, {vr(u,2)}",
                               f"v_cvt_pk_bf16_f32 v{VV + 8*b + 2*mb + h}, v{t}, v{t+1}"])
            g.zipemit(st)
            if mb % 2 == 1:
                u2 = mb // 2
                for eb in range(3):
                    for db in range(2):
                        d = vr(KV + 8*eb + 4*db, 4)
                        B = vr(VV + 8*eb + 4*u2, 4) if eb < 2 else vr(ONE, 4)
                        a(f"v_mfma_f32_16x16x32_bf16 {d}, {vr(PK + 8*db + 4*u2, 4)}, {B}, {'0' if u2 == 0 else d}")
        W1 = a.uid("kvw"); W2 = a.uid("kvx")
        a(f"""s_mul_i32 s{T}, s{S_W}, 3072
        s_add_u32 s{T}, s{T}, {L_XCH}
        s_xor_b32 s{T+1}, s{S_W}, 2
        s_mul_i32 s{T+1}, s{T+1}, 3072
        s_add_u32 s{T+1}, s{T+1}, {L_XCH}
        v_lshl_add_u32 v{U}, v0, 4, s{T}
        v_lshl_add_u32 v{U+1}, v0, 4, s{T+1}
        s_lshl_b32 s{T}, s{S_L}, 20
        s_lshl_b32 s{T+1}, s{S_CB}, 16
        s_add_u32 s{T}, s{T}, s{T+1}
        s_lshl_b32 s{T+1}, s{S_WN}, 15
        s_add_u32 s{T}, s{T}, s{T+1}
        s_lshl_b32 s{T+1}, s{S_WM}, 14
        s_add_u32 s{T}, s{T}, s{T+1}
        s_lshl_b32 s{T+1}, s{S_RB}, 10
        s_add_u32 s{T}, s{T}, s{T+1}
        s_lshr_b32 s{T+1}, s{T}, 4
        s_add_u32 s{T}, s{T}, {KVP}
        s_add_u32 s{T+1}, s{T+1}, {ZP}
        v_lshlrev_b32 v{U+2}, 4, v0
        v_and_b32 v{U+3}, 15, v0
        v_cmp_eq_u32 vcc, 0, v{U+3}
        v_mov_b32 v{U+3}, {WSZ}
        v_cndmask_b32 v{U+3}, v{U+3}, v0, vcc
        s_cmp_eq_u32 s{S_WM}, 0
        s_cbranch_scc0 {W1}""")
        for wm in range(2):
            if wm == 1: a.label(W1)
            keep = [KV + 8*wm, KV + 8*wm + 4, KV + 16 + 4*wm]
            send = [KV + 8*(1-wm), KV + 8*(1-wm) + 4, KV + 16 + 4*(1-wm)]
            for i in range(3): a(f"ds_write_b128 v{U}, {vr(send[i],4)} offset:{1024*i}")
            a("s_waitcnt lgkmcnt(0)\ns_barrier")
            for i in range(3): a(f"ds_read_b128 {vr(R+4*i,4)}, v{U+1} offset:{1024*i}")
            for i in range(3):
                a(f"s_waitcnt lgkmcnt({2-i})")
                for h in range(2): a(f"v_pk_add_f32 {vr(R+4*i+2*h,2)}, {vr(R+4*i+2*h,2)}, {vr(keep[i]+2*h,2)}")
            if wm == 0: a(f"s_branch {W2}")
        a.label(W2)
        for d in range(4): a(f"v_cvt_pk_bf16_f32 v{NM+d}, v{R+2*d}, v{R+2*d+1}")
        a(f"""buffer_store_dwordx4 {vr(NM,4)}, v{U+2}, s[{SWS}:{SWS+3}], s{T} offen sc1
        buffer_store_dwordx4 {vr(R+8,4)}, v{U+3}, s[{SWS}:{SWS+3}], s{T+1} offen sc1""")
        g.stamp("c", "kvst")
        for mb in range(4):
            st = []
            for b in range(2):
                for h in range(2):
                    t = acc(b, mb) + 2*h; u = U + 2*(2*b + h)
                    st.append([f"v_pk_fma_f32 {vr(u,2)}, {vr(CSQ_+4*b+2*h,2)}, {vr(RQ+2*mb,2)}, {eps2} op_sel:[0,1,0] op_sel_hi:[1,1,0]",
                               f"v_pk_fma_f32 {vr(t,2)}, {vr(t,2)}, {vr(RQ+2*mb,2)}, {vr(u,2)} op_sel_hi:[1,0,1]"]
                              + g.phi(t, u, PQ + 4*mb + 2*b + h))
            g.zipemit(st)
        if g.ctrickle: g.job_trickle(g.ctrickle, T+4, T+6)
        a(f"""s_lshl_b32 s{T}, s{S_WN}, 11
        s_add_u32 s{T}, s{T}, {L_KVF}
        v_lshl_add_u32 v{U+1}, v0, 4, s{T}
        s_lshl_b32 s{T}, s{S_WN}, 10
        s_add_u32 s{T}, s{T}, {L_ZF}
        v_lshl_add_u32 v{U+2}, v0, 4, s{T}
        s_mul_i32 s{T}, s{S_RB}, {H_RB}
        s_and_b32 s{T+1}, s{S_CB}, 8
        s_lshl_b32 s{T+1}, s{T+1}, 1
        s_add_u32 s{T+1}, s{T+1}, s{S_CB}
        s_lshl_b32 s{T+1}, s{T+1}, {LT}
        s_add_u32 s{T}, s{T}, s{T+1}
        s_add_u32 s{T+2}, s{T}, {HB}
        s_add_u32 s{T+3}, s{T+2}, 4096""")
        g.stamp("c", "kvflag")
        if g.ctrickle: a("s_waitcnt lgkmcnt(0)")
        a(f"""s_barrier
        ds_read_b128 {vr(R+8,4)}, v{U+2}
        ds_read_b128 {vr(R,4)}, v{U+1}
        ds_read_b128 {vr(R+4,4)}, v{U+1} offset:1024""")
        g.stamp("c", "bk2")
        a("s_waitcnt lgkmcnt(2)")
        for mb in range(4): a(f"v_mfma_f32_16x16x32_bf16 {vr(acc(2,mb),4)}, {vr(R+8,4)}, {vr(PQ+4*mb,4)}, 0")
        a("s_waitcnt lgkmcnt(0)")
        for mb in range(4):
            for eb in range(2): a(f"v_mfma_f32_16x16x32_bf16 {vr(acc(eb,mb),4)}, {vr(R+4*eb,4)}, {vr(PQ+4*mb,4)}, 0")
        for mb in range(4): a(f"v_add_f32 v{acc(2,mb)}, s{S_C+2}, v{acc(2,mb)}")
        for mb in range(4): a(f"v_rcp_f32 v{acc(2,mb)}, v{acc(2,mb)}")
        ln = []
        for mb in range(4):
            for eb in range(2):
                for h in range(2):
                    t = acc(eb, mb) + 2*h
                    ln.append(f"v_pk_mul_f32 {vr(t,2)}, {vr(t,2)}, {vr(acc(2,mb),2)} op_sel_hi:[1,0]")
            for eb in range(2):
                for h in range(2):
                    t = acc(eb, mb) + 2*h
                    ln.append(f"v_cvt_pk_bf16_f32 v{acc(3,mb) + 2*eb + h}, v{t}, v{t+1}")
            ln.append(f"buffer_store_dwordx4 {vr(acc(3,mb),4)}, v{V_FS}, s[{SWS}:{SWS+3}], s{T+2+mb//2} offen offset:{2048*(mb%2)}")
        for l in ln: a(l + (" sc1" if l.startswith("buffer") else ""))
        g.signal_row(1, V_HK)
        if not g.opt.get("odef", 0): g.remote_flag(V_HK)
        g.stamp("c", "osig")

    def c_epi_g24(g):
        a = g.a
        acc = lambda nb, mb: ACC + 4*(nb*4 + mb)
        RS, BI, U, XO, B2 = 16, 32, 40, 80, 96
        NB_ = a.uid("nob"); PL = a.uid("xpl"); PC = a.uid("xpc")
        for mb in range(4):
            for b in range(2): a(f"ds_read_b64 {vr(RS+4*mb+2*b,2)}, v{V_RES+b} offset:{2048*mb}")
        a(f"""s_lshl_b32 s{T+1}, s{S_RB}, {LT+4}
        s_lshl_b32 s{T+2}, s{S_CB}, {LT}
        s_add_u32 s{T+2}, s{T+2}, s{T+1}
        s_add_u32 s{T+2}, s{T+2}, {XA}
        s_add_u32 s{T+3}, s{T+2}, 4096
        s_mul_i32 s{T+9}, s{S_G4}, 6
        s_add_u32 s{T+9}, s{T+9}, 3
        s_and_b32 s{T+4}, s{S_G4}, s{S_L}
        s_cselect_b32 s{T}, {WSZ}, 0
        v_add_u32 v{U+2}, s{T}, v{V_FS}
        s_cmp_eq_u32 s{S_G4}, 0
        s_cbranch_scc1 {NB_}
        s_lshl_b32 s{T}, s{S_WN}, 7
        s_add_u32 s{T}, s{T}, {L_B2}
        v_and_b32 v{U+1}, 48, v0
        v_add_u32 v{U+1}, s{T}, v{U+1}
        s_mov_b32 s{S_SPIN}, {SPIN}""")
        for b in range(2): a(f"ds_read_b128 {vr(B2+4*b,4)}, v{U+1} offset:{64*b}")
        g.cold.append(f"{PL}:\n" + "\n".join(g.xb_loads()) + f"\ns_branch {PC}")
        a.label(PC)
        a("s_waitcnt vmcnt(0)")
        for mb in range(4):
            p0 = V_PP + 4*mb
            if mb == 0: a(f"v_max3_u32 v{U+3}, v{p0}, v{p0+1}, v{p0+2}\nv_max_u32 v{U+3}, v{U+3}, v{p0+3}")
            else: a(f"v_max3_u32 v{U+3}, v{U+3}, v{p0}, v{p0+1}\nv_max3_u32 v{U+3}, v{U+3}, v{p0+2}, v{p0+3}")
        a(f"v_cmp_eq_u32 vcc, -1, v{U+3}")
        g.retry(PL)
        g.stamp("c", "g4pflag")
        a("s_waitcnt lgkmcnt(0)")
        def unp(src, mb, tail):
            st = []
            for b in range(2):
                for h in range(2):
                    t = acc(b, mb) + 2*h; u = BI + 2*(2*b+h); r = src + 4*mb + 2*b + h
                    st.append([f"v_lshlrev_b32 v{u}, 16, v{r}", f"v_and_b32 v{u+1}, 0xffff0000, v{r}", f"v_pk_add_f32 {vr(t,2)}, {vr(t,2)}, {vr(u,2)}", tail(t, b, h)])
            g.zipemit(st)
        for mb in range(4): unp(V_PP, mb, lambda t, b, h: f"v_pk_add_f32 {vr(t,2)}, {vr(t,2)}, {vr(B2+4*b+2*h,2)}")
        a.label(NB_)
        for mb in range(4):
            a(f"s_waitcnt lgkmcnt(6)")
            unp(RS, mb, lambda t, b, h: f"v_cvt_pk_bf16_f32 v{XO+4*mb+2*b+h}, v{t}, v{t+1}")
            a(f"buffer_store_dwordx4 {vr(XO+4*mb,4)}, v{U+2}, s[{SWS}:{SWS+3}], s{T+2+mb//2} offen offset:{2048*(mb%2)} sc1")
            for b in range(2): a(f"ds_write_b64 v{V_RES+b}, {vr(XO+4*mb+2*b,2)} offset:{2048*mb}")
        a(f"s_cmp_lg_u32 s{T+4}, 0\ns_cbranch_scc1 L_c_fin")
        df = g.opt.get("defer", 1)
        g.signal_row(f"s{T+9}", V_HK)
        if not df: g.remote_flag(V_HK)
        g.stamp("c", "xsig", True)
        a("s_waitcnt lgkmcnt(0)\ns_barrier")
        a(f"s_lshl_b32 s{T+10}, s{S_L}, 1\ns_add_u32 s{T+10}, s{T+10}, s{S_G4}\ns_add_u32 s{T+10}, s{T+10}, 1")
        g.job_stats(f"s{T+10}", store=not df)

    def c_epi_g3(g):
        a = g.a
        acc = lambda nb, mb: ACC + 4*(nb*4 + mb)
        CS, B1, RQ, U, HO = 16, 44, 72, 80, 224
        c = f"s[{S_C}:{S_C+1}]"
        a(f"""s_mov_b32 s{S_C}, {f2u(GC2):#x}
        s_mov_b32 s{S_C+1}, {f2u(GC1):#x}
        v_and_b32 v{U}, 48, v0
        v_and_b32 v{U+1}, 15, v0
        s_lshl_b32 s{T}, s{S_WM}, 8
        s_add_u32 s{T}, s{T}, {L_RSTD}
        v_lshl_add_u32 v{U+1}, v{U+1}, 2, s{T}
        s_lshl_b32 s{T+1}, s{S_WN}, 7
        s_add_u32 s{T+1}, s{T+1}, {L_CS1}
        v_add_u32 v{U+2}, s{T+1}, v{U}
        s_lshl_b32 s{T+1}, s{S_WN}, 6
        s_add_u32 s{T+1}, s{T+1}, {L_CS1 + 768}
        v_add_u32 v{U+3}, s{T+1}, v{U}""")
        for mb in range(4): a(f"ds_read2_b32 {vr(RQ+2*mb,2)}, v{U+1} offset0:{16*mb} offset1:{128 + 16*mb}")
        for nb in range(7):
            ad, off = (U+2, 256*(nb//2) + 64*(nb%2)) if nb < 6 else (U+3, 0)
            a(f"ds_read_b128 {vr(CS+4*nb,4)}, v{ad} offset:{off}\nds_read_b128 {vr(B1+4*nb,4)}, v{ad} offset:{off + L_B1 - L_CS1}")
            if nb == 3: a("s_waitcnt lgkmcnt(4)")
        a(f"""s_mul_i32 s{T}, s{S_RB}, {H_RB}
        s_add_u32 s{T}, s{T}, {HB}
        s_and_b32 s{T+1}, s{S_CB}, 7
        s_lshl_b32 s{T+1}, s{T+1}, {LT}
        s_add_u32 s{T}, s{T}, s{T+1}
        s_lshr_b32 s{T+1}, s{S_CB}, 3
        s_mul_i32 s{T+2}, s{T+1}, {24*TL}
        s_add_u32 s{T+2}, s{T+2}, s{T}
        s_add_u32 s{T+3}, s{T+2}, 4096
        s_mul_i32 s{T+4}, s{S_RB}, {H_RB}
        s_lshr_b32 s{T+1}, s{S_CB}, 1
        s_lshl_b32 s{T+1}, s{T+1}, {LT}
        s_add_u32 s{T+4}, s{T+4}, s{T+1}
        s_and_b32 s{T+1}, s{S_CB}, 1
        s_lshl_b32 s{T+1}, s{T+1}, {LK}
        s_add_u32 s{T+4}, s{T+4}, s{T+1}
        s_add_u32 s{T+4}, s{T+4}, {HB + 48*TL}
        s_mul_i32 s{T+1}, s{S_WN}, {KS - 8}
        s_sub_u32 s{T+4}, s{T+4}, s{T+1}
        s_add_u32 s{T+5}, s{T+4}, 4096""")
        def gelu(nb, mb, h, u, dst):
            t = acc(nb, mb) + 2*h
            return [f"v_pk_fma_f32 {vr(u,2)}, {vr(CS+4*nb+2*h,2)}, {vr(RQ+2*mb,2)}, {vr(B1+4*nb+2*h,2)} op_sel:[0,1,0] op_sel_hi:[1,1,1]",
                    f"v_pk_fma_f32 {vr(t,2)}, {vr(t,2)}, {vr(RQ+2*mb,2)}, {vr(u,2)} op_sel_hi:[1,0,1]",
                    f"v_pk_mul_f32 {vr(u,2)}, {vr(t,2)}, {vr(t,2)}",
                    f"v_pk_fma_f32 {vr(u,2)}, {vr(u,2)}, {c}, {c} op_sel:[0,0,1] op_sel_hi:[1,0,1]",
                    f"v_pk_mul_f32 {vr(u,2)}, {vr(u,2)}, {vr(t,2)}",
                    f"v_exp_f32 v{u}, v{u}\nv_exp_f32 v{u+1}, v{u+1}",
                    f"v_pk_add_f32 {vr(u,2)}, {vr(u,2)}, 1.0 op_sel_hi:[1,0]",
                    f"v_rcp_f32 v{u}, v{u}\nv_rcp_f32 v{u+1}, v{u+1}",
                    f"v_pk_mul_f32 {vr(t,2)}, {vr(t,2)}, {vr(u,2)}",
                    f"v_cvt_pk_bf16_f32 v{dst}, v{t}, v{t+1}"]
        k = 0
        a(f"s_and_b32 s{T+6}, s{S_CB}, 4")
        for t3 in (0, 1, 3, 2):
            if t3 == 1: a("s_waitcnt lgkmcnt(0)")
            if t3 == 3:
                for m2 in range(2):
                    o = HO + 4*(k % 4); k += 1
                    g.zipemit([gelu(6, 2*m2 + b, h, U + 4 + 2*(2*b+h), o + 2*b + h) for b in range(2) for h in range(2)])
                    for b in range(2):
                        a(f"buffer_store_dwordx2 {vr(o+2*b,2)}, v{V_FS}, s[{SWS}:{SWS+3}], s{T+4+m2} offen offset:{2048*b}")
                continue
            for mb in range(4):
                o = HO + 4*(k % 4); k += 1
                g.zipemit([gelu(2*t3 + b, mb, h, U + 4 + 2*(2*b+h), o + 2*b + h) for b in range(2) for h in range(2)])
                st = f"buffer_store_dwordx4 {vr(o,4)}, v{V_FS}, s[{SWS}:{SWS+3}], s{T+2+mb//2} offen offset:{2048*(mb%2)}"
                if t3 == 2: g.stores_by_mode([st], T+6, 4)
                else: a(st)
                if (t3, mb) == (1, g.opt.get("h0sig", 1)):
                    g.signal_row(5, V_HK, mb + 1)
                    g.stamp("c", "h0sig")
            if t3 < 2: a(f"s_add_u32 s{T+2}, s{T+2}, {8*TL}\ns_add_u32 s{T+3}, s{T+3}, {8*TL}")
        g.stamp("c", "hsig")

    def compute(g):
        a = g.a; t0, t1, t2, t3 = 16, 17, 18, 19
        a(".p2align 3")
        a.label("L_compute")
        g.stamp("c", "start")
        if g.stamps:
            a(f"v_writelane_b32 v{VST}, s92, {g.nst['c']}"); g.nst["c"] += 1; g.stn["c"].append("t00")
        a(f"""s_getpc_b64 s[{T}:{T+1}]
        L_pc:
        s_sub_u32 s{T}, s{T}, L_pc-{NAME}
        s_subb_u32 s{T+1}, s{T+1}, 0
        s_lshr_b32 s{T+2}, s2, 3
        s_lshl_b32 s{T+2}, s{T+2}, 2
        s_add_u32 s{T+2}, s{T+2}, s{S_W}
        s_lshl_b32 s{T+2}, s{T+2}, 9
        v_and_b32 v{t0}, 3, v0
        v_lshl_add_u32 v{t0}, v{t0}, 7, s{T+2}
        v_min_u32 v{t0}, L_end-{NAME}, v{t0}
        global_load_dword v{V_HK}, v{t0}, s[{T}:{T+1}]""")
        a(f"""s_lshr_b32 s{S_WM}, s{S_W}, 1
        s_and_b32 s{S_WN}, s{S_W}, 1
        v_and_b32 v{t0}, 15, v0
        v_lshrrev_b32 v{t1}, 4, v0
        v_lshrrev_b32 v{t2}, 1, v{t0}
        v_xor_b32 v{t3}, v{t2}, v{t1}
        v_lshlrev_b32 v{t3}, 4, v{t3}
        v_lshl_add_u32 v{t3}, v{t0}, 7, v{t3}
        s_lshl_b32 s{T}, s{S_WM}, 13
        v_add_u32 v{V_XA}, s{T}, v{t3}
        v_add_u32 v{V_XA}, {G1.x0}, v{V_XA}
        v_xor_b32 v{V_XA+1}, 64, v{V_XA}
        v_lshl_add_u32 v{V_XA0}, v0, 4, s{T}
        s_lshl_b32 s{T+1}, s{S_WN}, {LK}
        v_add_u32 v{V_FS}, s{T+1}, v{V_XA0}
        v_add_u32 v{V_RES}, {128 if SKIP else 0}, v{V_FS}
        v_cmp_gt_u32 vcc, 24, v0
        v_cndmask_b32 v{V_FS}, v{V_RES}, v{V_FS}, vcc
        s_lshl_b32 s{T+1}, s{S_WN}, 2
        v_lshrrev_b32 v{t3}, 5, v0
        v_add_u32 v{t3}, s{T+1}, v{t3}
        v_xor_b32 v{t3}, v{t3}, v{t2}
        v_lshlrev_b32 v{t3}, 4, v{t3}
        v_lshl_add_u32 v{t3}, v{t0}, 7, v{t3}
        v_and_b32 v{t2}, 1, v{t1}
        v_lshl_add_u32 v{t3}, v{t2}, 3, v{t3}
        s_add_u32 s{T}, s{T}, {RES}
        v_add_u32 v{V_RES}, s{T}, v{t3}
        v_xor_b32 v{V_RES+1}, 32, v{V_RES}
        v_bfe_u32 v{t0}, v0, 2, 2
        v_lshl_add_u32 v{t0}, v{t1}, 3, v{t0}
        v_bfe_u32 v{t2}, v0, 3, 2
        v_and_b32 v{t3}, 3, v0
        v_lshlrev_b32 v{t3}, 3, v{t3}
        s_lshl_b32 s{T}, s{S_WN}, 1
        v_xor_b32 v{V_WA0}, s{T}, v{t2}
        v_lshl_add_u32 v{V_WA0}, v{V_WA0}, 5, v{t3}
        v_lshl_add_u32 v{V_WA0}, v{t0}, 7, v{V_WA0}
        v_xor_b32 v{V_WA0+1}, 32, v{V_WA0}
        v_lshrrev_b32 v{t2}, 1, v{t2}
        v_xor_b32 v{t2}, s{S_WN}, v{t2}
        v_lshl_add_u32 v{t2}, v{t2}, 5, v{t3}
        v_lshl_add_u32 v{V_WA0+2}, v{t0}, 6, v{t2}
        v_cmp_eq_u32 vcc, 0, v0
        v_mov_b32 v{t0}, {WSZ}
        v_cndmask_b32 v{V_ONE}, v{t0}, 0, vcc
        s_lshl_b32 s{T}, s{S_RB}, 8
        s_lshl_b32 s{T+1}, s{S_CB}, 4
        s_add_u32 s{T}, s{T}, s{T+1}
        s_lshl_b32 s{T+1}, s{S_W}, 2
        s_add_u32 s{T}, s{T}, s{T+1}
        v_add_u32 v{V_FLG}, s{T}, v{V_ONE}""")
        a(f"""v_lshrrev_b32 v{t0}, 3, v0
        s_lshl_b32 s{T}, s{S_W}, 5
        v_add_u32 v{t0}, s{T}, v{t0}
        v_lshlrev_b32 v{t0}, 11, v{t0}
        v_lshrrev_b32 v{t1}, 4, v0
        v_and_b32 v{t2}, 7, v0
        v_xor_b32 v{t1}, v{t1}, v{t2}
        v_lshl_add_u32 v20, v{t1}, 4, v{t0}
        v_xor_b32 v21, 64, v20
        v_add_u32 v21, {8*2048 - 1024}, v21
        v_add_u32 v22, {16*2048 - 2048}, v20
        v_add_u32 v23, {16*2048 - 2048}, v21
        s_lshl_b32 s{T}, s{S_RB}, 18
        s_lshl_b32 s{T+1}, s{S_W}, 12
        s_add_u32 m0, s{T+1}, {RES}
        s_lshl_b32 s{T+2}, s{S_CB}, 7
        s_waitcnt lgkmcnt(0)""")
        g.srd(SX, P_X, 128*2048, T)
        for i in range(4): a(f"buffer_load_dwordx4 v{20+i}, s[{SX}:{SX+3}], s{T+2} offen offset:{1024*i} lds")
        a(f"""v_mov_b64 {vr(V_SEN,2)}, -1
        v_mov_b64 {vr(V_SEN+2,2)}, -1
        v_mov_b32 v{V_CS}, 0
        s_movk_i32 s{T+3}, {RXF}
        buffer_store_dword v{V_CS}, v{V_FLG}, s[{SWS}:{SWS+3}], 0 offen sc1
        buffer_store_dword v{V_CS}, v{V_FLG}, s[{SWS}:{SWS+3}], s{T+3} offen sc1
        v_lshlrev_b32 v{t1}, 2, v0
        s_lshl_b32 s{T}, s{S_CB}, 14
        s_lshl_b32 s{T+1}, s{S_RB}, 10
        s_add_u32 s{T}, s{T}, s{T+1}
        s_lshl_b32 s{T+2}, s{S_W}, 8
        s_add_u32 s{T}, s{T}, s{T+2}
        s_add_u32 s{T}, s{T}, {CSP + CSP_I}
        buffer_store_dword v{V_SEN}, v{t1}, s[{SWS}:{SWS+3}], s{T} offen sc1""")
        g.clear_kv(0, t0)
        g.boot_val()
        a("s_waitcnt vmcnt(5)")
        g.job_stats(0, store=False)
        a(f"v_mov_b32 v{V_HK}, 0")
        a(f"s_mov_b32 s{S_HOOK}, 2\ns_mov_b32 s{T+12}, {HOOKA}")
        g.stamp("c", "init")
        a.label("L_c_layer")
        g.c_g1()
        g.c_epi_g1()
        w8 = g.opt.get("w8", 1)
        a(f"s_mov_b32 s{S_G4}, 0\ns_mov_b32 s{S_LX}, {8192 if w8 else 32768}\ns_mov_b32 s{S_LW}, {24576 if w8 else 32768}")
        g.c_pre(G2, 8)
        if g.opt.get("odef", 0): g.remote_flag(V_HK)
        a.label("L_c_nb2")
        g.c_nb2()
        g.c_epi_g24()
        a(f"""s_cmp_eq_u32 s{S_G4}, 0
        s_cbranch_scc1 L_c_g3
        v_add_u32 v{V_XA}, {G1.x0}, v{V_XA0}
        v_add_u32 v{V_XA+1}, {G1.x0 + 1024}, v{V_XA0}
        s_mov_b32 s{S_L}, 1
        s_mov_b32 s{S_FB}, 16
        s_mov_b32 s{T+12}, 8
        s_branch L_c_layer""")
        a.label("L_c_g3")
        g.c_pre(G3, 8)
        if g.opt.get("defer", 1): g.deferred()
        g.c_loop(G3)
        a("s_waitcnt lgkmcnt(0)")
        g.stamp("c", "g3loop")
        g.c_epi_g3()
        a(f"s_mov_b32 s{S_G4}, 1\ns_mov_b32 s{S_LX}, 32768\ns_mov_b32 s{S_LW}, 32768")
        g.c_g4a()
        g.stamp("c", "g4send")
        a("s_branch L_c_nb2")
        a.label("L_c_fin")
        g.finish("c")

    def build(g):
        g.entry(); g.loader(); g.compute()
        for c in g.cold: g.a(c)
        g.a.label("L_end"); g.a("s_endpgm")
        rep = []
        lines = fixup.fix_hazards(g.a.lines, rep)
        lines = fixup.fix_align(lines)
        g.haz = rep
        hdr = open("cdna_kernels/" + NAME[:-7] + ".s.ref").read().split("; Override")[0]
        out = hdr + f"; @launch grid=(256,1,1) block=(512,1,1) lds={LDS_BYTES}\n"
        out += '.amdgcn_target "amdgcn-amd-amdhsa--gfx950"\n.text\n' + kernel_header(NAME) + "\n".join(lines) + "\n"
        out += '.fill 64, 4, 0xBF800000\n.section .rodata,"a"\n.p2align 6\n' + kernel_desc(NAME, 256, 256, 102)
        return out

V_FS, V_RES, V_XA, V_WA, V_XA0, V_WA0, V_ONE, V_FLG = 1, 2, 4, 6, 9, 10, 13, 14
XF, WF, ACC = 16, 80, 112
V_CS, V_SS, V_HK, V_SEN, V_L16, V_PP = 252, 253, 254, 244, 15, 192
LV_X, LV_W, LV_T = 4, 8, 16
LV_KN, LV_KF, LV_KH, LV_CH, LV_CHH, LV_TRF, LV_TRH, LV_DUM, LV_L4, LV_L16, LV_T4, LV_GA, LV_PA, LV_PV = range(24, 38)

if __name__ == "__main__":
    import argparse, json
    ap = argparse.ArgumentParser(); ap.add_argument("out"); ap.add_argument("--stamps", action="store_true"); ap.add_argument("--slow", action="store_true"); ap.add_argument("--opt", default="{}")
    ar_ = ap.parse_args()
    g = Gen(stamps=ar_.stamps, force_slow=ar_.slow, opt=eval(ar_.opt))
    txt = g.build()
    open(ar_.out, "w").write(txt)
    json.dump(g.stn, open(ar_.out + ".stamps", "w"))
    print("hazard nops:", len(g.haz))
    for h in sorted(set(g.haz)):
        if " lds" not in h[1]: print("  ", h)
```

```python
import sys, struct, math, os
from asmlib import *
import fixup

NAME = "interleave_layers__linear_attn_block__dense_activation_gelu__prompt_kernel"
MB_ = 1 << 20
ROWF = 0; RXF = 4096
STAT = 1*MB_; STAT_I = 256*1024
CSP = 2*MB_; CSP_I = 256*1024
KVP = 3*MB_; KVP_L = 1*MB_
ZP = 5*MB_; ZP_L = 64*1024
XA = 8*MB_
XB = 16*MB_
SKIP = int(os.environ.get('SKIP', 1))
LT = 15 if SKIP else 14; TL = 1 << LT; LK = 14 if SKIP else 10; KS = 1 << LK
HB = 32*MB_; H_RB = 56*TL
TS = 128*MB_
WSZ = 256*MB_
RES = 135168
L_RSTD = RES + 16384; L_NMR = L_RSTD + 512
L_CSQ = L_NMR + 512; L_CS1 = L_CSQ + 1024; L_B1 = L_CS1 + 1024
L_B2 = L_B1 + 1024
L_MODE = L_B2 + 256
L_KVF = L_MODE + 64; L_ZF = L_KVF + 4096
LDS_BYTES = L_ZF + 2048
L_XCH = 16384
assert LDS_BYTES <= 163840
XSZ = 16384
def f2u(x): return struct.unpack("<I", struct.pack("<f", x))[0]
LOG2E = 1.4426950408889634
EPS = 1e-6
GC1 = -2.0*math.sqrt(2.0/math.pi)*LOG2E
GC2 = GC1*0.044715
SPIN = 1 << 16
HOOKA = int(os.environ.get('HOOKA', 1))

S_RB, S_CB, S_XCD, S_W, S_L = 3, 4, 5, 6, 7
SX, SW, SWS, SM = 8, 12, 16, 20
P_X, P_WQKV, P_WO, P_W1, P_B1, P_W2, P_B2, P_OUT, P_DBG = 24, 26, 28, 32, 34, 36, 38, 40, 42
S_MODE, S_WM, S_WN, S_FB = 44, 45, 46, 47
T = 48
S_KX, S_KW, S_LX, S_LW, S_LH, S_LINE, S_CNT, S_SLOT, S_XSTR = 64, 65, 66, 67, 68, 69, 70, 71, 72
S_DLX, S_DLW = 73, 74
S_MASK = 76
S_PT = 78
S_COL = 80
S_TGT, S_SPIN, S_G4, S_BOOT = 84, 85, 86, 87
S_HOOK, S_ISS, S_TABP, S_CSL, S_MID = 75, 98, 99, 61, 98
S_TAB, S_J2, S_K24 = 100, 62, 63
S_C = 88
S_ST = 96
S_PFR, S_PFH, S_PFA, S_PFD = 88, 89, 90, 94
VST = 255

class Ph:
    def __init__(s, name, subt, NST, n, ldb, swapped):
        s.name, s.subt, s.NST, s.n, s.ldb, s.swapped = name, subt, NST, n, ldb, swapped
        s.woff = []; o = 0
        for w in subt: s.woff.append(o); o += 64*w
        if NST == 3: s.w0, s.wp, s.x0, s.xp = 0, 28672, 86016, 16384
        else: s.w0, s.wp, s.x0, s.xp = 0, 32768, 16384, 32768
        s.PW = sum(2 if w == 128 else 1 for w in subt); s.P = 4 + s.PW
        s.nblk = []
        for t, w in enumerate(subt):
            s.nblk += [(0, s.woff[t], w), (1, s.woff[t], w)] if w == 128 else [(2, s.woff[t], w)]
        s.NB = len(s.nblk)
G1 = Ph("g1", [128]*3, 3, 16, 6144, [True]*2 + [False]*4)
G3 = Ph("g3", [128]*3 + [64], 3, 16, 7168, [True]*7)
G2 = Ph("g2", [128], 4, 16, 2048, [True]*2)
G4 = Ph("g4", [128]*2, 4, 32, 2048, [True]*4)
def nsub(p, i): return 1 if (p is G4 and i >= 24) else len(p.subt)

WPTR = {G1: P_WQKV, G2: P_WO, G3: P_W1, G4: P_W2}
PFD = {G1: 2, G2: 3, G3: 2, G4: 3}

class Gen:
    def __init__(g, stamps=False, force_slow=False, opt=None):
        g.opt = opt or {}; g.cold = []
        g.a = Asm(); g.stamps = stamps; g.force_slow = force_slow
        g.nst = {"c": 0, "l": 0}; g.stn = {"c": [], "l": []}
    def stamp(g, role, name, g24=False):
        if not g.stamps: return
        if g.opt.get("minst") and not (name in ("start", "end") or (role == "c" and (name.endswith("b0") or name.endswith("loop")))): return
        k = g.nst[role]; g.nst[role] += 2 if g24 else 1; assert g.nst[role] <= 32
        g.stn[role] += ["g2" + name, "g4" + name] if g24 else [name]
        g.a(f"""s_memrealtime s[{S_ST}:{S_ST+1}]
        s_lshl_b32 m0, s{S_L}, 5
        s_add_u32 m0, m0, {k}
        {f"s_add_u32 m0, m0, s{S_G4}" if g24 else ""}
        s_waitcnt lgkmcnt(0)
        v_writelane_b32 v{VST}, s{S_ST}, m0""")
    def srd(g, d, ptr, size, off_s=None):
        a = g.a
        if off_s is None: a(f"s_mov_b32 s{d}, s{ptr}\ns_mov_b32 s{d+1}, s{ptr+1}")
        else: a(f"s_add_u32 s{d}, s{ptr}, s{off_s}\ns_addc_u32 s{d+1}, s{ptr+1}, 0")
        a(f"s_mov_b32 s{d+2}, {size}\ns_mov_b32 s{d+3}, 0x20000")
    def poll(g, voff, soff, vt, srd=SWS, first_done=False, andmask=None, acquire=True):
        a = g.a; L = a.uid("poll"); C = a.uid("pollc"); D = a.uid("polld")
        a(f"s_mov_b32 s{S_SPIN}, {SPIN}")
        if first_done: a(f"s_branch {C}")
        a.label(L)
        a(f"buffer_load_dword v{vt}, v{voff}, s[{srd}:{srd+3}], {soff} offen sc1\ns_waitcnt vmcnt(0)")
        a.label(C)
        if andmask is not None:
            a(f"v_and_b32 v{vt+1}, {andmask}, v{vt}\nv_cmp_le_u32 vcc, s{S_TGT}, v{vt+1}")
        else:
            a(f"v_cmp_le_u32 vcc, s{S_TGT}, v{vt}")
        a(f"""s_andn2_b64 s[{S_PT}:{S_PT+1}], s[{S_MASK}:{S_MASK+1}], vcc
        s_cbranch_scc0 {D}
        s_sub_u32 s{S_SPIN}, s{S_SPIN}, 1
        s_cbranch_scc0 {L}""")
        a.label(D)
        if acquire:
            E = a.uid("polle")
            a(f"s_cmp_eq_u32 s{S_MODE}, 0\ns_cbranch_scc1 {E}\nbuffer_inv sc1\ns_waitcnt vmcnt(0)")
            a.label(E)
    def signal_row(g, code, vt, cnt=0):
        a = g.a; S = a.uid("sigs"); D = a.uid("sigd")
        a(f"""s_add_u32 s{T}, s{S_FB}, {code}
        v_mov_b32 v{vt}, s{T}
        s_cmp_eq_u32 s{S_MODE}, 0
        s_waitcnt vmcnt({cnt})
        s_cbranch_scc0 {S}
        buffer_store_dword v{vt}, v{V_FLG}, s[{SWS}:{SWS+3}], 0 offen""")
        a.label(D)
        g.cold.append(f"""{S}:
        s_waitcnt vmcnt(0)
        buffer_wbl2 sc1
        s_waitcnt vmcnt(0)
        buffer_store_dword v{vt}, v{V_FLG}, s[{SWS}:{SWS+3}], 0 offen sc1
        s_branch {D}""")
    def stores_by_mode(g, lines, sreg, val):
        a = g.a; S = a.uid("sms"); D = a.uid("smd")
        a(f"s_cmp_eq_u32 s{sreg}, {val}\ns_cbranch_scc0 {S}")
        for l in lines: a(l)
        a.label(D)
        g.cold.append(f"{S}:\n" + "\n".join(l + (" sc1" if l.startswith("buffer_store") else "") for l in lines) + f"\ns_branch {D}")
    def retry(g, L):
        a = g.a; D = a.uid("rtd")
        a(f"s_cbranch_vccz {D}\ns_sub_u32 s{S_SPIN}, s{S_SPIN}, 1\ns_cbranch_scc0 {L}")
        a.label(D)

    def entry(g):
        a = g.a; t0, t1, t2 = LV_T, LV_T+1, LV_T+2
        if g.stamps: a("s_memrealtime s[92:93]")
        a(f"""s_cmp_ge_u32 s2, 256
        s_cbranch_scc1 L_end
        s_load_dwordx16 s[24:39], s[0:1], 0
        s_load_dwordx4 s[40:43], s[0:1], 64
        s_load_dwordx2 s[{SWS}:{SWS+1}], s[0:1], 80
        v_lshrrev_b32 v1, 6, v0
        v_and_b32 v0, 63, v0
        v_readfirstlane_b32 s{S_W}, v1
        s_and_b32 s{S_XCD}, s2, 7
        s_lshr_b32 s{S_CB}, s2, 5
        s_and_b32 s{T}, s2, 1
        s_lshl_b32 s{T}, s{T}, 3
        s_add_u32 s{S_CB}, s{S_CB}, s{T}
        s_bfe_u32 s{S_RB}, s2, 0x20003
        s_and_b32 s{T}, s2, 6
        s_lshl_b32 s{T}, s{T}, 1
        s_add_u32 s{S_RB}, s{S_RB}, s{T}
        s_mov_b32 s{S_L}, 0
        s_mov_b32 s{S_FB}, 0
        s_mov_b32 s{S_MODE}, 1
        s_mov_b32 s{SWS+2}, {WSZ}
        s_mov_b32 s{SWS+3}, 0x20000
        s_and_b32 s{T+8}, s{S_W}, 4
        s_and_b32 s{S_W}, s{S_W}, 3
        s_lshl_b32 s{S_LX}, s{S_W}, 12
        s_lshl_b32 s{S_LW}, s{S_W}, 11
        v_lshrrev_b32 v{t0}, 3, v0
        s_lshl_b32 s{T}, s{S_W}, 4
        v_add_u32 v{LV_KN}, s{T}, v{t0}
        v_and_b32 v{t2}, 7, v0
        v_and_b32 v{t1}, 2, v{t0}
        v_xor_b32 v{t1}, v{t1}, v{t2}
        v_lshlrev_b32 v{LV_CH}, 4, v{t1}
        v_add_u32 v{t0}, s{T}, v{LV_KN}
        v_lshlrev_b32 v{t0}, 11, v{t0}
        v_lshrrev_b32 v{t1}, 4, v0
        v_xor_b32 v{t1}, v{t1}, v{t2}
        v_lshl_add_u32 v{LV_X}, v{t1}, 4, v{t0}
        v_xor_b32 v{LV_X+1}, 64, v{LV_X}
        v_add_u32 v{LV_X+1}, {8*2048 - 1024}, v{LV_X+1}
        v_add_u32 v{LV_X+2}, {16*2048 - 2048}, v{LV_X}
        v_add_u32 v{LV_X+3}, {16*2048 - 2048}, v{LV_X+1}""")
        if g.stamps: a(f"v_mov_b32 v{VST}, 0")
        g.l_cols(G1); g.l_setup_w(G1, natural=True)
        a(f"""s_lshl_b32 s{T}, s{S_RB}, 18
        s_lshl_b32 s{S_KX}, s{S_RB}, 7
        s_mul_i32 s{S_KW}, s{S_RB}, {64*G1.ldb}
        s_add_u32 m0, s{S_LX}, {RES}
        s_waitcnt lgkmcnt(0)""")
        g.srd(SX, P_X, 128*2048, T)
        a(f"s_cmp_lg_u32 s{T+8}, 0\ns_cbranch_scc1 L_loader")
        for i in range(4): a(f"buffer_load_dwordx4 v{LV_X+i}, s[{SX}:{SX+3}], s{S_COL} offen offset:{1024*i} lds")
        a("s_branch L_compute")
        a.label("L_loader")

    def finish(g, role):
        a = g.a
        wv = 0 if role == "c" else 4
        a(f"""s_lshl_b32 s{T}, s{S_RB}, 18
        s_lshl_b32 s{T+1}, s{S_CB}, 7
        s_add_u32 s{T+1}, s{T+1}, s{T}
        s_add_u32 s{T+2}, s{S_W}, {wv}
        s_lshl_b32 s{T+3}, s{T+2}, 15
        s_add_u32 s{T+1}, s{T+1}, s{T+3}
        s_lshl_b32 s{T+2}, s{T+2}, 11
        s_add_u32 s{T+2}, s{T+2}, {RES}""")
        g.srd(SM, P_OUT, 2048*2048)
        a(f"""v_lshrrev_b32 v20, 3, v0
        v_and_b32 v21, 7, v0
        v_lshlrev_b32 v22, 11, v20
        v_lshl_add_u32 v22, v21, 4, v22
        v_lshrrev_b32 v23, 4, v0
        v_xor_b32 v21, v21, v23
        v_lshlrev_b32 v21, 4, v21
        v_lshl_add_u32 v21, v20, 7, v21
        v_add_u32 v21, s{T+2}, v21
        v_xor_b32 v20, 64, v21
        v_add_u32 v23, 16384, v22
        s_waitcnt lgkmcnt(0)
        s_barrier
        ds_read_b128 v[24:27], v21
        ds_read_b128 v[28:31], v20 offset:1024
        s_waitcnt lgkmcnt(1)
        buffer_store_dwordx4 v[24:27], v22, s[{SM}:{SM+3}], s{T+1} offen {g.opt.get("ofl", "")}
        s_waitcnt lgkmcnt(0)
        buffer_store_dwordx4 v[28:31], v23, s[{SM}:{SM+3}], s{T+1} offen {g.opt.get("ofl", "")}""")
        if g.stamps:
            a("s_waitcnt vmcnt(0)")
            g.stamp(role, "end")
            if g.opt.get("echo") and role == "c":
                (l0, n0), (l1, n1), k = g.opt["echo"]
                E = a.uid("echo")
                a(f"""v_readlane_b32 s{T+4}, v{VST}, {32*l0 + g.stn['c'].index(n0)}
                v_readlane_b32 s{T+5}, v{VST}, {32*l1 + g.stn['c'].index(n1)}
                s_nop 3
                s_sub_u32 s{T+4}, s{T+5}, s{T+4}
                s_mul_i32 s{T+4}, s{T+4}, {k}
                s_min_u32 s{T+4}, s{T+4}, 20000
                s_mov_b32 s{T+5}, s{S_ST}
                {E}:
                s_memrealtime s[{S_ST}:{S_ST+1}]
                s_waitcnt lgkmcnt(0)
                s_sub_u32 s{T+6}, s{S_ST}, s{T+5}
                s_cmp_lt_u32 s{T+6}, s{T+4}
                s_cbranch_scc1 {E}""")
            a(f"""s_lshl_b32 s{T}, s2, 3
            s_add_u32 s{T}, s{T}, s{S_W}
            s_add_u32 s{T}, s{T}, {wv}
            s_lshl_b32 s{T}, s{T}, 8
            s_add_u32 s{T}, s{T}, {TS}
            v_lshlrev_b32 v20, 2, v0
            buffer_store_dword v{VST}, v20, s[{SWS}:{SWS+3}], s{T} offen""")
        a("s_endpgm")

    def l_setup_w(g, p, natural=False):
        a = g.a; t0, t1, t2 = LV_T, LV_T+1, LV_T+2
        a(f"s_mov_b32 s{T+1}, {p.ldb}")
        krow = LV_KN if natural else LV_KF
        a(f"""v_mul_lo_u32 v{t0}, v{krow}, s{T+1}
        v_add_u32 v{t0}, v{t0}, v{LV_CH}
        v_xor_b32 v{t1}, 64, v{t0}
        v_add_u32 v{t1}, {(8 if natural else 4)*p.ldb - 1024}, v{t1}""")
        r = LV_W
        for t, w in enumerate(p.subt):
            if w == 128:
                a(f"v_add_u32 v{r}, s{S_COL+t}, v{t0}\nv_add_u32 v{r+1}, s{S_COL+t}, v{t1}"); r += 2
            else:
                a(f"v_mul_lo_u32 v{t2}, v{LV_KH}, s{T+1}\nv_add3_u32 v{r}, v{t2}, v{LV_CHH}, s{S_COL+t}"); r += 1
    def l_issue_x(g, p, i):
        a = g.a
        a(f"s_add_u32 m0, s{S_LX}, {p.x0 + (i % p.NST)*p.xp}")
        for k in range(4):
            a(f"buffer_load_dwordx4 v{LV_X+k}, s[{SX}:{SX+3}], s{S_KX} offen offset:{1024*k} sc1 lds")
        return 4
    def l_issue_w(g, p, i):
        a = g.a; r = LV_W
        for t, w in enumerate(p.subt[:nsub(p, i)]):
            wb = ((i % 8) >> 1)*p.wp + (i & 1)*8192 if (p is G2 and g.opt.get("w8", 1)) else p.w0 + (i % p.NST)*p.wp
            a(f"s_add_u32 m0, s{S_LW if w == 128 else S_LH}, {wb + p.woff[t]}")
            for q in range(2 if w == 128 else 1):
                a(f"buffer_load_dwordx4 v{r}, s[{SW}:{SW+3}], s{S_KW} offen offset:{1024*q} lds"); r += 1
        return r - LV_W
    def kline(g, p, d, i, pf=False):
        a = g.a
        if p is not G4: a(f"s_bfe_u32 s{d}, s{S_TABP if pf and i < 8 else S_TAB + i//8}, {(4 << 16) | (4*(i % 8)):#x}")
        elif i < 16:
            a(f"s_add_u32 s{d}, s{S_J2}, {i}\ns_and_b32 s{d}, s{d}, 7\ns_add_u32 s{d}, s{d}, s{S_K24}")
            if i & 8: a(f"s_add_u32 s{d}, s{d}, 8")
        else:
            a(f"s_add_u32 s{d}, s{S_J2}, {2*i}\ns_and_b32 s{d}, s{d}, 6")
            if 20 <= i < 24: return
            a(f"s_lshr_b32 s{d}, s{d}, 1")
            if i < 28: a(f"s_add_u32 s{d}, s{d}, s{S_K24}\ns_add_u32 s{d}, s{d}, {20 if i < 20 else 16}")
            else: a(f"s_sub_u32 s{d}, s{d}, s{S_K24}\ns_add_u32 s{d}, s{d}, 40")
    def wrow(g, p, d, i):
        a = g.a
        a(f"s_lshl_b32 s{d}, s{d}, 6")
        if p is G4 and 20 <= i < 24:
            a(f"s_and_b32 s{T+1}, s{S_CB}, 8\ns_lshl_b32 s{T+1}, s{T+1}, 2\ns_add_u32 s{d}, s{d}, s{T+1}\ns_add_u32 s{d}, s{d}, {48*64}")
    def l_line(g, p, i, x=True, w=True):
        a = g.a
        g.kline(p, S_LINE, i)
        virt = p is G4 and 20 <= i < 24
        if x:
            if p is G1: a(f"s_mul_i32 s{S_KX}, s{S_LINE}, s{S_XSTR}")
            elif p is G2: a(f"s_and_b32 s{T+1}, s{S_LINE}, 8\ns_lshl_b32 s{T+1}, s{T+1}, 1\ns_add_u32 s{S_KX}, s{S_LINE}, s{T+1}\ns_lshl_b32 s{S_KX}, s{S_KX}, {LT}")
            elif virt: a(f"s_and_b32 s{T+1}, s{S_CB}, 8\ns_add_u32 s{S_KX}, s{S_LINE}, s{T+1}\ns_lshl_b32 s{S_KX}, s{S_KX}, {LT-1}\ns_add_u32 s{S_KX}, s{S_KX}, {48*TL}")
            else: a(f"s_lshl_b32 s{S_KX}, s{S_LINE}, {LT}")
        if w:
            g.wrow(p, S_LINE, i)
            if virt: a(f"s_and_b32 s{T+1}, s{S_W}, 2\ns_lshl_b32 s{T+1}, s{T+1}, 4\ns_add_u32 s{S_LINE}, s{S_LINE}, s{T+1}")
            a(f"s_mul_i32 s{S_KW}, s{S_LINE}, {p.ldb}")
    def tab_first(g):
        g.a(f"""s_mov_b32 s{T}, 0x76543210
        s_mov_b32 s{T+1}, 0xfedcba98
        s_lshl_b32 s{T+4}, s{S_J2}, 3
        s_lshr_b64 s[{S_TAB}:{S_TAB+1}], s[{T}:{T+1}], s{T+4}
        s_sub_u32 s{T+4}, 64, s{T+4}
        s_lshl_b64 s[{T}:{T+1}], s[{T}:{T+1}], s{T+4}
        s_or_b64 s[{S_TAB}:{S_TAB+1}], s[{S_TAB}:{S_TAB+1}], s[{T}:{T+1}]
        s_mov_b32 s{S_TABP}, s{S_TAB}
        s_and_b32 s{T}, s{S_RB}, 3
        s_mul_i32 s{T}, s{T}, 0x1111
        s_xor_b32 s{S_TAB}, s{S_TAB}, s{T}""")
    def tab_local(g):
        a = g.a
        a(f"""s_mov_b32 s{T}, 0x76543210
        s_mov_b32 s{T+1}, 0x76543210
        s_lshl_b32 s{T+4}, s{S_J2}, 2
        s_lshr_b64 s[{T}:{T+1}], s[{T}:{T+1}], s{T+4}
        s_cmp_ge_u32 s{S_CB}, 8
        s_cselect_b32 s{T+1}, 0x88888888, 0
        s_or_b32 s{T}, s{T}, s{T+1}
        s_xor_b32 s{S_TAB+1}, s{T}, 0x88888888
        s_and_b32 s{T+1}, s{S_CB}, 8
        s_add_u32 s{T+1}, s{T+1}, 3""")
        for d, own in ((S_TAB, S_CB), (S_TABP, T+1)):
            a(f"""s_sub_u32 s{T+4}, s{own}, s{S_J2}
            s_and_b32 s{T+4}, s{T+4}, 7
            s_lshl_b32 s{T+4}, s{T+4}, 2
            s_bfm_b32 s{T+2}, s{T+4}, 0
            s_and_b32 s{d}, s{T}, s{T+2}
            s_lshl_b32 s{d}, s{d}, 4
            s_or_b32 s{d}, s{d}, s{own}
            s_lshl_b32 s{T+2}, s{T+2}, 4
            s_or_b32 s{T+2}, s{T+2}, 15
            s_andn2_b32 s{T+2}, s{T}, s{T+2}
            s_or_b32 s{d}, s{d}, s{T+2}""")
        a(f"""s_and_b32 s{T+1}, s{S_RB}, 1
        s_add_u32 s{T+1}, s{T+1}, s{S_J2}
        s_lshl_b32 s{T+2}, s{S_RB}, 2
        s_xor_b32 s{T+2}, s{T+2}, s{S_CB}
        s_and_b32 s{T+2}, s{T+2}, 8
        s_add_u32 s{S_CSL}, s{T+1}, s{T+2}""")
    def l_cols(g, p):
        a = g.a
        if p is G1:
            a(f"s_lshl_b32 s{S_COL}, s{S_CB}, 7\ns_add_u32 s{S_COL+1}, s{S_COL}, 2048\ns_add_u32 s{S_COL+2}, s{S_COL}, 4096")
        elif p is G3:
            a(f"""s_and_b32 s{T}, s{S_CB}, 7
            s_lshl_b32 s{T}, s{T}, 7
            s_lshr_b32 s{T+1}, s{S_CB}, 3
            s_mul_i32 s{S_COL}, s{T+1}, 3072
            s_add_u32 s{S_COL}, s{S_COL}, s{T}
            s_add_u32 s{S_COL+1}, s{S_COL}, 1024
            s_add_u32 s{S_COL+2}, s{S_COL}, 2048
            s_lshl_b32 s{T+1}, s{T+1}, 6
            s_add_u32 s{S_COL+3}, s{T}, s{T+1}
            s_add_u32 s{S_COL+3}, s{S_COL+3}, 6144""")
        else:
            a(f"s_lshl_b32 s{S_COL}, s{S_CB}, 7\ns_xor_b32 s{S_COL+1}, s{S_COL}, 1024")
    def l_next_setup(g, p):
        g.srd(SW, WPTR[p], {G1: 1024*6144, G2: 1024*2048, G3: 1024*7168, G4: 3584*2048}[p])
        g.l_cols(p); g.l_setup_w(p)
    def l_xsrd(g, xbase, xrb):
        g.a(f"s_mul_i32 s{T}, s{S_RB}, {xrb}\ns_add_u32 s{T}, s{T}, {xbase}")
        g.srd(SX, SWS, xrb, T)
    def l_pf(g, p, i):
        a = g.a; wp = WPTR[p]
        g.kline(p, T, i, True); g.wrow(p, T, i)
        a(f"s_add_u32 s{T}, s{T}, s{S_PFR}")
        if p is G4 and 20 <= i < 24: a(f"s_and_b32 s{T+1}, s{S_PFR}, 32\ns_add_u32 s{T}, s{T}, s{T+1}")
        a(f"s_mul_i32 s{T}, s{T}, {p.ldb}\ns_add_u32 s{T}, s{T}, s{S_PFH}")
        if p is G3 or nsub(p, i) == 2:
            a(f"s_add_u32 s{S_PFA}, s{wp}, s{T}\ns_addc_u32 s{S_PFA+1}, s{wp+1}, 0")
            for o in ([51*128] if p is G3 else [384, 1408]): a(f"s_load_dword s{S_PFD}, s[{S_PFA}:{S_PFA+1}], {o}")
        if nsub(p, i) != 2:
            a(f"""s_and_b32 s{T+1}, s{S_CB}, 8
            s_mul_i32 s{T+1}, s{T+1}, {384 if p is G3 else 128}
            s_add_u32 s{T}, s{T}, s{T+1}
            s_add_u32 s{S_PFA+2}, s{wp}, s{T}
            s_addc_u32 s{S_PFA+3}, s{wp+1}, 0""")
            for t in range(min(3, nsub(p, i))): a(f"s_load_dword s{S_PFD}, s[{S_PFA+2}:{S_PFA+3}], {384 + t*(2048 if p is G1 else 1024)}")
    def rows_target(g, code, own=True):
        g.a(f"""s_add_u32 s{S_TGT}, s{S_FB}, {code}
        s_cmp_{'ge' if own else 'lt'}_u32 s{S_CB}, 8
        s_cselect_b32 s{S_MASK}, 0, -1
        s_cselect_b32 s{S_MASK+1}, -1, 0""")
    def l_wait_rows(g, code):
        g.rows_target(code)
        g.poll(LV_PA, "0", LV_PV)
    def flag_jobs(g, add, s_issue, s_check, code, own, name, skip_l0=False):
        a = g.a; so = "0" if own else f"s{T+4}"
        def issue(q):
            if not own: a(f"s_movk_i32 s{T+4}, {RXF}")
            a(f"buffer_load_dword v{LV_PV}, v{LV_PA}, s[{SWS}:{SWS+3}], {so} offen sc1"); q.append(s_check)
        def check(q):
            D = a.uid("fc")
            if skip_l0: a(f"s_cmp_eq_u32 s{S_L}, 0\ns_cbranch_scc1 {D}")
            g.rows_target(code, own)
            if not own: a(f"s_movk_i32 s{T+4}, {RXF}")
            g.poll(LV_PA, so, LV_PV, first_done=True, acquire=own)
            a.label(D)
            g.stamp("l", name)
        add((s_issue, "pre"), issue); add((s_check, "pre"), check)
    def l_main(g, p, code, nxt=None, cond_nxt=None):
        a = g.a; N, n = p.NST, p.n
        jobs = g.jobs(p)
        def run(key):
            for f in jobs.get(key, []): f(q)
        q = []
        w8 = p is G2 and g.opt.get("w8", 1)
        def fill(first):
            for s in range(first, N):
                lastw = s == N - 1 and not w8
                g.l_line(p, s, w=lastw); q.extend([s]*(g.l_issue_x(p, s) + (g.l_issue_w(p, s) if lastw else 0)))
        def wait(s):
            last = max(i for i, t in enumerate(q) if t == s)
            assert len(q) - 1 - last <= 63
            a(f"s_waitcnt vmcnt({len(q) - 1 - last})")
            nc = q[last:].count(-2)
            if nc:
                S = a.uid("wc")
                a(f"s_cmp_eq_u32 s{S_L}, 0\ns_cbranch_scc1 {S}\ns_waitcnt vmcnt({len(q) - 1 - last - nc})")
                a.label(S)
        g.qwait = wait
        if N == 3: ra = {n: list(range(g.opt.get("w8a", 4))) if (nxt is G2 and g.opt.get("w8", 1)) else [1, 2, 0]}
        else:
            e = g.opt.get("early", 3)
            ra = {n - e: [0], n - e + 1: [1]} if e else {n: [0, 1]}
        def runahead(s):
            if s not in ra and s != n: return
            if cond_nxt:
                S = a.uid("ra"); a(f"s_cmp_lg_u32 s{S_L}, 0\ns_cbranch_scc1 {S}")
            if s == min(ra): g.l_next_setup(nxt)
            for t in ra.get(s, []):
                g.l_line(nxt, t, x=False)
                q.extend([-2 if cond_nxt else -1]*g.l_issue_w(nxt, t))
            if s == n:
                k0 = 8 if (nxt is G2 and g.opt.get("w8", 1)) else nxt.NST - 1
                for k in range(k0, max(k0, nxt.NST - 1 + PFD[nxt])): g.l_pf(nxt, k)
            if cond_nxt: a.label(S)
        for s in range(n):
            i = s + N - 1
            if s == 0 and p is G4:
                g.l_wait_rows(code); g.stamp("l", p.name + "flag")
                fill(0); wait(0); a("s_barrier"); run((0, "pre"))
            elif s == 0:
                a("s_barrier"); run((0, "pre"))
                w2e = g.opt.get("w2e", 1) and N == 3
                if w2e:
                    g.l_line(p, 2, x=False); nw = g.l_issue_w(p, 2)
                if p is G1:
                    S = a.uid("f0"); a(f"s_cmp_eq_u32 s{S_L}, 0\ns_cbranch_scc1 {S}")
                g.l_wait_rows(code); g.stamp("l", p.name + "flag")
                g.l_line(p, 1, w=False); q += [1]*g.l_issue_x(p, 1)
                if p is G1: a.label(S)
                if w2e:
                    if p is G1: q += [-2]*nw
                    g.l_line(p, 2, w=False); q += [2]*g.l_issue_x(p, 2)
                else: fill(2)
            else:
                if i < n: g.l_line(p, i, w=not (w8 and i < 8))
                wait(s); a("s_barrier")
                run((s, "pre"))
                if i < n: q += [i]*(g.l_issue_x(p, i) + (0 if (w8 and i < 8) else g.l_issue_w(p, i)))
            run((s, "mid"))
            k = i + PFD[p]
            if k < n:
                if not (w8 and k < 8): g.l_pf(p, k)
            elif N == 4 and k - n < 2: g.l_pf(nxt, k - n)
            run((s, "post"))
            runahead(s)
        a("s_waitcnt lgkmcnt(0)\ns_barrier")
        run((n, "pre"))
        runahead(n)
        run((n, "post"))

    def job_colsum(g, p, s, u, q, part):
        a = g.a; D = a.uid("csd"); Hf = a.uid("csh"); St = a.uid("css")
        F, A0, ONE, U = 64, 96, 112, LV_T
        base = p.w0 + (s % p.NST)*p.wp
        if u is None: a(f"s_cmp_lg_u32 s{S_L}, 0\ns_cbranch_scc1 {D}")
        else:
            g.kline(p, T, s); a(f"s_add_u32 s{T}, s{T}, s{S_FB}\ns_cmp_lg_u32 s{T}, s{S_CSL}\ns_cbranch_scc1 {D}")
        if part == 0:
            def blk(nseg, w):
                for seg in range(nseg):
                    a(f"v_xor_b32 v{U+1}, {32*seg}, v{U}")
                    for kk in range(2):
                        for h in range(2):
                            a(f"ds_read_b64_tr_b16 {vr(F+seg*8+kk*4+h*2,2)}, v{U+1} offset:{(32*kk+4*h)*w}")
            if p is G3: a(f"s_cmp_eq_u32 s{S_W}, 3\ns_cbranch_scc1 {Hf}")
            a(f"s_lshl_b32 s{T}, s{S_W}, 13\ns_add_u32 s{T}, s{T}, {base}\nv_add_u32 v{U}, s{T}, v{LV_TRF}")
            blk(4, 128)
            if p is G3:
                a(f"s_branch {D}")
                a.label(Hf)
                a(f"v_add_u32 v{U}, {base + p.woff[3]}, v{LV_TRH}")
                blk(2, 64)
                for i in range(16, 32, 2): a(f"v_mov_b64 {vr(F+i,2)}, 0")
            a.label(D)
            return
        for i in range(4): a(f"v_mov_b32 v{ONE+i}, 0x3f803f80")
        for seg in range(4):
            for kk in range(2):
                a(f"v_mfma_f32_16x16x32_bf16 {vr(A0+4*seg,4)}, {vr(ONE,4)}, {vr(F+seg*8+kk*4,4)}, {'0' if kk == 0 else vr(A0+4*seg,4)}")
        a(f"""s_lshl_b32 s{T}, s{S_CB}, 14
        s_lshl_b32 s{T+1}, s{S_RB}, 10
        s_add_u32 s{T}, s{T}, s{T+1}
        s_add_u32 s{T}, s{T}, {CSP + (CSP_I if p is G3 else 0)}
        v_cmp_gt_u32 vcc, 16, v0
        v_cndmask_b32 v{A0}, v{A0+4}, v{A0}, vcc
        v_cmp_gt_u32 vcc, 48, v0
        v_cndmask_b32 v{A0+8}, v{A0+12}, v{A0+8}, vcc
        v_cmp_gt_u32 vcc, 32, v0
        v_cndmask_b32 v{A0}, v{A0+8}, v{A0}, vcc
        buffer_store_dword v{A0}, v{LV_T4}, s[{SWS}:{SWS+3}], s{T} offen sc1""")
        a.label(D)
        if u is None: q.append(-2)
    def job_stats(g, inst, F=16):
        a = g.a; U = F + 16; SQ = F + 20
        a(f"""v_bfe_u32 v{U}, v0, 2, 2
        v_lshlrev_b32 v{U}, 4, v{U}
        v_lshl_add_u32 v{U}, v0, 6, v{U}
        s_lshl_b32 s{T}, s{S_W}, 12
        s_add_u32 s{T}, s{T}, {RES}
        v_add_u32 v{U}, s{T}, v{U}""")
        for i in range(4):
            a(f"v_xor_b32 v{U+1}, {16*i}, v{U}\nds_read_b128 {vr(F+4*i,4)}, v{U+1}")
        for i in range(4): a(f"v_mov_b32 v{SQ+i}, 0")
        a(f"""s_mov_b32 s{T+2}, 0x3f803f80
        s_lshl_b32 s{T}, {inst}, 18
        s_lshl_b32 s{T+1}, s{S_RB}, 14
        s_add_u32 s{T}, s{T}, s{T+1}
        s_lshl_b32 s{T+1}, s{S_CB}, 10
        s_add_u32 s{T}, s{T}, s{T+1}
        s_lshl_b32 s{T+1}, s{S_W}, 8
        s_add_u32 s{T}, s{T}, s{T+1}
        s_add_u32 s{T}, s{T}, {STAT}""")
        for i in range(16):
            if i % 4 == 0: a(f"s_waitcnt lgkmcnt({3 - i//4})")
            a(f"v_dot2c_f32_bf16 v{SQ + i%2}, s{T+2}, v{F+i}\nv_dot2c_f32_bf16 v{SQ + 2 + i%2}, v{F+i}, v{F+i}")
        a(f"""v_and_b32 v{U}, 1, v0
        v_cmp_eq_u32 vcc, 0, v{U}
        v_add_f32 v{SQ}, v{SQ}, v{SQ+1}
        v_add_f32 v{SQ+2}, v{SQ+2}, v{SQ+3}
        v_add_f32_dpp v{SQ+1}, v{SQ}, v{SQ} quad_perm:[1,0,3,2] row_mask:0xf bank_mask:0xf
        v_add_f32_dpp v{SQ+3}, v{SQ+2}, v{SQ+2} quad_perm:[1,0,3,2] row_mask:0xf bank_mask:0xf
        v_cndmask_b32 v{V_SS}, v{SQ+3}, v{SQ+1}, vcc""")
        a(f"s_mov_b32 s{T+13}, s{T}")
    def job_boot_issue(g, q):
        a = g.a; D = a.uid("jpd")
        a(f"s_cmp_lg_u32 s{S_L}, 0\ns_cbranch_scc1 {D}")
        g.srd(SM, P_DBG, 256)
        a(f"buffer_load_dword v{LV_PV}, v{LV_L4}, s[{SM}:{SM+3}], 0 offen sc1")
        a.label(D); q.append(-2)
    def gather_loads(g, p, cs):
        a = g.a
        if cs: a(f"s_lshl_b32 s{T}, s{S_CB}, 14\ns_add_u32 s{T}, s{T}, {CSP + (CSP_I if p is G3 else 0)}")
        else: a(f"""s_lshl_b32 s{T}, s{S_L}, 19
            s_lshl_b32 s{T+1}, s{S_RB}, 14
            s_add_u32 s{T}, s{T}, s{T+1}
            s_add_u32 s{T}, s{T}, {STAT + (STAT_I if p is G3 else 0)}""")
        for i in range(4):
            a(f"buffer_load_dwordx4 {vr((80 if cs else 64)+4*i,4)}, v{LV_GA}, s[{SWS}:{SWS+3}], s{T} offen offset:{1024*i} sc1")
    def job_gather(g, p, q):
        a = g.a; D = a.uid("jgd")
        a(f"s_cmp_lg_u32 s{S_L}, 0\ns_cbranch_scc1 {D}")
        if p is G1:
            g.srd(SM, P_DBG, 256)
            a(f"s_mov_b32 s{S_TGT}, 32\ns_mov_b32 s{S_MASK}, 0x01010101\ns_mov_b32 s{S_MASK+1}, 0x01010101")
            g.poll(LV_L4, "0", LV_PV, srd=SM, first_done=True, andmask=63, acquire=False)
            a(f"""s_lshl_b32 s{T}, s{S_XCD}, 3
            s_lshl_b32 s{T+1}, s{S_BOOT}, 5
            v_readlane_b32 s{T+2}, v{LV_PV}, s{T}
            s_cmp_lg_u32 s{T+2}, s{T+1}
            s_cselect_b32 s{S_MODE}, 1, {1 if g.force_slow else 0}
            v_mov_b32 v{LV_T}, {L_MODE}
            v_mov_b32 v{LV_T+1}, s{S_MODE}
            ds_write_b32 v{LV_T}, v{LV_T+1}""")
        else:
            g.srd(SM, P_B1, 3584*2)
            a(f"""s_cmp_eq_u32 s{S_W}, 1
            s_cselect_b32 s{T}, s{S_COL+1}, s{S_COL}
            s_cmp_eq_u32 s{S_W}, 2
            s_cselect_b32 s{T}, s{S_COL+2}, s{T}
            s_cmp_eq_u32 s{S_W}, 3
            s_cselect_b32 s{T}, s{S_COL+3}, s{T}
            v_lshlrev_b32 v{LV_T}, 1, v0
            buffer_load_ushort v116, v{LV_T}, s[{SM}:{SM+3}], s{T} offen""")
            g.srd(SM, P_B2, 2048)
            a(f"s_lshl_b32 s{T}, s{S_CB}, 7\nbuffer_load_ushort v117, v{LV_T}, s[{SM}:{SM+3}], s{T} offen")
            q += [-2]*2
        a.label(D)
        g.gather_loads(p, False)
        q += [-1]*4
        g.gpos = len(q)
    def job_gather_cs(g, p, q):
        a = g.a; D = a.uid("jgc")
        a(f"s_cmp_lg_u32 s{S_L}, 0\ns_cbranch_scc1 {D}")
        g.gather_loads(p, True)
        a.label(D); q += [-2]*4
        g.cpos = len(q)
    def tree(g, p, q, cs):
        a = g.a; R = a.uid("jrr"); C = a.uid("jrc"); b = 80 if cs else 64
        young = q[(g.cpos if cs else g.gpos):]
        a(f"s_mov_b32 s{S_SPIN}, {SPIN}\ns_waitcnt vmcnt({len(young)})")
        if young.count(-2) and not cs: a(f"s_cmp_eq_u32 s{S_L}, 0\ns_cbranch_scc1 {C}\ns_waitcnt vmcnt({len(young) - young.count(-2)})")
        a.label(C)
        for st in (8, 4):
            for i in range(0, st, 2): a(f"v_pk_add_f32 {vr(b+i,2)}, {vr(b+i,2)}, {vr(b+st+i,2)}")
        for sw in ("16", "32"):
            a(f"v_mov_b64 {vr(b+4,2)}, {vr(b,2)}\nv_mov_b64 {vr(b+6,2)}, {vr(b+2,2)}")
            for i in range(4): a(f"v_permlane{sw}_swap_b32 v{b+i}, v{b+4+i}")
            for i in (0, 2): a(f"v_pk_add_f32 {vr(b+i,2)}, {vr(b+i,2)}, {vr(b+4+i,2)}")
        if cs and p is G1: return
        keep, g.a = g.a, Asm()
        g.a.label(R); g.gather_loads(p, cs); g.a(f"s_waitcnt vmcnt(0)\ns_branch {C}")
        g.cold.append(g.a.text()); g.a = keep
        a(f"v_pk_add_f32 v[98:99], {vr(b,2)}, {vr(b+2,2)}\nv_cmp_u_f32 vcc, v98, v99")
        g.retry(R)
    def job_rstd(g):
        g.a(f"""s_mov_b32 s{T+2}, {f2u(1/1024):#x}
        v_pk_mul_f32 v[64:65], v[64:65], s[{T+2}:{T+3}] op_sel_hi:[1,0]
        v_pk_mul_f32 v[66:67], v[66:67], s[{T+2}:{T+3}] op_sel_hi:[1,0]
        v_fma_f32 v68, -v64, v64, v65
        v_fma_f32 v69, -v66, v66, v67
        v_max_f32 v68, 0, v68
        v_max_f32 v69, 0, v69
        v_add_f32 v68, {f2u(1e-5):#x}, v68
        v_add_f32 v69, {f2u(1e-5):#x}, v69
        v_rsq_f32 v68, v68
        v_rsq_f32 v69, v69
        v_and_b32 v72, 15, v0
        s_lshl_b32 s{T}, s{S_W}, 7
        s_add_u32 s{T}, s{T}, {L_RSTD}
        v_lshl_add_u32 v73, v72, 3, s{T}
        v_mul_f32 v70, -v64, v68
        v_mul_f32 v71, -v66, v69
        ds_write_b64 v73, v[68:69]
        ds_write_b64 v73, v[70:71] offset:512""")
    def job_cs(g, p, q):
        a = g.a; E = a.uid("jre")
        a(f"s_cmp_lg_u32 s{S_L}, 0\ns_cbranch_scc1 {E}")
        g.tree(p, q, True)
        a(f"""v_and_b32 v72, 15, v0
        s_lshl_b32 s{T}, s{S_W}, 8
        s_add_u32 s{T}, s{T}, {L_CSQ if p is G1 else L_CS1}
        v_lshl_add_u32 v73, v72, 4, s{T}
        ds_write_b128 v73, v[80:83]""")
        if p is G3:
            a(f"""v_add_u32 v71, {L_B1}, v{LV_T4}
            v_lshlrev_b32 v116, 16, v116
            ds_write_b32 v71, v116
            v_lshlrev_b32 v117, 16, v117
            v_add_u32 v71, {L_B2}, v{LV_L4}
            ds_write_b32 v71, v117""")
        a.label(E)
    def job_clears(g, q):
        a = g.a; D = a.uid("jc")
        g.clear_xb(LV_T); q += [-1]*4
        a(f"s_cmp_lg_u32 s{S_L}, 0\ns_cbranch_scc1 {D}")
        g.clear_kv(1, LV_T)
        a(f"s_lshl_b32 s{T}, s{S_RB}, 14\ns_lshl_b32 s{T+1}, s{S_CB}, 10\ns_add_u32 s{T}, s{T}, s{T+1}\ns_add_u32 s{T}, s{T}, {STAT}")
        for i in range(1, 4):
            a(f"s_add_u32 s{T}, s{T}, {STAT_I}\nbuffer_store_dword v{V_SEN}, v{LV_T4}, s[{SWS}:{SWS+3}], s{T} offen sc1")
        a.label(D); q += [-2]*5
    def job_trickle(g, items, S_PFA=S_PFA, S_PFD=S_PFD):
        a = g.a; D = a.uid("jt")
        a(f"s_cmp_lg_u32 s{S_L}, 0\ns_cbranch_scc1 {D}\ns_lshl_b32 s{T}, s2, 2\ns_add_u32 s{T}, s{T}, s{S_W}")
        cur = None
        for ptr, sec in items:
            if ptr != cur:
                cur = ptr
                a(f"""s_mul_i32 s{T+1}, s{T}, {2048 if ptr == P_WO else 7168}
                s_add_u32 s{S_PFA}, s{ptr}, s{T+1}
                s_addc_u32 s{S_PFA+1}, s{ptr+1}, 0""")
            a(f"s_load_dword s{S_PFD}, s[{S_PFA}:{S_PFA+1}], {64*sec}")
        a.label(D)
    def job_wtouch(g, ptr, first, q):
        a = g.a; D = a.uid("jw")
        per = 2048 if ptr == P_WO else 7168
        a(f"s_cmp_lg_u32 s{S_L}, 0\ns_cbranch_scc1 {D}")
        g.srd(SM, ptr, 1024*per)
        a(f"""s_lshl_b32 s{T}, s2, 2
        s_add_u32 s{T}, s{T}, s{S_W}
        s_mul_i32 s{T}, s{T}, {per}
        s_add_u32 s{T}, s{T}, {128*first}
        v_min_u32 v{LV_T}, {per//128 - 1 - first}, v0
        v_lshlrev_b32 v{LV_T}, 7, v{LV_T}
        buffer_load_dword v{LV_DUM}, v{LV_T}, s[{SM}:{SM+3}], s{T} offen""")
        a.label(D); q.append(-2)
    def jobs(g, p):
        a = g.a; J = {}
        def add(key, fn): J.setdefault(key, []).append(fn)
        if p is G2:
            g.flag_jobs(add, g.opt.get("g2p", 4), 5, 1, False, "orem")
            return J
        if p is G4:
            g.flag_jobs(add, 4, 5, 7, True, "hall")
            g.flag_jobs(add, 19, 21, 7, False, "hrem")
            return J
        gs = g.opt.get("gs", 12); jp = g.opt.get("jprio", 0)
        add((gs, "pre"), lambda q: g.job_gather(p, q))
        add((14, "pre"), lambda q: g.job_gather_cs(p, q))
        g.flag_jobs(add, 5, 6, 3 if p is G3 else -7, False, p.name + "rem", skip_l0=p is G1)
        def colsum(st, u):
            if g.opt.get("csplit", 1):
                add((st, "pre"), lambda q: g.job_colsum(p, st, u, q, 0)); add((st, "mid"), lambda q: a("s_waitcnt lgkmcnt(0)"))
                add((st + 1, "post"), lambda q: g.job_colsum(p, st, u, q, 1))
            else: add((st, "post"), lambda q: (g.job_colsum(p, st, u, q, 0), a("s_waitcnt lgkmcnt(0)"), g.job_colsum(p, st, u, q, 1)))
        if p is G1:
            colsum(0, None)
            add((gs - 2, "pre"), g.job_boot_issue)
            add((14, "post"), lambda q: g.tab_local())
        else:
            for st in (0, 1, 2, 8, 9): colsum(st, 1)
        ntr = g.opt.get("tr1" if p is G1 else "tr3", 4); t0 = g.opt.get("tr0", 2) if p is G1 else 0
        secs = ([(P_WO, k) for k in range(32)] if p is G1 else []) + [(P_W1 if p is G1 else P_W2, k) for k in range(112)]
        for st in range(t0, 14):
            it, secs = secs[:ntr], secs[ntr:]
            if it: add((st, "post"), lambda q, it=it: g.job_trickle(it))
        if p is G1:
            it, secs = secs[:g.opt.get("trl", 0)], secs[g.opt.get("trl", 0):]
            if it: add((16, "post"), lambda q, it=it: g.job_trickle(it))
            g.ctrickle, secs = secs[:g.opt.get("trc", 0)], secs[g.opt.get("trc", 0):]
        rest = {}
        for ptr, k in secs: rest.setdefault(ptr, k // 2)
        if not g.opt.get("wt", 1): rest = {}
        for ptr, first in rest.items(): add((14, "post"), lambda q, ptr=ptr, first=first: g.job_wtouch(ptr, first, q))
        if jp: add((14, "post"), lambda q: a(f"s_setprio {jp}"))
        add((g.opt.get("ts", gs + 1), "post"), lambda q: g.tree(p, q, False))
        add((g.opt.get("rs", 14), "post"), lambda q: g.job_rstd())
        add((15, "post"), lambda q: g.job_cs(p, q))
        if jp: add((15, "post"), lambda q: a("s_setprio 0"))
        if p is G1: add(g.opt.get("clr", (16, "post")), g.job_clears)
        return J

    def l_kv_gather(g):
        a = g.a; F = 64; Z = 128; U = 132; S = 144
        P = a.uid("kvp"); D = a.uid("kvd"); P1 = a.uid("kv1"); PZ = a.uid("kvz")
        a(f"""s_lshl_b32 s{T}, s{S_L}, 20
        s_lshl_b32 s{T+1}, s{S_CB}, 16
        s_add_u32 s{T}, s{T}, s{T+1}
        s_lshl_b32 s{T+1}, s{S_W}, 14
        s_add_u32 s{T}, s{T}, s{T+1}
        s_lshr_b32 s{T+4}, s{T}, 4
        s_add_u32 s{T}, s{T}, {KVP}
        s_mov_b32 s{T+5}, s{T}
        s_add_u32 s{T+4}, s{T+4}, {ZP}""")
        for k in range(4):
            a(f"s_add_u32 s{T+k}, s{S_J2}, {2*k + 2}\ns_and_b32 s{T+k}, s{T+k}, 6\ns_lshl_b32 s{T+k}, s{T+k}, 11\ns_add_u32 s{T+k}, s{T+k}, s{T+5}")
        a(f"""v_and_b32 v{U}, 15, v0
        v_lshlrev_b32 v{U}, 6, v{U}
        v_and_b32 v{U+1}, 48, v0
        v_add_u32 v{U}, v{U}, v{U+1}
        s_lshr_b32 s{T+5}, s{S_W}, 1
        s_lshl_b32 s{T+5}, s{T+5}, 10
        s_and_b32 s{T+6}, s{S_W}, 1
        s_lshl_b32 s{T+6}, s{T+6}, 3
        s_add_u32 s{T+5}, s{T+5}, s{T+6}
        s_add_u32 s{T+5}, s{T+5}, {L_ZF}
        v_add_u32 v{U+2}, s{T+5}, v{LV_L16}
        s_add_u32 s{T+5}, s{S_LH}, {L_KVF}
        v_add_u32 v{U+3}, s{T+5}, v{LV_L16}
        s_mov_b32 s{T+8}, 0x3f80
        s_mov_b32 s{T+9}, 0x3f800000
        s_mov_b32 s{S_SPIN}, {SPIN}
        s_mov_b32 s{S_ISS}, 15
        s_barrier""")
        kf = g.opt.get("kvf", "sc1"); sl = g.opt.get("kvsl", 4)
        if g.opt.get("w8", 1) and g.opt.get("w8a", 4) < 8:
            a(f"s_sleep {g.opt.get('jsl', 6)}")
            for t in range(g.opt.get("w8a", 4), 8):
                g.l_line(G2, t, x=False); g.l_issue_w(G2, t)
        if g.opt.get("junk", 0):
            J = a.uid("jk"); J2 = a.uid("jk")
            a(f"""s_cmp_lg_u32 s{S_L}, 0
            s_cbranch_scc1 {J}
            s_mul_i32 s{T+5}, s{S_RB}, {H_RB}
            s_and_b32 s{T+6}, s{S_CB}, 7
            s_add_u32 s{T+6}, s{T+6}, s{S_K24}
            s_lshl_b32 s{T+6}, s{T+6}, {LT}
            s_add_u32 s{T+6}, s{T+6}, s{T+5}
            s_add_u32 s{T+6}, s{T+6}, {HB + 8*TL}
            s_lshr_b32 s{T+7}, s{S_CB}, 1
            s_lshl_b32 s{T+7}, s{T+7}, {LT}
            s_add_u32 s{T+5}, s{T+5}, s{T+7}
            s_and_b32 s{T+7}, s{S_CB}, 1
            s_lshl_b32 s{T+7}, s{T+7}, {LK}
            s_add_u32 s{T+5}, s{T+5}, s{T+7}
            s_add_u32 s{T+5}, s{T+5}, {HB + 48*TL}
            s_sleep {0 if g.opt.get("w8", 1) and g.opt.get("w8a", 4) < 8 else g.opt.get("jsl", 6)}""")
            st = lambda sr, k: a(f"buffer_store_dwordx4 v[{LV_W}:{LV_W+3}], v{LV_X+k}, s[{SWS}:{SWS+3}], s{sr} offen offset:{1024*k}")
            for i in range(4): st(T+6, i)
            for i in range(2): st(T+5, 2*i)
            a(f"s_add_u32 s{T+6}, s{T+6}, {8*TL}\ns_bitcmp1_b32 s{S_CB}, 2\ns_cbranch_scc0 {J2}")
            for i in range(4): st(T+6, i)
            a.label(J2)
            if g.opt.get("jsl2", 0): a(f"s_sleep {g.opt.get('jsl2', 0)}")
            a(f"s_branch {P1}")
            a.label(J)
        if sl: a(f"s_sleep {sl}")
        zl = f"buffer_load_dwordx4 {vr(Z,4)}, v{U}, s[{SWS}:{SWS+3}], s{T+4} offen {kf}"
        def loads(k):
            for i in range(4): g.a(f"buffer_load_dwordx4 {vr(F+16*k+4*i,4)}, v{LV_L16}, s[{SWS}:{SWS+3}], s{T+k} offen offset:{1024*i} {kf}")
        def accum(k, K, cnt=None):
            sk = S + 8*k; a = g.a
            for i in range(4):
                if cnt is not None: a(f"s_waitcnt vmcnt({cnt - i})")
                for d in range(4):
                    x = F + 16*k + 4*i + d
                    if i == 0: a(f"v_lshlrev_b32 v{sk+2*d}, 16, v{x}\nv_and_b32 v{sk+2*d+1}, 0xffff0000, v{x}")
                    else: a(f"v_dot2c_f32_bf16 v{sk+2*d}, s{T+8}, v{x}\nv_dot2c_f32_bf16 v{sk+2*d+1}, s{T+9}, v{x}")
            a(f"""v_add_f32 v{U+4}, v{sk}, v{sk+2}
            v_add_f32 v{U+5}, v{sk+4}, v{sk+6}
            v_cmp_u_f32 vcc, v{U+4}, v{U+5}
            s_cbranch_vccnz {K}
            s_bitset0_b32 s{S_ISS}, {k}""")
            a.label(K)
        keep, g.a = g.a, Asm(); g.a._uid = keep._uid + 2000
        g.a.label(P); g.a(zl)
        for k in range(4):
            K = g.a.uid("kvl")
            g.a(f"s_bitcmp1_b32 s{S_ISS}, {k}\ns_cbranch_scc0 {K}"); loads(k); g.a.label(K)
        g.a("s_waitcnt vmcnt(0)")
        for k in range(4):
            K = g.a.uid("kva")
            g.a(f"s_bitcmp1_b32 s{S_ISS}, {k}\ns_cbranch_scc0 {K}"); accum(k, K)
        g.a(f"s_branch {PZ}")
        g.cold.append(g.a.text()); g.a = keep
        a.label(P1)
        for k in range(4): loads(k)
        a(zl)
        for k in range(4): accum(k, a.uid("kva"), 16 - 4*k)
        a("s_waitcnt vmcnt(0)")
        a.label(PZ)
        a(f"""v_max3_u32 v{U+1}, v{Z}, v{Z+1}, v{Z+2}
        v_max_u32 v{U+1}, v{U+1}, v{Z+3}
        v_cmp_eq_u32 vcc, -1, v{U+1}
        s_nop 0
        s_or_b32 s{T+5}, vcc_lo, vcc_hi
        s_or_b32 s{T+5}, s{T+5}, s{S_ISS}
        s_cbranch_scc0 {D}
        s_sub_u32 s{S_SPIN}, s{S_SPIN}, 1
        s_cbranch_scc0 {P}""")
        a.label(D)
        g.stamp("l", "kvflag")
        zs = [f"v_add_f32_dpp v{Z+i}, v{Z+i}, v{Z+i} row_ror:{st} row_mask:0xf bank_mask:0xf" for st in (8, 4, 2, 1) for i in range(4)]
        ks = [f"v_pk_add_f32 {vr(S+x+d,2)}, {vr(S+x+d,2)}, {vr(S+y+d,2)}" for x, y in ((0, 8), (16, 24), (0, 16)) for d in range(0, 8, 2)]
        ks += [f"v_cvt_pk_bf16_f32 v{U+4+d}, v{S+2*d}, v{S+2*d+1}" for d in range(4)]
        for l in ks: a(l)
        a(f"ds_write_b128 v{U+3}, {vr(U+4,4)}")
        for l in zs: a(l)
        a(f"""v_cvt_pk_bf16_f32 v{Z}, v{Z}, v{Z+1}
        v_cvt_pk_bf16_f32 v{Z+1}, v{Z+2}, v{Z+3}
        ds_write_b64 v{U+2}, {vr(Z,2)}
        s_waitcnt lgkmcnt(0)
        s_barrier""")

    def boot_val(g):
        g.a(f"""s_getreg_b32 s{T}, hwreg(HW_REG_XCC_ID, 0, 4)
        s_and_b32 s{T}, s{T}, 7
        s_mul_i32 s{T+1}, s{T}, s{T}
        s_lshl_b32 s{T}, s{T}, 6
        s_lshl_b32 s{T+1}, s{T+1}, 14
        s_add_u32 s{S_BOOT}, s{T}, s{T+1}
        s_add_u32 s{S_BOOT}, s{S_BOOT}, 1""")
    def loader(g):
        a = g.a; t0, t1, t2 = LV_T, LV_T+1, LV_T+2
        g.srd(SW, P_WQKV, 1024*6144)
        g.l_issue_w(G1, 0); g.l_issue_x(G1, 0)
        g.stamp("l", "start")
        a(f"""s_lshl_b32 s{S_LH}, s{S_W}, 10
        s_mov_b32 s{S_XSTR}, 128
        s_and_b32 s{S_K24}, s2, 1
        s_mul_i32 s{S_K24}, s{S_K24}, 24
        s_and_b32 s{S_J2}, s2, 6""")
        g.tab_first()
        g.l_line(G1, 1); g.l_issue_w(G1, 1); g.l_issue_x(G1, 1)
        a(f"""s_lshr_b32 s{T}, s{S_W}, 1
        s_lshl_b32 s{T}, s{T}, 5
        s_and_b32 s{T+1}, s{S_W}, 1
        s_lshl_b32 s{T+1}, s{T+1}, 3
        s_add_u32 s{T}, s{T}, s{T+1}
        v_bfe_u32 v{t0}, v0, 3, 2
        v_lshrrev_b32 v{t1}, 5, v0
        v_lshl_add_u32 v{t0}, v{t1}, 4, v{t0}
        v_add_u32 v{LV_KF}, s{T}, v{t0}
        v_bfe_u32 v{t0}, v0, 2, 2
        v_lshl_add_u32 v{t0}, v{t1}, 2, v{t0}
        v_and_b32 v{t2}, 16, v0
        v_add3_u32 v{LV_KH}, v{t0}, v{t2}, s{T}
        v_lshlrev_b32 v{t1}, 1, v{t1}
        v_and_b32 v{t2}, 3, v0
        v_xor_b32 v{t1}, v{t1}, v{t2}
        v_lshlrev_b32 v{LV_CHH}, 4, v{t1}
        v_lshlrev_b32 v{LV_L4}, 2, v0
        v_lshlrev_b32 v{LV_L16}, 4, v0
        s_lshl_b32 s{T}, s{S_W}, 8
        v_add_u32 v{LV_T4}, s{T}, v{LV_L4}
        s_lshl_b32 s{T}, s{S_RB}, 8
        v_add_u32 v{LV_PA}, s{T}, v{LV_L4}
        v_lshrrev_b32 v{t1}, 4, v0
        v_and_b32 v{t0}, 15, v0
        v_lshlrev_b32 v{t0}, 4, v{t0}
        v_lshl_add_u32 v{t0}, v{t1}, 12, v{t0}
        s_lshl_b32 s{T}, s{S_W}, 8
        v_add_u32 v{LV_GA}, s{T}, v{t0}
        v_bfe_u32 v{t0}, v0, 2, 2
        v_lshl_add_u32 v{t0}, v{t1}, 3, v{t0}
        v_lshlrev_b32 v{t2}, 3, v{t2}
        v_bfe_u32 v{t1}, v0, 3, 2
        v_lshl_add_u32 v{LV_TRF}, v{t1}, 5, v{t2}
        v_lshl_add_u32 v{LV_TRF}, v{t0}, 7, v{LV_TRF}
        v_lshrrev_b32 v{t1}, 1, v{t1}
        v_lshl_add_u32 v{LV_TRH}, v{t1}, 5, v{t2}
        v_lshl_add_u32 v{LV_TRH}, v{t0}, 6, v{LV_TRH}
        s_lshr_b32 s{S_PFR}, s2, 3
        s_lshl_b32 s{S_PFR}, s{S_PFR}, 1
        s_lshr_b32 s{T}, s{S_W}, 1
        s_add_u32 s{S_PFR}, s{S_PFR}, s{T}
        s_and_b32 s{S_PFH}, s{S_W}, 1
        s_lshl_b32 s{S_PFH}, s{S_PFH}, 6""")
        g.boot_val()
        a(f"s_waitcnt vmcnt({G1.P})")
        g.stamp("l", "land0")
        a.label("L_l_layer")
        g.l_main(G1, -7, nxt=G2)
        g.stamp("l", "g1end")
        a(f"v_add_u32 v{LV_X}, s{S_LX}, v{LV_L16}\ns_mov_b32 s{S_XSTR}, {TL}")
        if SKIP: a(f"v_add_u32 v{LV_X+1}, 128, v{LV_X}\nv_cmp_gt_u32 vcc, 24, v0\nv_cndmask_b32 v{LV_X}, v{LV_X+1}, v{LV_X}, vcc")
        a(f"v_add_u32 v{LV_X+1}, {KS - 1024}, v{LV_X}\nv_mov_b32 v{LV_X+2}, v{LV_X}\nv_mov_b32 v{LV_X+3}, v{LV_X+1}")
        g.l_xsrd(HB, H_RB)
        g.l_kv_gather()
        g.stamp("l", "kvdone")
        g.l_main(G2, 1, nxt=G3)
        g.l_xsrd(XA, 16*TL)
        a(f"s_waitcnt vmcnt({G3.PW})")
        g.l_main(G3, 3, nxt=G4)
        g.l_xsrd(HB, H_RB)
        g.l_main(G4, 5, nxt=G1, cond_nxt=True)
        a(f"s_cmp_lg_u32 s{S_L}, 0\ns_cbranch_scc1 L_l_fin")
        g.l_xsrd(XA, 16*TL)
        a(f"s_mov_b32 s{S_L}, 1\ns_mov_b32 s{S_FB}, 16\ns_waitcnt vmcnt({G1.PW})\ns_branch L_l_layer")
        a.label("L_l_fin")
        g.wbl("fin")
        g.finish("l")

    def c_frag(g, p):
        RW = 3 if p.NB == 6 else 4
        def xr(par): return [f"ds_read_b128 {vr(XF + par*32 + mb*8 + kk*4, 4)}, v{V_XA+kk} offset:{mb*2048}" for mb in range(4) for kk in range(2)]
        def wr(nb, slot=None):
            ri, off, w = p.nblk[nb]; slot = nb % RW if slot is None else slot
            return [f"ds_read_b64_tr_b16 {vr(WF + slot*8 + kk*4 + 2*h, 2)}, v{V_WA+ri} offset:{off + (32*kk + 4*h)*w}" for kk in range(2) for h in range(2)]
        def mf(par, nb, slot=None):
            out = []; slot = nb % RW if slot is None else slot
            sn = g.opt.get("snake", 2)
            od = [(mb, kk ^ (mb & 1) if sn else kk) for mb in range(4) for kk in range(2)]
            if sn == 2 and nb & 1: od = od[::-1]
            for mb, kk in od:
                if True:
                    d = vr(ACC + 4*(nb*4 + mb), 4)
                    X, W = vr(XF + par*32 + mb*8 + kk*4, 4), vr(WF + slot*8 + kk*4, 4)
                    A, B = (W, X) if p.swapped[nb] else (X, W)
                    out.append(f"v_mfma_f32_16x16x32_bf16 {d}, {A}, {B}, {d}")
            return out
        def inter(ms, rs):
            rs = list(rs)
            for m in ms:
                g.a(m)
                if rs: g.a(rs.pop(0))
            assert not rs
        nwa = 3 if 64 in p.subt else 2
        nxt = [f"s_add_u32 s{S_SLOT}, s{S_SLOT}, 1\ns_cmp_eq_u32 s{S_SLOT}, {p.NST}", f"s_cselect_b32 s{S_DLX}, s{S_KX}, {p.xp}",
               f"s_cselect_b32 s{S_DLW}, s{S_KW}, {p.wp}", f"s_cselect_b32 s{S_SLOT}, 0, s{S_SLOT}"]
        up = [f"v_add_u32 v{r}, s{S_DLX}, v{r}" for r in range(V_XA, V_XA+2)] + [f"v_add_u32 v{r}, s{S_DLW}, v{r}" for r in range(V_WA, V_WA+nwa)]
        up = ["\n".join(up[0:2]), "\n".join(up[2:4])] + up[4:]
        return xr, wr, mf, inter, nxt, up
    def c_pre(g, p, reps):
        a = g.a; xr, wr, mf, inter, nxt, up = g.c_frag(p)
        if p is not G1: a(f"v_add_u32 v{V_XA}, {p.x0}, v{V_XA0}\nv_add_u32 v{V_XA+1}, {p.x0 + 1024}, v{V_XA0}")
        for i in range(3 if 64 in p.subt else 2): a(f"v_mov_b32 v{V_WA+i}, v{V_WA0+i}")
        zero = [f"v_mov_b64 {vr(ACC+i,2)}, 0" for i in range(0, p.NB*16, 2)]
        if p is G4 or not g.opt.get("zlate", 1):
            for l in zero: a(l)
            zero = []
        a(f"s_mov_b32 s{S_CNT}, {reps}\ns_mov_b32 s{S_SLOT}, 0\ns_mov_b32 s{S_KX}, {(-(p.NST-1)*p.xp) & 0xffffffff:#x}\ns_mov_b32 s{S_KW}, {(-(p.NST-1)*p.wp) & 0xffffffff:#x}")
        a("s_waitcnt lgkmcnt(0)\ns_barrier")
        g.stamp("c", p.name + "b0")
        for r in wr(0) + xr(0) + wr(1) + zero: a(r)
    def c_loop(g, p):
        a = g.a; NB = p.NB; xr, wr, mf, inter, nxt, up = g.c_frag(p)
        L = a.uid("cl")
        its = g.stamps and g.opt.get("itst") == p.name
        if its:
            k = g.nst["c"]; g.nst["c"] += 16; g.stn["c"] += [f"i{i}" for i in range(16)]
            a(f"s_lshl_b32 m0, s{S_L}, 5\ns_add_u32 m0, m0, {k}")
        cnt = f"\ns_sub_u32 s{S_CNT}, s{S_CNT}, 1\ns_cmp_lg_u32 s{S_CNT}, 0"
        if NB == 2:
            def nx2(par): return [f"s_add_u32 s{S_SLOT}, s{S_SLOT}, 1\ns_cmp_eq_u32 s{S_SLOT}, 4", f"s_cselect_b32 s{S_DLX}, s{S_KX}, {p.xp}\ns_cselect_b32 s{S_SLOT}, 0, s{S_SLOT}",
                                  f"s_add_u32 s{S_LH}, s{S_LINE}, s{S_LW if par == 0 else S_LX}\ns_and_b32 s{S_LH}, s{S_LH}, 0x1ffff", f"s_sub_u32 s{S_DLW}, s{S_LH}, s{S_LINE}\ns_mov_b32 s{S_LINE}, s{S_LH}"]
            a(f"s_mov_b32 s{S_LINE}, 0")
            for l in nx2(1) + up: a(l)
        a(".p2align 3")
        a.label(L)
        for par in range(2):
            if NB == 2:
                a("s_waitcnt lgkmcnt(0)\ns_barrier")
                nx = wr(0, 2*(1-par)) + xr(1 - par) + wr(1, 2*(1-par) + 1)
                ex = nx2(par) + list(up)
                if par == 1: ex[-1] += cnt
                inter(mf(par, 0, 2*par) + mf(par, 1, 2*par + 1), [nx[2*i] + "\n" + nx[2*i+1] for i in range(8)] + ex)
                continue
            for nb in range(NB):
                if p in (G1, G3) and par == 0 and nb in (g.opt.get("sigb", 1), NB - 2):
                    M, R = a.uid("mid"), a.uid("midr")
                    a(f"s_cmp_lg_u32 s{S_MID}, 0\ns_cbranch_scc1 {M}")
                    a.label(R)
                    keep, g.a = g.a, Asm(); g.a._uid = keep._uid + 3000
                    g.a.label(M)
                    if nb != NB - 2:
                        g.signal_row(3 if p is G3 else -7, V_HK)
                        g.stamp("c", p.name + "xsig")
                    else:
                        g.a(f"s_mov_b32 s{S_MID}, 0\ns_lshl_b32 s{T+10}, s{S_L}, 1\ns_add_u32 s{T+10}, s{T+10}, {1 if p is G3 else 0}")
                        g.job_stats(f"s{T+10}", 224)
                    g.a(f"s_branch {R}")
                    g.cold.append(g.a.text()); g.a = keep
                if nb < NB - 2:
                    a("s_waitcnt lgkmcnt(4)")
                    if its and nb == NB - 3: a(f"s_memrealtime s[{S_ST}:{S_ST+1}]")
                    inter(mf(par, nb), wr(nb + 2) + (nxt if nb == 0 else up if nb == NB - 3 else []))
                elif nb == NB - 2:
                    a("s_waitcnt lgkmcnt(0)\ns_barrier")
                    if its: a(f"v_writelane_b32 v{VST}, s{S_ST}, m0\ns_add_u32 m0, m0, 1")
                    nx = wr(0) + xr(1 - par) + wr(1)
                    inter(mf(par, nb), nx[:8])
                else:
                    nx = nx[8:]
                    if par == 1: nx[6] += cnt
                    inter(mf(par, nb), nx)
        a(f"s_cbranch_scc1 {L}")
        return L
    def wbl(g, where):
        if where not in g.opt.get("wbl", ("send",)): return
        a = g.a; D = a.uid("wb")
        a(f"""s_lshr_b32 s{T}, s2, 3
        s_or_b32 s{T}, s{T}, s{S_W}
        s_cmp_ge_u32 s{T}, s{S_L}
        s_cbranch_scc1 {D}
        buffer_wbl2 sc1""")
        a.label(D)
    def remote_flag(g, vt):
        g.a(f"s_movk_i32 s{T}, {RXF}\nbuffer_store_dword v{vt}, v{V_FLG}, s[{SWS}:{SWS+3}], s{T} offen sc1")
    def deferred(g):
        g.remote_flag(V_HK)
        g.a(f"v_lshlrev_b32 v{V_CS}, 2, v0\nbuffer_store_dword v{V_SS}, v{V_CS}, s[{SWS}:{SWS+3}], s{T+13} offen sc1")
    def exit_hook(g, L):
        HC = g.a.uid("hkc")
        keep, g.a = g.a, Asm()
        g.a.label(HC); g.a(f"s_mov_b32 s{S_HOOK}, 0\ns_mov_b32 s{S_CNT}, 7")
        g.deferred(); g.a(f"s_branch {L}")
        g.cold.append(g.a.text()); g.a = keep
        return HC
    def c_g1(g):
        a = g.a; D = a.uid("st0"); HA, HB_ = a.uid("hka"), a.uid("hkb")
        g.c_pre(G1, f"s{T+12}")
        a(f"s_cmp_lg_u32 s{S_L}, 0\ns_cbranch_scc1 {D}")
        g.deferred()
        a.label(D)
        L = g.c_loop(G1)
        a(f"s_cmp_lg_u32 s{S_HOOK}, 0\ns_cbranch_scc1 {HA}")
        HC = g.exit_hook(L)
        g.cold.append(f"""{HA}:
        s_cmp_eq_u32 s{S_HOOK}, 3
        s_cbranch_scc1 {HC}
        s_cmp_eq_u32 s{S_HOOK}, 1
        s_cbranch_scc1 {HB_}
        s_mov_b32 s{S_HOOK}, 1
        s_mov_b32 s{S_CNT}, 1
        s_waitcnt vmcnt(0)
        s_branch {L}
        {HB_}:
        s_mov_b32 s{S_HOOK}, 0
        s_mov_b32 s{S_CNT}, {8 - 1 - HOOKA}
        s_cmp_lg_u32 s{S_W}, 0
        s_cbranch_scc1 {L}
        s_mov_b32 s{SM}, s{P_DBG}
        s_mov_b32 s{SM+1}, s{P_DBG+1}
        s_mov_b32 s{SM+2}, 256
        s_mov_b32 s{SM+3}, 0x20000
        s_lshl_b32 s{T}, s{S_XCD}, 5
        v_mov_b32 v{V_HK}, s{S_BOOT}
        buffer_atomic_add v{V_HK}, v{V_ONE}, s[{SM}:{SM+3}], s{T} offen sc1
        s_branch {L}""")
        a("s_waitcnt lgkmcnt(0)")
        g.stamp("c", "g1loop")
    def c_g4a(g):
        a = g.a; D = a.uid("hkd"); SD = 176
        g.c_pre(G4, 1)
        a(f"s_mov_b32 s{S_HOOK}, 1")
        L = g.c_loop(G4)
        a(f"s_cmp_eq_u32 s{S_HOOK}, 0\ns_cbranch_scc1 {D}\ns_mov_b32 s{S_CNT}, 11\ns_mov_b32 s{S_HOOK}, 0")
        g.signal_row(7, V_HK); g.remote_flag(V_HK); g.wbl("hook")
        a(f"s_branch {L}")
        a.label(D)
        a(f"""s_lshl_b32 s{T+1}, s2, 14
        s_lshl_b32 s{T+2}, s{S_W}, 12
        s_add_u32 s{T+1}, s{T+1}, s{T+2}
        s_xor_b32 s{T+2}, s{T+1}, {1 << 14}
        s_add_u32 s{T+7}, s{T+1}, {XB}
        s_add_u32 s{T+5}, s{T+2}, {XB}
        v_lshlrev_b32 v{V_L16}, 4, v0
        s_mov_b32 s{S_CNT}, {4 - g.opt.get("xbl", 1)}
        s_mov_b32 s{S_HOOK}, 1""")
        for mb in range(4):
            for b in range(2):
                for h in range(2):
                    t = ACC + 4*((2+b)*4 + mb) + 2*h
                    a(f"v_cvt_pk_bf16_f32 v{SD+4*mb+2*b+h}, v{t}, v{t+1}")
            a(f"buffer_store_dwordx4 {vr(SD+4*mb,4)}, v{V_L16}, s[{SWS}:{SWS+3}], s{T+5} offen offset:{1024*mb} sc1")
        g.wbl("send")
    def xb_loads(g): return [f"buffer_load_dwordx4 {vr(V_PP+4*mb,4)}, v{V_L16}, s[{SWS}:{SWS+3}], s{T+7} offen offset:{1024*mb} sc1" for mb in range(4)]
    def c_nb2(g):
        a = g.a; D = a.uid("hkd")
        L = g.c_loop(G2)
        a(f"s_cmp_eq_u32 s{S_HOOK}, 0\ns_cbranch_scc1 {D}\ns_mov_b32 s{S_CNT}, {g.opt.get('xbl', 1)}\ns_mov_b32 s{S_HOOK}, 0")
        for l in g.xb_loads(): a(l)
        if g.opt.get("xbl", 1): a(f"s_branch {L}")
        a.label(D)
        a("s_waitcnt lgkmcnt(0)")
        g.stamp("c", "loop", True)

    def phi(g, t, u, dst):
        c = f"s[{S_C}:{S_C+1}]"
        return [f"v_pk_fma_f32 {vr(u,2)}, {vr(t,2)}, {c}, {c} op_sel:[0,0,1] op_sel_hi:[1,0,1]",
                f"v_max_f32 v{t}, s{S_C+2}, v{t}", f"v_max_f32 v{t+1}, s{S_C+2}, v{t+1}",
                f"v_exp_f32 v{u}, v{u} clamp", f"v_exp_f32 v{u+1}, v{u+1} clamp",
                f"v_pk_add_f32 {vr(t,2)}, {vr(t,2)}, {vr(u,2)}",
                f"v_cvt_pk_bf16_f32 v{dst}, v{t}, v{t+1}"]
    def zipemit(g, streams):
        streams = [list(s) for s in streams]
        while any(streams):
            for s in streams:
                if s: g.a(s.pop(0))

    def clear_kv(g, layer, t0):
        g.a(f"""v_lshlrev_b32 v{t0}, 4, v0
        v_and_b32 v{t0+1}, 15, v0
        v_lshlrev_b32 v{t0+1}, 2, v{t0+1}
        s_lshl_b32 s{T}, s{S_CB}, 16
        s_lshl_b32 s{T+1}, s{S_RB}, 10
        s_add_u32 s{T}, s{T}, s{T+1}
        s_lshl_b32 s{T+1}, s{S_W}, 14
        s_add_u32 s{T}, s{T}, s{T+1}
        s_lshr_b32 s{T+1}, s{T}, 4
        s_add_u32 s{T}, s{T}, {KVP + layer*KVP_L}
        s_add_u32 s{T+1}, s{T+1}, {ZP + layer*ZP_L}
        buffer_store_dwordx4 {vr(V_SEN,4)}, v{t0}, s[{SWS}:{SWS+3}], s{T} offen sc1
        buffer_store_dword v{V_SEN}, v{t0+1}, s[{SWS}:{SWS+3}], s{T+1} offen sc1""")
    def clear_xb(g, t0):
        g.a(f"""v_mov_b64 {vr(V_SEN,2)}, -1
        v_mov_b64 {vr(V_SEN+2,2)}, -1
        v_lshlrev_b32 v{t0}, 4, v0
        s_lshl_b32 s{T}, s2, 14
        s_lshl_b32 s{T+1}, s{S_W}, 12
        s_add_u32 s{T}, s{T}, s{T+1}
        s_add_u32 s{T}, s{T}, {XB}""")
        for mb in range(4): g.a(f"buffer_store_dwordx4 {vr(V_SEN,4)}, v{t0}, s[{SWS}:{SWS+3}], s{T} offen offset:{1024*mb} sc1")
    def c_epi_g1(g):
        a = g.a
        acc = lambda nb, mb: ACC + 4*(nb*4 + mb)
        R, NM, CSN, RQ, CSQ_ = 16, 32, 48, 56, 64
        PK, VV, PQ, KV, U, ONE = 72, 88, 208, 224, 104, 248
        eps2 = f"s[{S_C+2}:{S_C+3}]"
        a(f"""s_mov_b32 s{S_C}, {f2u(LOG2E):#x}
        s_mov_b32 s{S_C+1}, {f2u(-EPS*LOG2E):#x}
        s_mov_b32 s{S_C+2}, {f2u(EPS):#x}
        s_mov_b32 s{S_C+3}, 0
        v_and_b32 v{U}, 48, v0
        v_and_b32 v{U+1}, 15, v0
        v_lshlrev_b32 v{U+1}, 2, v{U+1}
        s_lshl_b32 s{T}, s{S_WM}, 8
        s_add_u32 s{T}, s{T}, {L_RSTD}
        s_lshl_b32 s{T+1}, s{S_WN}, 7
        s_add_u32 s{T+1}, s{T+1}, {L_CSQ}
        v_add_u32 v{U+2}, s{T}, v{U}
        v_add_u32 v{U+3}, s{T+1}, v{U+1}
        v_add_u32 v{U+4}, s{T}, v{U+1}
        v_add_u32 v{U+5}, s{T+1}, v{U}
        v_mov_b32 v{U+6}, {L_MODE}""")
        for i in range(4): a(f"ds_read_b32 v{CSN+2*i}, v{U+3} offset:{256*(1 + i//2) + 64*(i%2)}")
        for mb in range(4):
            a(f"ds_read_b128 {vr(NM+4*mb,4)}, v{U+2} offset:{512 + 64*mb}\nds_read_b128 {vr(R+4*mb,4)}, v{U+2} offset:{64*mb}")
        a(f"ds_read_b32 v{U+7}, v{U+6}")
        a("s_waitcnt vmcnt(0) lgkmcnt(0)")
        for mb in range(4): a(f"ds_read2_b32 {vr(RQ+2*mb,2)}, v{U+4} offset0:{16*mb} offset1:{128 + 16*mb}")
        for b in range(2): a(f"ds_read_b128 {vr(CSQ_+4*b,4)}, v{U+5} offset:{64*b}")
        a(f"v_readfirstlane_b32 s{S_MODE}, v{U+7}")
        for i in range(4): a(f"v_mov_b32 v{ONE+i}, 0x3f803f80")
        for mb in range(4):
            st = []
            for b in range(2):
                for h in range(2):
                    t = acc(2+b, mb) + 2*h; u = U + 2*(2*b + h)
                    st.append([f"v_pk_fma_f32 {vr(u,2)}, {vr(NM+4*mb+2*h,2)}, {vr(CSN+2*b,2)}, {eps2} op_sel_hi:[1,0,0]",
                               f"v_pk_fma_f32 {vr(t,2)}, {vr(t,2)}, {vr(R+4*mb+2*h,2)}, {vr(u,2)}"]
                              + g.phi(t, u, PK + 8*b + 2*mb + h))
            g.zipemit(st)
            st = []
            for b in range(2):
                for h in range(2):
                    t = acc(4+b, mb) + 2*h; u = U + 2*(2*b + h)
                    st.append([f"v_pk_mul_f32 {vr(u,2)}, {vr(NM+4*mb+2*h,2)}, {vr(CSN+4+2*b,2)} op_sel_hi:[1,0]",
                               f"v_pk_fma_f32 {vr(t,2)}, {vr(t,2)}, {vr(R+4*mb+2*h,2)}, {vr(u,2)}",
                               f"v_cvt_pk_bf16_f32 v{VV + 8*b + 2*mb + h}, v{t}, v{t+1}"])
            g.zipemit(st)
            if mb % 2 == 1:
                u2 = mb // 2
                for eb in range(3):
                    for db in range(2):
                        d = vr(KV + 8*eb + 4*db, 4)
                        B = vr(VV + 8*eb + 4*u2, 4) if eb < 2 else vr(ONE, 4)
                        a(f"v_mfma_f32_16x16x32_bf16 {d}, {vr(PK + 8*db + 4*u2, 4)}, {B}, {'0' if u2 == 0 else d}")
        W1 = a.uid("kvw"); W2 = a.uid("kvx")
        a(f"""s_mul_i32 s{T}, s{S_W}, 3072
        s_add_u32 s{T}, s{T}, {L_XCH}
        s_xor_b32 s{T+1}, s{S_W}, 2
        s_mul_i32 s{T+1}, s{T+1}, 3072
        s_add_u32 s{T+1}, s{T+1}, {L_XCH}
        v_lshl_add_u32 v{U}, v0, 4, s{T}
        v_lshl_add_u32 v{U+1}, v0, 4, s{T+1}
        s_lshl_b32 s{T}, s{S_L}, 20
        s_lshl_b32 s{T+1}, s{S_CB}, 16
        s_add_u32 s{T}, s{T}, s{T+1}
        s_lshl_b32 s{T+1}, s{S_WN}, 15
        s_add_u32 s{T}, s{T}, s{T+1}
        s_lshl_b32 s{T+1}, s{S_WM}, 14
        s_add_u32 s{T}, s{T}, s{T+1}
        s_lshl_b32 s{T+1}, s{S_RB}, 10
        s_add_u32 s{T}, s{T}, s{T+1}
        s_lshr_b32 s{T+1}, s{T}, 4
        s_add_u32 s{T}, s{T}, {KVP}
        s_add_u32 s{T+1}, s{T+1}, {ZP}
        v_lshlrev_b32 v{U+2}, 4, v0
        v_and_b32 v{U+3}, 15, v0
        v_cmp_eq_u32 vcc, 0, v{U+3}
        v_mov_b32 v{U+3}, {WSZ}
        v_cndmask_b32 v{U+3}, v{U+3}, v0, vcc
        s_cmp_eq_u32 s{S_WM}, 0
        s_cbranch_scc0 {W1}""")
        for wm in range(2):
            if wm == 1: a.label(W1)
            keep = [KV + 8*wm, KV + 8*wm + 4, KV + 16 + 4*wm]
            send = [KV + 8*(1-wm), KV + 8*(1-wm) + 4, KV + 16 + 4*(1-wm)]
            for i in range(3): a(f"ds_write_b128 v{U}, {vr(send[i],4)} offset:{1024*i}")
            a("s_waitcnt lgkmcnt(0)\ns_barrier")
            for i in range(3): a(f"ds_read_b128 {vr(R+4*i,4)}, v{U+1} offset:{1024*i}")
            for i in range(3):
                a(f"s_waitcnt lgkmcnt({2-i})")
                for h in range(2): a(f"v_pk_add_f32 {vr(R+4*i+2*h,2)}, {vr(R+4*i+2*h,2)}, {vr(keep[i]+2*h,2)}")
            if wm == 0: a(f"s_branch {W2}")
        a.label(W2)
        for d in range(4): a(f"v_cvt_pk_bf16_f32 v{NM+d}, v{R+2*d}, v{R+2*d+1}")
        a(f"""buffer_store_dwordx4 {vr(NM,4)}, v{U+2}, s[{SWS}:{SWS+3}], s{T} offen sc1
        buffer_store_dwordx4 {vr(R+8,4)}, v{U+3}, s[{SWS}:{SWS+3}], s{T+1} offen sc1""")
        g.stamp("c", "kvst")
        for mb in range(4):
            st = []
            for b in range(2):
                for h in range(2):
                    t = acc(b, mb) + 2*h; u = U + 2*(2*b + h)
                    st.append([f"v_pk_fma_f32 {vr(u,2)}, {vr(CSQ_+4*b+2*h,2)}, {vr(RQ+2*mb,2)}, {eps2} op_sel:[0,1,0] op_sel_hi:[1,1,0]",
                               f"v_pk_fma_f32 {vr(t,2)}, {vr(t,2)}, {vr(RQ+2*mb,2)}, {vr(u,2)} op_sel_hi:[1,0,1]"]
                              + g.phi(t, u, PQ + 4*mb + 2*b + h))
            g.zipemit(st)
        if g.ctrickle: g.job_trickle(g.ctrickle, T+4, T+6)
        a(f"""s_lshl_b32 s{T}, s{S_WN}, 11
        s_add_u32 s{T}, s{T}, {L_KVF}
        v_lshl_add_u32 v{U+1}, v0, 4, s{T}
        s_lshl_b32 s{T}, s{S_WN}, 10
        v_add_u32 v{U+3}, s{T}, v{V_XA0}
        v_add_u32 v{U+3}, {G2.x0}, v{U+3}
        s_add_u32 s{T}, s{T}, {L_ZF}
        v_lshl_add_u32 v{U+2}, v0, 4, s{T}
        s_mul_i32 s{T}, s{S_RB}, {H_RB}
        s_and_b32 s{T+1}, s{S_CB}, 8
        s_lshl_b32 s{T+1}, s{T+1}, 1
        s_add_u32 s{T+1}, s{T+1}, s{S_CB}
        s_lshl_b32 s{T+1}, s{T+1}, {LT}
        s_add_u32 s{T}, s{T}, s{T+1}
        s_add_u32 s{T+2}, s{T}, {HB}
        s_add_u32 s{T+3}, s{T+2}, 4096""")
        g.stamp("c", "kvflag")
        if g.ctrickle: a("s_waitcnt lgkmcnt(0)")
        a(f"""s_barrier
        ds_read_b128 {vr(R+8,4)}, v{U+2}
        ds_read_b128 {vr(R,4)}, v{U+1}
        ds_read_b128 {vr(R+4,4)}, v{U+1} offset:1024""")
        g.stamp("c", "bk2")
        a("s_waitcnt lgkmcnt(2)")
        for mb in range(4): a(f"v_mfma_f32_16x16x32_bf16 {vr(acc(2,mb),4)}, {vr(R+8,4)}, {vr(PQ+4*mb,4)}, 0")
        a("s_waitcnt lgkmcnt(0)")
        for mb in range(4):
            for eb in range(2): a(f"v_mfma_f32_16x16x32_bf16 {vr(acc(eb,mb),4)}, {vr(R+4*eb,4)}, {vr(PQ+4*mb,4)}, 0")
        for mb in range(4): a(f"v_add_f32 v{acc(2,mb)}, s{S_C+2}, v{acc(2,mb)}")
        for mb in range(4): a(f"v_rcp_f32 v{acc(2,mb)}, v{acc(2,mb)}")
        ln = []
        for mb in range(4):
            for eb in range(2):
                for h in range(2):
                    t = acc(eb, mb) + 2*h
                    ln.append(f"v_pk_mul_f32 {vr(t,2)}, {vr(t,2)}, {vr(acc(2,mb),2)} op_sel_hi:[1,0]")
            for eb in range(2):
                for h in range(2):
                    t = acc(eb, mb) + 2*h
                    ln.append(f"v_cvt_pk_bf16_f32 v{acc(3,mb) + 2*eb + h}, v{t}, v{t+1}")
            ln.append(f"buffer_store_dwordx4 {vr(acc(3,mb),4)}, v{V_FS}, s[{SWS}:{SWS+3}], s{T+2+mb//2} offen offset:{2048*(mb%2)}")
            ln.append(f"ds_write_b128 v{U+3}, {vr(acc(3,mb),4)} offset:{2048*mb}")
        for l in ln: a(l + (" sc1" if l.startswith("buffer") else ""))

    def c_epi_g24(g):
        a = g.a
        acc = lambda nb, mb: ACC + 4*(nb*4 + mb)
        RS, BI, U, XO, B2 = 16, 32, 40, 80, 96
        NB_ = a.uid("nob"); PL = a.uid("xpl"); PC = a.uid("xpc")
        for mb in range(4):
            for b in range(2): a(f"ds_read_b64 {vr(RS+4*mb+2*b,2)}, v{V_RES+b} offset:{2048*mb}")
        a(f"""s_lshl_b32 s{T+1}, s{S_RB}, {LT+4}
        s_lshl_b32 s{T+2}, s{S_CB}, {LT}
        s_add_u32 s{T+2}, s{T+2}, s{T+1}
        s_add_u32 s{T+2}, s{T+2}, {XA}
        s_add_u32 s{T+3}, s{T+2}, 4096
        s_mul_i32 s{T+9}, s{S_G4}, 6
        s_add_u32 s{T+9}, s{T+9}, 3
        s_and_b32 s{T+4}, s{S_G4}, s{S_L}
        s_cselect_b32 s{T}, {WSZ}, 0
        v_add_u32 v{U+2}, s{T}, v{V_FS}
        s_lshl_b32 s{T}, s{S_WN}, 10
        s_add_u32 s{T}, s{T}, {G1.x0}
        v_add_u32 v{U+4}, s{T}, v{V_XA0}
        s_cmp_eq_u32 s{S_G4}, 0
        s_cbranch_scc1 {NB_}
        s_lshl_b32 s{T}, s{S_WN}, 7
        s_add_u32 s{T}, s{T}, {L_B2}
        v_and_b32 v{U+1}, 48, v0
        v_add_u32 v{U+1}, s{T}, v{U+1}
        s_mov_b32 s{S_SPIN}, {SPIN}""")
        for b in range(2): a(f"ds_read_b128 {vr(B2+4*b,4)}, v{U+1} offset:{64*b}")
        g.cold.append(f"{PL}:\n" + "\n".join(g.xb_loads()) + f"\ns_branch {PC}")
        a.label(PC)
        a("s_waitcnt vmcnt(0)")
        for mb in range(4):
            p0 = V_PP + 4*mb
            if mb == 0: a(f"v_max3_u32 v{U+3}, v{p0}, v{p0+1}, v{p0+2}\nv_max_u32 v{U+3}, v{U+3}, v{p0+3}")
            else: a(f"v_max3_u32 v{U+3}, v{U+3}, v{p0}, v{p0+1}\nv_max3_u32 v{U+3}, v{U+3}, v{p0+2}, v{p0+3}")
        a(f"v_cmp_eq_u32 vcc, -1, v{U+3}")
        g.retry(PL)
        g.stamp("c", "g4pflag")
        a("s_waitcnt lgkmcnt(0)")
        def unp(src, mb, tail):
            st = []
            for b in range(2):
                for h in range(2):
                    t = acc(b, mb) + 2*h; u = BI + 2*(2*b+h); r = src + 4*mb + 2*b + h
                    st.append([f"v_lshlrev_b32 v{u}, 16, v{r}", f"v_and_b32 v{u+1}, 0xffff0000, v{r}", f"v_pk_add_f32 {vr(t,2)}, {vr(t,2)}, {vr(u,2)}", tail(t, b, h)])
            g.zipemit(st)
        for mb in range(4): unp(V_PP, mb, lambda t, b, h: f"v_pk_add_f32 {vr(t,2)}, {vr(t,2)}, {vr(B2+4*b+2*h,2)}")
        a.label(NB_)
        for mb in range(4):
            a(f"s_waitcnt lgkmcnt({6 + mb})")
            unp(RS, mb, lambda t, b, h: f"v_cvt_pk_bf16_f32 v{XO+4*mb+2*b+h}, v{t}, v{t+1}")
            a(f"buffer_store_dwordx4 {vr(XO+4*mb,4)}, v{U+2}, s[{SWS}:{SWS+3}], s{T+2+mb//2} offen offset:{2048*(mb%2)} sc1")
            for b in range(2): a(f"ds_write_b64 v{V_RES+b}, {vr(XO+4*mb+2*b,2)} offset:{2048*mb}")
            a(f"ds_write_b128 v{U+4}, {vr(XO+4*mb,4)} offset:{2048*mb}")
        a(f"s_cmp_lg_u32 s{T+4}, 0\ns_cbranch_scc1 L_c_fin")
        a(f"s_mov_b32 s{S_MID}, 1\ns_mov_b32 s{S_HOOK}, 3")

    def c_epi_g3(g):
        a = g.a
        acc = lambda nb, mb: ACC + 4*(nb*4 + mb)
        CS, B1, RQ, U, HO = 16, 44, 72, 80, 224
        c = f"s[{S_C}:{S_C+1}]"
        a(f"""s_mov_b32 s{S_C}, {f2u(GC2):#x}
        s_mov_b32 s{S_C+1}, {f2u(GC1):#x}
        v_and_b32 v{U}, 48, v0
        v_and_b32 v{U+1}, 15, v0
        s_lshl_b32 s{T}, s{S_WM}, 8
        s_add_u32 s{T}, s{T}, {L_RSTD}
        v_lshl_add_u32 v{U+1}, v{U+1}, 2, s{T}
        s_lshl_b32 s{T+1}, s{S_WN}, 7
        s_add_u32 s{T+1}, s{T+1}, {L_CS1}
        v_add_u32 v{U+2}, s{T+1}, v{U}
        s_lshl_b32 s{T+1}, s{S_WN}, 6
        s_add_u32 s{T+1}, s{T+1}, {L_CS1 + 768}
        v_add_u32 v{U+3}, s{T+1}, v{U}""")
        for mb in range(4): a(f"ds_read2_b32 {vr(RQ+2*mb,2)}, v{U+1} offset0:{16*mb} offset1:{128 + 16*mb}")
        for nb in range(7):
            ad, off = (U+2, 256*(nb//2) + 64*(nb%2)) if nb < 6 else (U+3, 0)
            a(f"ds_read_b128 {vr(CS+4*nb,4)}, v{ad} offset:{off}\nds_read_b128 {vr(B1+4*nb,4)}, v{ad} offset:{off + L_B1 - L_CS1}")
            if nb == 3: a("s_waitcnt lgkmcnt(4)")
        a(f"""s_mul_i32 s{T}, s{S_RB}, {H_RB}
        s_add_u32 s{T}, s{T}, {HB}
        s_and_b32 s{T+1}, s{S_CB}, 7
        s_lshl_b32 s{T+1}, s{T+1}, {LT}
        s_add_u32 s{T}, s{T}, s{T+1}
        s_lshr_b32 s{T+1}, s{S_CB}, 3
        s_mul_i32 s{T+2}, s{T+1}, {24*TL}
        s_add_u32 s{T+2}, s{T+2}, s{T}
        s_add_u32 s{T+3}, s{T+2}, 4096
        s_mul_i32 s{T+4}, s{S_RB}, {H_RB}
        s_lshr_b32 s{T+1}, s{S_CB}, 1
        s_lshl_b32 s{T+1}, s{T+1}, {LT}
        s_add_u32 s{T+4}, s{T+4}, s{T+1}
        s_and_b32 s{T+1}, s{S_CB}, 1
        s_lshl_b32 s{T+1}, s{T+1}, {LK}
        s_add_u32 s{T+4}, s{T+4}, s{T+1}
        s_add_u32 s{T+4}, s{T+4}, {HB + 48*TL}
        s_mul_i32 s{T+1}, s{S_WN}, {KS - 8}
        s_sub_u32 s{T+4}, s{T+4}, s{T+1}
        s_add_u32 s{T+5}, s{T+4}, 4096""")
        def gelu(nb, mb, h, u, dst):
            t = acc(nb, mb) + 2*h
            return [f"v_pk_fma_f32 {vr(u,2)}, {vr(CS+4*nb+2*h,2)}, {vr(RQ+2*mb,2)}, {vr(B1+4*nb+2*h,2)} op_sel:[0,1,0] op_sel_hi:[1,1,1]",
                    f"v_pk_fma_f32 {vr(t,2)}, {vr(t,2)}, {vr(RQ+2*mb,2)}, {vr(u,2)} op_sel_hi:[1,0,1]",
                    f"v_pk_mul_f32 {vr(u,2)}, {vr(t,2)}, {vr(t,2)}",
                    f"v_pk_fma_f32 {vr(u,2)}, {vr(u,2)}, {c}, {c} op_sel:[0,0,1] op_sel_hi:[1,0,1]",
                    f"v_pk_mul_f32 {vr(u,2)}, {vr(u,2)}, {vr(t,2)}",
                    f"v_exp_f32 v{u}, v{u}\nv_exp_f32 v{u+1}, v{u+1}",
                    f"v_pk_add_f32 {vr(u,2)}, {vr(u,2)}, 1.0 op_sel_hi:[1,0]",
                    f"v_rcp_f32 v{u}, v{u}\nv_rcp_f32 v{u+1}, v{u+1}",
                    f"v_pk_mul_f32 {vr(t,2)}, {vr(t,2)}, {vr(u,2)}",
                    f"v_cvt_pk_bf16_f32 v{dst}, v{t}, v{t+1}"]
        k = 0
        a(f"s_and_b32 s{T+6}, s{S_CB}, 4")
        for t3 in (0, 1, 3, 2):
            if t3 == 1: a("s_waitcnt lgkmcnt(0)")
            if t3 == 3:
                for m2 in range(2):
                    o = HO + 4*(k % 4); k += 1
                    g.zipemit([gelu(6, 2*m2 + b, h, U + 4 + 2*(2*b+h), o + 2*b + h) for b in range(2) for h in range(2)])
                    for b in range(2):
                        a(f"buffer_store_dwordx2 {vr(o+2*b,2)}, v{V_FS}, s[{SWS}:{SWS+3}], s{T+4+m2} offen offset:{2048*b}")
                continue
            if t3 == 2 and g.opt.get("l2dup", 0):
                keep, g.a = g.a, Asm()
                for mb in range(4):
                    o = HO + 4*(k % 4); k += 1
                    g.zipemit([gelu(2*t3 + b, mb, h, U + 4 + 2*(2*b+h), o + 2*b + h) for b in range(2) for h in range(2)])
                    g.a(f"buffer_store_dwordx4 {vr(o,4)}, v{V_FS}, s[{SWS}:{SWS+3}], s{T+2+mb//2} offen offset:{2048*(mb%2)}")
                ln = [l.strip() for l in g.a.lines]; g.a = keep
                g.stores_by_mode(ln, T+6, 4)
                continue
            for mb in range(4):
                o = HO + 4*(k % 4); k += 1
                g.zipemit([gelu(2*t3 + b, mb, h, U + 4 + 2*(2*b+h), o + 2*b + h) for b in range(2) for h in range(2)])
                st = f"buffer_store_dwordx4 {vr(o,4)}, v{V_FS}, s[{SWS}:{SWS+3}], s{T+2+mb//2} offen offset:{2048*(mb%2)}"
                if t3 == 2: g.stores_by_mode([st], T+6, 4)
                else: a(st)
                if (t3, mb) == (1, g.opt.get("h0sig", 1)):
                    g.signal_row(5, V_HK, mb + 1)
                    g.stamp("c", "h0sig")
            if t3 < 2: a(f"s_add_u32 s{T+2}, s{T+2}, {8*TL}\ns_add_u32 s{T+3}, s{T+3}, {8*TL}")
        g.stamp("c", "hsig")

    def compute(g):
        a = g.a; t0, t1, t2, t3 = 16, 17, 18, 19
        a(".p2align 3")
        a.label("L_compute")
        g.stamp("c", "start")
        if g.stamps:
            a(f"v_writelane_b32 v{VST}, s92, {g.nst['c']}"); g.nst["c"] += 1; g.stn["c"].append("t00")
        a(f"""s_getpc_b64 s[{T}:{T+1}]
        L_pc:
        s_sub_u32 s{T}, s{T}, L_pc-{NAME}
        s_subb_u32 s{T+1}, s{T+1}, 0
        s_lshr_b32 s{T+2}, s2, 3
        s_lshl_b32 s{T+2}, s{T+2}, 2
        s_add_u32 s{T+2}, s{T+2}, s{S_W}
        s_lshl_b32 s{T+2}, s{T+2}, 9
        v_and_b32 v{t0}, 3, v0
        v_lshl_add_u32 v{t0}, v{t0}, 7, s{T+2}
        v_min_u32 v{t0}, L_end-{NAME}, v{t0}
        global_load_dword v{V_HK}, v{t0}, s[{T}:{T+1}]""")
        a(f"""s_lshr_b32 s{S_WM}, s{S_W}, 1
        s_and_b32 s{S_WN}, s{S_W}, 1
        v_and_b32 v{t0}, 15, v0
        v_lshrrev_b32 v{t1}, 4, v0
        v_lshrrev_b32 v{t2}, 1, v{t0}
        v_xor_b32 v{t3}, v{t2}, v{t1}
        v_lshlrev_b32 v{t3}, 4, v{t3}
        v_lshl_add_u32 v{t3}, v{t0}, 7, v{t3}
        s_lshl_b32 s{T}, s{S_WM}, 13
        v_add_u32 v{V_XA}, s{T}, v{t3}
        v_add_u32 v{V_XA}, {G1.x0}, v{V_XA}
        v_xor_b32 v{V_XA+1}, 64, v{V_XA}
        v_lshl_add_u32 v{V_XA0}, v0, 4, s{T}
        s_lshl_b32 s{T+1}, s{S_WN}, {LK}
        v_add_u32 v{V_FS}, s{T+1}, v{V_XA0}
        v_add_u32 v{V_RES}, {128 if SKIP else 0}, v{V_FS}
        v_cmp_gt_u32 vcc, 24, v0
        v_cndmask_b32 v{V_FS}, v{V_RES}, v{V_FS}, vcc
        s_lshl_b32 s{T+1}, s{S_WN}, 2
        v_lshrrev_b32 v{t3}, 5, v0
        v_add_u32 v{t3}, s{T+1}, v{t3}
        v_xor_b32 v{t3}, v{t3}, v{t2}
        v_lshlrev_b32 v{t3}, 4, v{t3}
        v_lshl_add_u32 v{t3}, v{t0}, 7, v{t3}
        v_and_b32 v{t2}, 1, v{t1}
        v_lshl_add_u32 v{t3}, v{t2}, 3, v{t3}
        s_add_u32 s{T}, s{T}, {RES}
        v_add_u32 v{V_RES}, s{T}, v{t3}
        v_xor_b32 v{V_RES+1}, 32, v{V_RES}
        v_bfe_u32 v{t0}, v0, 2, 2
        v_lshl_add_u32 v{t0}, v{t1}, 3, v{t0}
        v_bfe_u32 v{t2}, v0, 3, 2
        v_and_b32 v{t3}, 3, v0
        v_lshlrev_b32 v{t3}, 3, v{t3}
        s_lshl_b32 s{T}, s{S_WN}, 1
        v_xor_b32 v{V_WA0}, s{T}, v{t2}
        v_lshl_add_u32 v{V_WA0}, v{V_WA0}, 5, v{t3}
        v_lshl_add_u32 v{V_WA0}, v{t0}, 7, v{V_WA0}
        v_xor_b32 v{V_WA0+1}, 32, v{V_WA0}
        v_lshrrev_b32 v{t2}, 1, v{t2}
        v_xor_b32 v{t2}, s{S_WN}, v{t2}
        v_lshl_add_u32 v{t2}, v{t2}, 5, v{t3}
        v_lshl_add_u32 v{V_WA0+2}, v{t0}, 6, v{t2}
        v_cmp_eq_u32 vcc, 0, v0
        v_mov_b32 v{t0}, {WSZ}
        v_cndmask_b32 v{V_ONE}, v{t0}, 0, vcc
        s_lshl_b32 s{T}, s{S_RB}, 8
        s_lshl_b32 s{T+1}, s{S_CB}, 4
        s_add_u32 s{T}, s{T}, s{T+1}
        s_lshl_b32 s{T+1}, s{S_W}, 2
        s_add_u32 s{T}, s{T}, s{T+1}
        v_add_u32 v{V_FLG}, s{T}, v{V_ONE}""")
        a(f"""v_mov_b64 {vr(V_SEN,2)}, -1
        v_mov_b64 {vr(V_SEN+2,2)}, -1
        v_mov_b32 v{V_CS}, 0
        s_movk_i32 s{T+3}, {RXF}
        buffer_store_dword v{V_CS}, v{V_FLG}, s[{SWS}:{SWS+3}], 0 offen sc1
        buffer_store_dword v{V_CS}, v{V_FLG}, s[{SWS}:{SWS+3}], s{T+3} offen sc1
        v_lshlrev_b32 v{t1}, 2, v0
        s_lshl_b32 s{T}, s{S_CB}, 14
        s_lshl_b32 s{T+1}, s{S_RB}, 10
        s_add_u32 s{T}, s{T}, s{T+1}
        s_lshl_b32 s{T+2}, s{S_W}, 8
        s_add_u32 s{T}, s{T}, s{T+2}
        s_add_u32 s{T}, s{T}, {CSP + CSP_I}
        buffer_store_dword v{V_SEN}, v{t1}, s[{SWS}:{SWS+3}], s{T} offen sc1""")
        g.clear_kv(0, t0)
        g.boot_val()
        a("s_waitcnt vmcnt(5)")
        g.job_stats(0)
        a(f"v_mov_b32 v{V_HK}, 0")
        a(f"s_mov_b32 s{S_HOOK}, 2\ns_mov_b32 s{T+12}, {HOOKA}\ns_mov_b32 s{S_MID}, 0")
        g.stamp("c", "init")
        a.label("L_c_layer")
        g.c_g1()
        g.c_epi_g1()
        w8 = g.opt.get("w8", 1)
        a(f"s_mov_b32 s{S_G4}, 0\ns_mov_b32 s{S_LX}, {8192 if w8 else 32768}\ns_mov_b32 s{S_LW}, {24576 if w8 else 32768}")
        g.c_pre(G2, 8)
        g.signal_row(1, V_HK); g.remote_flag(V_HK)
        g.stamp("c", "osig")
        a.label("L_c_nb2")
        g.c_nb2()
        g.c_epi_g24()
        a(f"""s_cmp_eq_u32 s{S_G4}, 0
        s_cbranch_scc1 L_c_g3
        v_add_u32 v{V_XA}, {G1.x0}, v{V_XA0}
        v_add_u32 v{V_XA+1}, {G1.x0 + 1024}, v{V_XA0}
        s_mov_b32 s{S_L}, 1
        s_mov_b32 s{S_FB}, 16
        s_mov_b32 s{T+12}, 1
        s_branch L_c_layer""")
        a.label("L_c_g3")
        g.c_pre(G3, 1)
        L = g.c_loop(G3)
        a(f"s_cmp_lg_u32 s{S_HOOK}, 0\ns_cbranch_scc1 {g.exit_hook(L)}")
        a("s_waitcnt lgkmcnt(0)")
        g.stamp("c", "g3loop")
        g.c_epi_g3()
        a(f"s_mov_b32 s{S_G4}, 1\ns_mov_b32 s{S_LX}, 32768\ns_mov_b32 s{S_LW}, 32768")
        g.c_g4a()
        g.stamp("c", "g4send")
        a("s_branch L_c_nb2")
        a.label("L_c_fin")
        g.finish("c")

    def build(g):
        g.entry(); g.loader(); g.compute()
        for c in g.cold: g.a(c)
        g.a.label("L_end"); g.a("s_endpgm")
        rep = []
        lines = fixup.fix_hazards(g.a.lines, rep)
        lines = fixup.fix_align(lines)
        g.haz = rep
        hdr = open("cdna_kernels/" + NAME[:-7] + ".s.ref").read().split("; Override")[0]
        out = hdr + f"; @launch grid=(256,1,1) block=(512,1,1) lds={LDS_BYTES}\n"
        out += '.amdgcn_target "amdgcn-amd-amdhsa--gfx950"\n.text\n' + kernel_header(NAME) + "\n".join(lines) + "\n"
        out += '.fill 64, 4, 0xBF800000\n.section .rodata,"a"\n.p2align 6\n' + kernel_desc(NAME, 256, 256, 102)
        return out

V_FS, V_RES, V_XA, V_WA, V_XA0, V_WA0, V_ONE, V_FLG = 1, 2, 4, 6, 9, 10, 13, 14
XF, WF, ACC = 16, 80, 112
V_CS, V_SS, V_HK, V_SEN, V_L16, V_PP = 252, 253, 254, 244, 15, 192
LV_X, LV_W, LV_T = 4, 8, 16
LV_KN, LV_KF, LV_KH, LV_CH, LV_CHH, LV_TRF, LV_TRH, LV_DUM, LV_L4, LV_L16, LV_T4, LV_GA, LV_PA, LV_PV = range(24, 38)

if __name__ == "__main__":
    import argparse, json
    ap = argparse.ArgumentParser(); ap.add_argument("out"); ap.add_argument("--stamps", action="store_true"); ap.add_argument("--slow", action="store_true"); ap.add_argument("--opt", default="{}")
    ar_ = ap.parse_args()
    g = Gen(stamps=ar_.stamps, force_slow=ar_.slow, opt=eval(ar_.opt))
    txt = g.build()
    open(ar_.out, "w").write(txt)
    json.dump(g.stn, open(ar_.out + ".stamps", "w"))
    print("hazard nops:", len(g.haz))
    for h in sorted(set(g.haz)):
        if " lds" not in h[1]: print("  ", h)
```

```python
import re, subprocess, os, tempfile

REG = re.compile(r'(?<![\w.])([vsa])(?:(\d+)|\[(\d+):(\d+)\])')
TRANS = ("v_exp_f32", "v_log_f32", "v_rcp_f32", "v_rsq_f32", "v_sqrt_f32", "v_sin_f32", "v_cos_f32")
def regs(tok):
    out = set()
    for m in REG.finditer(tok):
        k = m.group(1)
        lo, hi = (int(m.group(2)),)*2 if m.group(2) else (int(m.group(3)), int(m.group(4)))
        out |= {(k, i) for i in range(lo, hi+1)}
    if re.search(r'\bvcc\b', tok): out |= {("s", "vcc")}
    if re.search(r'\bexec\b', tok): out |= {("s", "exec")}
    if re.search(r'\bm0\b', tok): out |= {("s", "m0")}
    return out

class I:
    def __init__(s, line):
        s.line = line
        t = line.strip()
        s.op = t.split()[0]
        rest = t[len(s.op):].strip()
        s.ops = [o.strip() for o in rest.split(",")] if rest else []
        op = s.op
        s.valu = op.startswith("v_") and not op.startswith("v_mfma")
        s.mfma = op.startswith("v_mfma")
        s.vmem = op.startswith(("buffer_", "global_"))
        s.ds = op.startswith("ds_")
        s.salu = op.startswith("s_")
        s.trans = op.replace("_e32", "").replace("_e64", "") in TRANS
        s.dpp = "quad_perm" in t or "row_" in t or "_dpp" in op
        s.perm = op.startswith("v_permlane")
        s.rdlane = op.startswith(("v_readfirstlane", "v_readlane"))
        s.ldsdma = s.vmem and (" lds" in t or "load_lds" in op)
        s.w, s.r = set(), set()
        if s.valu or s.mfma:
            nd = 1
            if op.startswith(("v_add_co", "v_addc_co", "v_sub_co", "v_subb_co", "v_mad_u64")): nd = 2
            for o in s.ops[:nd]: s.w |= regs(o)
            for o in s.ops[nd:]: s.r |= regs(o)
            if s.perm: s.w |= regs(s.ops[1]); s.r |= regs(s.ops[0])
            if op.startswith(("v_fmac", "v_dot2c", "v_pk_fmac")) or s.dpp: s.r |= regs(s.ops[0])
            if op.startswith("v_cmpx"): s.w.add(("s", "exec"))
            if s.mfma:
                s.ab = regs(s.ops[1]) | regs(s.ops[2]); s.c = regs(s.ops[3])
                s.passes = 8 if "32x32" in op else 4
        elif s.vmem:
            allr = set()
            for o in s.ops: allr |= regs(o)
            if "load" in op and not s.ldsdma:
                s.w = regs(s.ops[0])
                for o in s.ops[1:]: s.r |= regs(o)
            else:
                s.r = allr
                if "atomic" in op and " sc0" in t: s.w = regs(s.ops[0])
            s.wide = ("store" in op and ("x3" in op or "x4" in op))
            if s.wide: s.data = regs(s.ops[0]) if op.startswith("buffer") else regs(s.ops[1])
        elif s.ds:
            if "read" in op or "permute" in op or "swizzle" in op:
                s.w = regs(s.ops[0])
                for o in s.ops[1:]: s.r |= regs(o)
            else:
                for o in s.ops: s.r |= regs(o)
        elif s.salu:
            if s.ops and not op.startswith(("s_cmp", "s_waitcnt", "s_nop", "s_cbranch", "s_branch", "s_sleep", "s_setprio", "s_barrier", "s_bitcmp")):
                s.w = regs(s.ops[0])
                for o in s.ops[1:]: s.r |= regs(o)
            else:
                for o in s.ops: s.r |= regs(o)
    def states(s):
        if s.op == "s_nop": return int(s.ops[0]) + 1
        return 1

def need(p, c):
    n = 0
    vw = {x for x in p.w if x[0] in "va"}
    sw = {x for x in p.w if x[0] == "s"}
    if p.valu:
        if c.mfma and vw & c.r: n = max(n, 2)
        if c.valu and (c.dpp or c.perm) and vw & c.r: n = max(n, 2)
        if c.rdlane and vw & c.r: n = max(n, 1)
        if p.trans and c.valu and not c.trans and vw & c.r: n = max(n, 1)
        if p.trans and (c.vmem or c.ds) and vw & c.r: n = max(n, 1)
        if sw & c.r:
            if c.valu: n = max(n, 4 if c.rdlane or c.op.startswith("v_writelane") else 2)
            if c.vmem: n = max(n, 5)
            if c.salu: n = max(n, 1)
        if ("s", "exec") in sw:
            if c.mfma or c.perm or c.rdlane: n = max(n, 4)
            if c.dpp: n = max(n, 5)
        if ("op_sel" in p.line and not p.op.startswith("v_pk") or "sdwa" in p.op) and c.valu and vw & (c.r | c.w): n = max(n, 1)
        if p.op.startswith("v_dot") and c.valu and vw & (c.r | c.w) and not (c.op == p.op and not (vw & (regs(c.ops[1]) | regs(c.ops[2])))): n = max(n, 3)
        if p.op.startswith("v_dot") and (c.vmem or c.ds or c.mfma) and vw & c.r: n = max(n, 3)
    if p.mfma:
        big = {4: 8, 8: 12}[p.passes]
        if c.mfma:
            if vw & c.ab: n = max(n, big)
            if vw & c.c and not (vw == c.c and p.passes == c.passes): n = max(n, big - 2)
            if vw & c.w and not (vw & c.c): n = max(n, big - 2)
        elif (c.valu or c.vmem or c.ds) and vw & (c.r | c.w): n = max(n, big)
        if c.valu and p.c & c.w: n = max(n, p.passes - 1)
    if p.vmem and getattr(p, "wide", False) and (c.valu or c.mfma) and p.data & c.w: n = max(n, 2)
    if p.salu and ("s", "m0") in p.w and c.ldsdma: n = max(n, 1)
    return n

def is_instr(l):
    t = l.strip()
    return t and not t.endswith(":") and not t.startswith((".", ";"))

def fix_hazards(lines, report=None):
    out = []; hist = []
    for l in lines:
        if not is_instr(l):
            out.append(l); continue
        c = I(l)
        dist = 0; add = 0
        for p in reversed(hist):
            n = need(p, c)
            if n > dist: add = max(add, n - dist)
            dist += p.states()
            if dist >= 12: break
        if add:
            nl = f"    s_nop {add-1}"
            out.append(nl); hist.append(I(nl))
            if report is not None: report.append((add, l.strip()))
        out.append(l); hist.append(c)
        if c.op in ("s_branch", "s_endpgm", "s_setpc_b64"): hist = []
        hist = hist[-14:]
    return out

_size_cache = {}
def sizes(lines):
    todo = sorted({l.strip() for l in lines if is_instr(l)} - set(_size_cache))
    q = []
    for t in todo:
        if t.split()[0].startswith(("s_cbranch", "s_branch")): _size_cache[t] = 4
        elif re.search(r'[A-Za-z_]\w*-[A-Za-z_]\w*|@', t.split(None, 1)[1] if " " in t else ""): _size_cache[t] = 8
        else: q.append(t)
    if q:
        r = subprocess.run(["llvm-mc", "-triple=amdgcn-amd-amdhsa", "-mcpu=gfx950", "-show-encoding"], input="\n".join(q) + "\n", capture_output=True, text=True)
        assert r.returncode == 0, r.stderr[:3000]
        enc = re.findall(r'encoding: \[([^\]]*)\]', r.stdout)
        assert len(enc) == len(q), (len(enc), len(q))
        for t, e in zip(q, enc): _size_cache[t] = len(e.split(","))
    return _size_cache

NO_E64 = ("v_readfirstlane", "v_permlane", "v_nop", "v_accvgpr", "v_dot2c", "v_fmamk", "v_fmaak", "v_madak", "v_madmk", "v_swap")
def fix_align(lines):
    sz = sizes(lines)
    out = []; off = 0; last4 = None
    i = 0
    for l in lines:
        t = l.strip()
        if not is_instr(l):
            m = re.match(r'\.p2align\s+(\d+)', t)
            if m and int(m.group(1)) >= 3: off = 0; last4 = None
            out.append(l); continue
        n = sz[t]
        if n % 8 == 0 and off % 8 == 4:
            p = out[last4].strip(); op = p.split()[0]
            if op.startswith("v_") and not op.startswith(NO_E64) and "dpp" not in op and "sdwa" not in op and "_e64" not in op:
                out[last4] = "    " + op.replace("_e32", "") + "_e64" + p[len(op):]
            else:
                out.append("    s_nop 0")
            off += 4
        if n % 8 == 4: last4 = len(out)
        out.append(l); off += n
    return out

def verify_cfg(lines):
    ins = []; lab = {}
    for l in lines:
        t = l.strip()
        if t.endswith(":") and not t.startswith(";"): lab[t[:-1]] = len(ins)
        elif is_instr(l): ins.append(I(l))
    bad = []
    isbr = lambda x: x.op.startswith(("s_cbranch", "s_branch"))
    preds = {}
    for i, x in enumerate(ins):
        if isbr(x): preds.setdefault(lab[x.ops[0]], []).append(i)
    def back(i, dist, c, used):
        while i >= 0 and dist < 12:
            p = ins[i]
            if used and need(p, c) > dist: bad.append((p.line.strip(), c.line.strip(), dist))
            dist += p.states()
            for j in preds.get(i, []): back(j, dist, c, True)
            i -= 1
            if i >= 0 and ins[i].op in ("s_branch", "s_endpgm"): return
    for k, c in enumerate(ins):
        for j in preds.get(k, []): back(j, 0, c, True)
        if k and ins[k-1].op not in ("s_branch", "s_endpgm"): back(k - 1, 0, c, False)
    return sorted(set(bad))
```

```python
import sys, struct, math, os
from asmlib import *
import fixup

NAME = "interleave_layers__linear_attn_block__dense_activation_gelu__prompt_kernel"
MB_ = 1 << 20
ROWF = 0; RXF = 4096
STAT = 1*MB_; STAT_I = 256*1024
CSP = 2*MB_; CSP_I = 256*1024
KVP = 3*MB_; KVP_L = 1*MB_
ZP = 5*MB_; ZP_L = 64*1024
XA = 8*MB_
XB = 16*MB_
SKIP = int(os.environ.get('SKIP', 1))
LT = 15 if SKIP else 14; TL = 1 << LT; LK = 14 if SKIP else 10; KS = 1 << LK
HB = 32*MB_; H_RB = 56*TL
TS = 128*MB_
WSZ = 256*MB_
RES = 135168
L_RSTD = RES + 16384; L_NMR = L_RSTD + 512
L_CSQ = L_NMR + 512; L_CS1 = L_CSQ + 1024; L_B1 = L_CS1 + 1024
L_B2 = L_B1 + 1024
L_MODE = L_B2 + 256
L_KVF = L_MODE + 64; L_ZF = L_KVF + 4096
LDS_BYTES = L_ZF + 2048
L_XCH = 16384
assert LDS_BYTES <= 163840
XSZ = 16384
def f2u(x): return struct.unpack("<I", struct.pack("<f", x))[0]
LOG2E = 1.4426950408889634
EPS = 1e-6
GC1 = -2.0*math.sqrt(2.0/math.pi)*LOG2E
GC2 = GC1*0.044715
SPIN = 1 << 21
HOOKA = int(os.environ.get('HOOKA', 1))

S_RB, S_CB, S_XCD, S_W, S_L = 3, 4, 5, 6, 7
SX, SW, SWS, SM = 8, 12, 16, 20
P_X, P_WQKV, P_WO, P_W1, P_B1, P_W2, P_B2, P_OUT, P_DBG = 24, 26, 28, 32, 34, 36, 38, 40, 42
S_MODE, S_WM, S_WN, S_FB = 44, 45, 46, 47
T = 48
S_KX, S_KW, S_LX, S_LW, S_LH, S_LINE, S_CNT, S_SLOT, S_XSTR = 64, 65, 66, 67, 68, 69, 70, 71, 72
S_DLX, S_DLW = 73, 74
S_MASK = 76
S_PT = 78
S_COL = 80
S_TGT, S_SPIN, S_G4, S_BOOT = 84, 85, 86, 87
S_HOOK, S_ISS, S_TABP, S_CSL, S_MID, S_REM = 75, 98, 99, 61, 98, 99
S_TAB, S_J2, S_K24 = 100, 62, 63
S_C = 88
S_ST = 96
S_PFR, S_PFH, S_PFA, S_PFD = 88, 89, 90, 94
VST = 255

class Ph:
    def __init__(s, name, subt, NST, n, ldb, swapped):
        s.name, s.subt, s.NST, s.n, s.ldb, s.swapped = name, subt, NST, n, ldb, swapped
        s.woff = []; o = 0
        for w in subt: s.woff.append(o); o += 64*w
        if NST == 3: s.w0, s.wp, s.x0, s.xp = 0, 28672, 86016, 16384
        else: s.w0, s.wp, s.x0, s.xp = 0, 32768, 16384, 32768
        s.PW = sum(2 if w == 128 else 1 for w in subt); s.P = 4 + s.PW
        s.nblk = []
        for t, w in enumerate(subt):
            s.nblk += [(0, s.woff[t], w), (1, s.woff[t], w)] if w == 128 else [(2, s.woff[t], w)]
        s.NB = len(s.nblk)
G1 = Ph("g1", [128]*3, 3, 16, 6144, [True]*2 + [False]*4)
G3 = Ph("g3", [128]*3 + [64], 3, 16, 7168, [True]*7)
G2 = Ph("g2", [128], 4, 16, 2048, [True]*2)
NS = int(os.environ.get("NS", 4)); NA = 28 - NS
G4 = Ph("g4", [128]*2, 4, 28 + NS, 2048, [True]*4)
def nsub(p, i): return 1 if (p is G4 and i >= 24) else len(p.subt)

WPTR = {G1: P_WQKV, G2: P_WO, G3: P_W1, G4: P_W2}
PFD = {G1: 2, G2: 3, G3: 2, G4: 3}

class Gen:
    def __init__(g, stamps=False, force_slow=False, opt=None):
        g.opt = opt or {}; g.cold = []
        g.a = Asm(); g.stamps = stamps; g.force_slow = force_slow
        g.nst = {"c": 0, "l": 0}; g.stn = {"c": [], "l": []}
    def stamp(g, role, name, g24=False):
        if not g.stamps: return
        if g.opt.get("minst") and not (name in ("start", "end") or (role == "c" and (name.endswith("b0") or name.endswith("loop")))): return
        k = g.nst[role]; g.nst[role] += 2 if g24 else 1; assert g.nst[role] <= 32
        g.stn[role] += ["g2" + name, "g4" + name] if g24 else [name]
        g.a(f"""{"s_memtime" if g.opt.get("clk") and name != "end" else "s_memrealtime"} s[{S_ST}:{S_ST+1}]
        s_lshl_b32 m0, s{S_L}, 5
        s_add_u32 m0, m0, {k}
        {f"s_add_u32 m0, m0, s{S_G4}" if g24 else ""}
        s_waitcnt lgkmcnt(0)
        v_writelane_b32 v{VST}, s{S_ST}, m0""")
    def srd(g, d, ptr, size, off_s=None):
        a = g.a
        if off_s is None: a(f"s_mov_b32 s{d}, s{ptr}\ns_mov_b32 s{d+1}, s{ptr+1}")
        else: a(f"s_add_u32 s{d}, s{ptr}, s{off_s}\ns_addc_u32 s{d+1}, s{ptr+1}, 0")
        a(f"s_mov_b32 s{d+2}, {size}\ns_mov_b32 s{d+3}, 0x20000")
    def poll(g, voff, soff, vt, srd=SWS, first_done=False, andmask=None, acquire=True):
        a = g.a; L = a.uid("poll"); C = a.uid("pollc"); D = a.uid("polld")
        if first_done: a(f"s_branch {C}")
        a.label(L)
        a(f"buffer_load_dword v{vt}, v{voff}, s[{srd}:{srd+3}], {soff} offen sc1\ns_waitcnt vmcnt(0)")
        a.label(C)
        if andmask is not None:
            a(f"v_and_b32 v{vt+1}, {andmask}, v{vt}\nv_cmp_le_u32 vcc, s{S_TGT}, v{vt+1}")
        else:
            a(f"v_cmp_le_u32 vcc, s{S_TGT}, v{vt}")
        a(f"""s_andn2_b64 s[{S_PT}:{S_PT+1}], s[{S_MASK}:{S_MASK+1}], vcc
        s_cbranch_scc0 {D}
        s_sub_u32 s{S_SPIN}, s{S_SPIN}, 1
        s_cbranch_scc0 {L}
        s_mov_b32 s{S_SPIN}, 0""")
        a.label(D)
        if acquire:
            E = a.uid("polle")
            a(f"s_cmp_eq_u32 s{S_MODE}, 0\ns_cbranch_scc1 {E}\nbuffer_inv sc1\ns_waitcnt vmcnt(0)")
            a.label(E)
    def signal_row(g, code, vt, cnt=0):
        a = g.a; S = a.uid("sigs"); D = a.uid("sigd")
        a(f"""s_add_u32 s{T}, s{S_FB}, {code}
        v_mov_b32 v{vt}, s{T}
        s_cmp_eq_u32 s{S_MODE}, 0
        s_waitcnt vmcnt({cnt})
        s_cbranch_scc0 {S}
        buffer_store_dword v{vt}, v{V_FLG}, s[{SWS}:{SWS+3}], 0 offen""")
        a.label(D)
        g.cold.append(f"""{S}:
        s_waitcnt vmcnt(0)
        buffer_wbl2 sc1
        s_waitcnt vmcnt(0)
        buffer_store_dword v{vt}, v{V_FLG}, s[{SWS}:{SWS+3}], 0 offen sc1
        s_branch {D}""")
    def stores_by_mode(g, lines, sreg, val):
        a = g.a; S = a.uid("sms"); D = a.uid("smd")
        a(f"s_cmp_eq_u32 s{sreg}, {val}\ns_cbranch_scc0 {S}")
        for l in lines: a(l)
        a.label(D)
        g.cold.append(f"{S}:\n" + "\n".join(l + (" sc1" if l.startswith("buffer_store") else "") for l in lines) + f"\ns_branch {D}")
    def retry(g, L):
        a = g.a; D = a.uid("rtd")
        a(f"s_cbranch_vccz {D}\ns_sub_u32 s{S_SPIN}, s{S_SPIN}, 1\ns_cbranch_scc0 {L}\ns_mov_b32 s{S_SPIN}, 0")
        a.label(D)

    def entry(g):
        a = g.a; t0, t1, t2 = LV_T, LV_T+1, LV_T+2
        if g.stamps: a("s_memrealtime s[92:93]")
        a(f"""s_cmp_ge_u32 s2, 256
        s_cbranch_scc1 L_end
        s_load_dwordx16 s[24:39], s[0:1], 0
        s_load_dwordx4 s[40:43], s[0:1], 64
        s_load_dwordx2 s[{SWS}:{SWS+1}], s[0:1], 80
        v_lshrrev_b32 v1, 6, v0
        v_and_b32 v0, 63, v0
        v_readfirstlane_b32 s{S_W}, v1
        s_and_b32 s{S_XCD}, s2, 7
        s_lshr_b32 s{S_CB}, s2, 5
        s_and_b32 s{T}, s2, 1
        s_lshl_b32 s{T}, s{T}, 3
        s_add_u32 s{S_CB}, s{S_CB}, s{T}
        s_bfe_u32 s{S_RB}, s2, 0x20003
        s_and_b32 s{T}, s2, 6
        s_lshl_b32 s{T}, s{T}, 1
        s_add_u32 s{S_RB}, s{S_RB}, s{T}
        s_mov_b32 s{S_L}, 0
        s_mov_b32 s{S_FB}, 0
        s_mov_b32 s{S_MODE}, 1
        s_mov_b32 s{S_SPIN}, {g.opt.get("spin", SPIN)}
        s_mov_b32 s{SWS+2}, {WSZ}
        s_mov_b32 s{SWS+3}, 0x20000
        s_and_b32 s{T+8}, s{S_W}, 4
        s_and_b32 s{S_W}, s{S_W}, 3
        s_lshl_b32 s{S_LX}, s{S_W}, 12
        s_lshl_b32 s{S_LW}, s{S_W}, 11
        v_lshrrev_b32 v{t0}, 3, v0
        s_lshl_b32 s{T}, s{S_W}, 4
        v_add_u32 v{LV_KN}, s{T}, v{t0}
        v_and_b32 v{t2}, 7, v0
        v_and_b32 v{t1}, 2, v{t0}
        v_xor_b32 v{t1}, v{t1}, v{t2}
        v_lshlrev_b32 v{LV_CH}, 4, v{t1}
        v_add_u32 v{t0}, s{T}, v{LV_KN}
        v_lshlrev_b32 v{t0}, 11, v{t0}
        v_lshrrev_b32 v{t1}, 4, v0
        v_xor_b32 v{t1}, v{t1}, v{t2}
        v_lshl_add_u32 v{LV_X}, v{t1}, 4, v{t0}
        v_xor_b32 v{LV_X+1}, 64, v{LV_X}
        v_add_u32 v{LV_X+1}, {8*2048 - 1024}, v{LV_X+1}
        v_add_u32 v{LV_X+2}, {16*2048 - 2048}, v{LV_X}
        v_add_u32 v{LV_X+3}, {16*2048 - 2048}, v{LV_X+1}""")
        if g.stamps: a(f"v_mov_b32 v{VST}, 0")
        g.l_cols(G1); g.l_setup_w(G1, natural=True)
        a(f"""s_lshl_b32 s{T}, s{S_RB}, 18
        s_lshl_b32 s{S_KX}, s{S_RB}, 7
        s_mul_i32 s{S_KW}, s{S_RB}, {64*G1.ldb}
        s_add_u32 m0, s{S_LX}, {RES}
        s_waitcnt lgkmcnt(0)""")
        g.srd(SX, P_X, 128*2048, T)
        a(f"s_cmp_lg_u32 s{T+8}, 0\ns_cbranch_scc1 L_loader")
        for i in range(4): a(f"buffer_load_dwordx4 v{LV_X+i}, s[{SX}:{SX+3}], s{S_COL} offen offset:{1024*i} lds")
        a("s_branch L_compute")
        a.label("L_loader")

    def finish(g, role):
        a = g.a
        wv = 0 if role == "c" else 4
        a(f"""s_lshl_b32 s{T}, s{S_RB}, 18
        s_lshl_b32 s{T+1}, s{S_CB}, 7
        s_add_u32 s{T+1}, s{T+1}, s{T}
        s_add_u32 s{T+2}, s{S_W}, {wv}
        s_lshl_b32 s{T+3}, s{T+2}, 15
        s_add_u32 s{T+1}, s{T+1}, s{T+3}
        s_lshl_b32 s{T+2}, s{T+2}, 11
        s_add_u32 s{T+2}, s{T+2}, {RES}""")
        g.srd(SM, P_OUT, 2048*2048)
        a(f"""v_lshrrev_b32 v20, 3, v0
        v_and_b32 v21, 7, v0
        v_lshlrev_b32 v22, 11, v20
        v_lshl_add_u32 v22, v21, 4, v22
        v_lshrrev_b32 v23, 4, v0
        v_xor_b32 v21, v21, v23
        v_lshlrev_b32 v21, 4, v21
        v_lshl_add_u32 v21, v20, 7, v21
        v_add_u32 v21, s{T+2}, v21
        v_xor_b32 v20, 64, v21
        v_add_u32 v23, 16384, v22
        s_waitcnt lgkmcnt(0)
        s_barrier
        ds_read_b128 v[24:27], v21
        ds_read_b128 v[28:31], v20 offset:1024
        s_waitcnt lgkmcnt(1)
        buffer_store_dwordx4 v[24:27], v22, s[{SM}:{SM+3}], s{T+1} offen {g.opt.get("ofl", "")}
        s_waitcnt lgkmcnt(0)
        buffer_store_dwordx4 v[28:31], v23, s[{SM}:{SM+3}], s{T+1} offen {g.opt.get("ofl", "")}""")
        if g.stamps:
            a("s_waitcnt vmcnt(0)")
            g.stamp(role, "end")
            if g.opt.get("echo") and role == "c":
                (l0, n0), (l1, n1), k = g.opt["echo"]
                E = a.uid("echo")
                a(f"""v_readlane_b32 s{T+4}, v{VST}, {32*l0 + g.stn['c'].index(n0)}
                v_readlane_b32 s{T+5}, v{VST}, {32*l1 + g.stn['c'].index(n1)}
                s_nop 3
                s_sub_u32 s{T+4}, s{T+5}, s{T+4}
                s_mul_i32 s{T+4}, s{T+4}, {k}
                s_lshr_b32 s{T+4}, s{T+4}, {3 if g.opt.get("clk") else 0}
                s_min_u32 s{T+4}, s{T+4}, 20000
                s_mov_b32 s{T+5}, s{S_ST}
                {E}:
                s_memrealtime s[{S_ST}:{S_ST+1}]
                s_waitcnt lgkmcnt(0)
                s_sub_u32 s{T+6}, s{S_ST}, s{T+5}
                s_cmp_lt_u32 s{T+6}, s{T+4}
                s_cbranch_scc1 {E}""")
            a(f"""s_lshl_b32 s{T}, s2, 3
            s_add_u32 s{T}, s{T}, s{S_W}
            s_add_u32 s{T}, s{T}, {wv}
            s_lshl_b32 s{T}, s{T}, 8
            s_add_u32 s{T}, s{T}, {TS}
            v_lshlrev_b32 v20, 2, v0
            buffer_store_dword v{VST}, v20, s[{SWS}:{SWS+3}], s{T} offen""")
        a("s_endpgm")

    def l_setup_w(g, p, natural=False):
        a = g.a; t0, t1, t2 = LV_T, LV_T+1, LV_T+2
        a(f"s_mov_b32 s{T+1}, {p.ldb}")
        krow = LV_KN if natural else LV_KF
        a(f"""v_mul_lo_u32 v{t0}, v{krow}, s{T+1}
        v_add_u32 v{t0}, v{t0}, v{LV_CH}
        v_xor_b32 v{t1}, 64, v{t0}
        v_add_u32 v{t1}, {(8 if natural else 4)*p.ldb - 1024}, v{t1}""")
        r = LV_W
        for t, w in enumerate(p.subt):
            if w == 128:
                a(f"v_add_u32 v{r}, s{S_COL+t}, v{t0}\nv_add_u32 v{r+1}, s{S_COL+t}, v{t1}"); r += 2
            else:
                a(f"v_mul_lo_u32 v{t2}, v{LV_KH}, s{T+1}\nv_add3_u32 v{r}, v{t2}, v{LV_CHH}, s{S_COL+t}")
                if "f" in g.opt.get("abl", ""): a(f"v_add_u32 v{r}, s{S_COL+t}, v{t0}\nv_and_b32 v{r}, 0xffffff80, v{r}\nv_and_b32 v{t2}, 0x70, v{LV_L16}\nv_add_u32 v{r}, v{t2}, v{r}")
                r += 1
    def l_issue_x(g, p, i):
        a = g.a
        a(f"s_add_u32 m0, s{S_LX}, {p.x0 + (i % p.NST)*p.xp}")
        for k in range(4):
            a(f"buffer_load_dwordx4 v{LV_X+k}, s[{SX}:{SX+3}], s{S_KX} offen offset:{1024*k} sc1 lds")
        return 4
    def l_issue_w(g, p, i):
        a = g.a; r = LV_W
        for t, w in enumerate(p.subt[:nsub(p, i)]):
            wb = ((i % 8) >> 1)*p.wp + (i & 1)*8192 if (p is G2 and g.opt.get("w8", 1)) else p.w0 + (i % p.NST)*p.wp
            a(f"s_add_u32 m0, s{S_LW if w == 128 else S_LH}, {wb + p.woff[t]}")
            for q in range(2 if w == 128 else 1):
                a(f"buffer_load_dwordx4 v{r}, s[{SW}:{SW+3}], s{S_KW} offen offset:{1024*q} lds"); r += 1
        return r - LV_W
    def kline(g, p, d, i, pf=False):
        a = g.a
        if p is not G4: a(f"s_bfe_u32 s{d}, s{S_TABP if pf and i < 8 else S_TAB + i//8}, {(4 << 16) | (4*(i % 8)):#x}")
        elif i < 16:
            a(f"s_add_u32 s{d}, s{S_J2}, {i}\ns_and_b32 s{d}, s{d}, 7\ns_add_u32 s{d}, s{d}, s{S_K24}")
            if i & 8: a(f"s_add_u32 s{d}, s{d}, 8")
        else:
            a(f"s_add_u32 s{d}, s{S_J2}, {2*i}\ns_and_b32 s{d}, s{d}, 6")
            if 20 <= i < 24: return
            a(f"s_lshr_b32 s{d}, s{d}, 1")
            if i < 28: a(f"s_add_u32 s{d}, s{d}, s{S_K24}\ns_add_u32 s{d}, s{d}, {20 if i < 20 else 16}")
            else: a(f"s_sub_u32 s{d}, s{d}, s{S_K24}\ns_add_u32 s{d}, s{d}, 40")
    def wrow(g, p, d, i):
        a = g.a
        a(f"s_lshl_b32 s{d}, s{d}, 6")
        if p is G4 and 20 <= i < 24:
            a(f"s_and_b32 s{T+1}, s{S_CB}, 8\ns_lshl_b32 s{T+1}, s{T+1}, 2\ns_add_u32 s{d}, s{d}, s{T+1}\ns_add_u32 s{d}, s{d}, {48*64}")
    def l_line(g, p, i, x=True, w=True):
        a = g.a
        if "h" in g.opt.get("abl", "") and i > 2: i = 1 + i % 2
        g.kline(p, S_LINE, i)
        virt = p is G4 and 20 <= i < 24
        if x:
            if p is G1: a(f"s_mul_i32 s{S_KX}, s{S_LINE}, s{S_XSTR}")
            elif p is G2: a(f"s_and_b32 s{T+1}, s{S_LINE}, 8\ns_lshl_b32 s{T+1}, s{T+1}, 1\ns_add_u32 s{S_KX}, s{S_LINE}, s{T+1}\ns_lshl_b32 s{S_KX}, s{S_KX}, {LT}")
            elif virt: a(f"s_and_b32 s{T+1}, s{S_CB}, 8\ns_add_u32 s{S_KX}, s{S_LINE}, s{T+1}\ns_lshl_b32 s{S_KX}, s{S_KX}, {LT-1}\ns_add_u32 s{S_KX}, s{S_KX}, {48*TL}")
            else: a(f"s_lshl_b32 s{S_KX}, s{S_LINE}, {LT}")
        if w:
            g.wrow(p, S_LINE, i)
            if virt: a(f"s_and_b32 s{T+1}, s{S_W}, 2\ns_lshl_b32 s{T+1}, s{T+1}, 4\ns_add_u32 s{S_LINE}, s{S_LINE}, s{T+1}")
            a(f"s_mul_i32 s{S_KW}, s{S_LINE}, {p.ldb}")
    def tab_first(g):
        g.a(f"""s_mov_b32 s{T}, 0x76543210
        s_mov_b32 s{T+1}, 0xfedcba98
        s_lshl_b32 s{T+4}, s{S_J2}, 3
        s_lshr_b64 s[{S_TAB}:{S_TAB+1}], s[{T}:{T+1}], s{T+4}
        s_sub_u32 s{T+4}, 64, s{T+4}
        s_lshl_b64 s[{T}:{T+1}], s[{T}:{T+1}], s{T+4}
        s_or_b64 s[{S_TAB}:{S_TAB+1}], s[{S_TAB}:{S_TAB+1}], s[{T}:{T+1}]
        s_mov_b32 s{S_TABP}, s{S_TAB}
        s_and_b32 s{T}, s{S_RB}, 3
        s_mul_i32 s{T}, s{T}, 0x1111
        s_xor_b32 s{S_TAB}, s{S_TAB}, s{T}""")
    def tab_local(g):
        a = g.a
        a(f"""s_mov_b32 s{T}, 0x76543210
        s_mov_b32 s{T+1}, 0x76543210
        s_lshl_b32 s{T+4}, s{S_J2}, 2
        s_lshr_b64 s[{T}:{T+1}], s[{T}:{T+1}], s{T+4}
        s_cmp_ge_u32 s{S_CB}, 8
        s_cselect_b32 s{T+1}, 0x88888888, 0
        s_or_b32 s{T}, s{T}, s{T+1}
        s_xor_b32 s{S_TAB+1}, s{T}, 0x88888888
        s_and_b32 s{T+1}, s{S_CB}, 8
        s_add_u32 s{T+1}, s{T+1}, 3""")
        for d, own in ((S_TAB, S_CB), (S_TABP, T+1)):
            a(f"""s_sub_u32 s{T+4}, s{own}, s{S_J2}
            s_and_b32 s{T+4}, s{T+4}, 7
            s_lshl_b32 s{T+4}, s{T+4}, 2
            s_bfm_b32 s{T+2}, s{T+4}, 0
            s_and_b32 s{d}, s{T}, s{T+2}
            s_lshl_b32 s{d}, s{d}, 4
            s_or_b32 s{d}, s{d}, s{own}
            s_lshl_b32 s{T+2}, s{T+2}, 4
            s_or_b32 s{T+2}, s{T+2}, 15
            s_andn2_b32 s{T+2}, s{T}, s{T+2}
            s_or_b32 s{d}, s{d}, s{T+2}""")
        a(f"""s_and_b32 s{T+1}, s{S_RB}, 1
        s_add_u32 s{T+1}, s{T+1}, s{S_J2}
        s_lshl_b32 s{T+2}, s{S_RB}, 2
        s_xor_b32 s{T+2}, s{T+2}, s{S_CB}
        s_and_b32 s{T+2}, s{T+2}, 8
        s_add_u32 s{S_CSL}, s{T+1}, s{T+2}""")
    def l_cols(g, p):
        a = g.a
        if p is G1:
            a(f"s_lshl_b32 s{S_COL}, s{S_CB}, 7\ns_add_u32 s{S_COL+1}, s{S_COL}, 2048\ns_add_u32 s{S_COL+2}, s{S_COL}, 4096")
        elif p is G3:
            a(f"""s_and_b32 s{T}, s{S_CB}, 7
            s_lshl_b32 s{T}, s{T}, 7
            s_lshr_b32 s{T+1}, s{S_CB}, 3
            s_mul_i32 s{S_COL}, s{T+1}, 3072
            s_add_u32 s{S_COL}, s{S_COL}, s{T}
            s_add_u32 s{S_COL+1}, s{S_COL}, 1024
            s_add_u32 s{S_COL+2}, s{S_COL}, 2048
            s_lshl_b32 s{T+1}, s{T+1}, 6
            s_add_u32 s{S_COL+3}, s{T}, s{T+1}
            s_add_u32 s{S_COL+3}, s{S_COL+3}, 6144""")
        else:
            a(f"s_lshl_b32 s{S_COL}, s{S_CB}, 7\ns_xor_b32 s{S_COL+1}, s{S_COL}, 1024")
    def l_next_setup(g, p):
        g.srd(SW, WPTR[p], {G1: 1024*6144, G2: 1024*2048, G3: 1024*7168, G4: 3584*2048}[p])
        g.l_cols(p); g.l_setup_w(p)
    def l_xsrd(g, xbase, xrb):
        g.a(f"s_mul_i32 s{T}, s{S_RB}, {xrb}\ns_add_u32 s{T}, s{T}, {xbase}")
        g.srd(SX, SWS, xrb, T)
    def l_pf(g, p, i):
        a = g.a; wp = WPTR[p]
        g.kline(p, T, i, True); g.wrow(p, T, i)
        a(f"s_add_u32 s{T}, s{T}, s{S_PFR}")
        if p is G4 and 20 <= i < 24: a(f"s_and_b32 s{T+1}, s{S_PFR}, 32\ns_add_u32 s{T}, s{T}, s{T+1}")
        a(f"s_mul_i32 s{T}, s{T}, {p.ldb}\ns_add_u32 s{T}, s{T}, s{S_PFH}")
        if p is G3 or nsub(p, i) == 2:
            a(f"s_add_u32 s{S_PFA}, s{wp}, s{T}\ns_addc_u32 s{S_PFA+1}, s{wp+1}, 0")
            for o in ([51*128] if p is G3 else [384, 1408]): a(f"s_load_dword s{S_PFD}, s[{S_PFA}:{S_PFA+1}], {o}")
        if nsub(p, i) != 2:
            a(f"""s_and_b32 s{T+1}, s{S_CB}, 8
            s_mul_i32 s{T+1}, s{T+1}, {384 if p is G3 else 128}
            s_add_u32 s{T}, s{T}, s{T+1}
            s_add_u32 s{S_PFA+2}, s{wp}, s{T}
            s_addc_u32 s{S_PFA+3}, s{wp+1}, 0""")
            for t in range(min(3, nsub(p, i))): a(f"s_load_dword s{S_PFD}, s[{S_PFA+2}:{S_PFA+3}], {384 + t*(2048 if p is G1 else 1024)}")
    def rows_target(g, code, own=True):
        g.a(f"""s_add_u32 s{S_TGT}, s{S_FB}, {code}
        s_cmp_{'ge' if own else 'lt'}_u32 s{S_CB}, 8
        s_cselect_b32 s{S_MASK}, 0, -1
        s_cselect_b32 s{S_MASK+1}, -1, 0""")
    def l_wait_rows(g, code):
        g.rows_target(code)
        g.poll(LV_PA, "0", LV_PV)
    def flag_jobs(g, add, s_issue, s_check, code, own, name, skip_l0=False):
        a = g.a; so = "0" if own else f"s{T+4}"
        def issue(q):
            if not own: a(f"s_movk_i32 s{T+4}, {RXF}")
            a(f"buffer_load_dword v{LV_PV}, v{LV_PA}, s[{SWS}:{SWS+3}], {so} offen sc1"); q.append(s_check)
        def check(q):
            D = a.uid("fc")
            if skip_l0: a(f"s_cmp_eq_u32 s{S_L}, 0\ns_cbranch_scc1 {D}")
            g.rows_target(code, own)
            if not own: a(f"s_movk_i32 s{T+4}, {RXF}")
            g.poll(LV_PA, so, LV_PV, first_done=True, acquire=own)
            a.label(D)
            g.stamp("l", name)
        add((s_issue, "pre"), issue); add((s_check, "pre"), check)
    def l_main(g, p, code, nxt=None, cond_nxt=None):
        a = g.a; N, n = p.NST, p.n
        jobs = g.jobs(p)
        def run(key):
            for f in jobs.get(key, []): f(q)
        q = []
        w8 = p is G2 and g.opt.get("w8", 1)
        def fill(first):
            for s in range(first, N):
                lastw = s == N - 1 and not w8
                if p is G4 and s >= 1 and g.opt.get("pace") is not None: a(f"s_waitcnt vmcnt({g.opt['pace']})")
                g.l_line(p, s, w=lastw); q.extend([s]*(g.l_issue_x(p, s) + (g.l_issue_w(p, s) if lastw else 0)))
        def wait(s):
            last = max(i for i, t in enumerate(q) if t == s)
            assert len(q) - 1 - last <= 63
            a(f"s_waitcnt vmcnt({len(q) - 1 - last})")
            nc = q[last:].count(-2)
            if nc:
                S = a.uid("wc")
                a(f"s_cmp_eq_u32 s{S_L}, 0\ns_cbranch_scc1 {S}\ns_waitcnt vmcnt({len(q) - 1 - last - nc})")
                a.label(S)
        g.qwait = wait
        if N == 3: ra = {n: list(range(g.opt.get("w8a", 4))) if (nxt is G2 and g.opt.get("w8", 1)) else [1, 2, 0]}
        else:
            e = g.opt.get("early", 3)
            ra = {n - e: [0], n - e + 1: [1]} if e else {n: [0, 1]}
        def runahead(s):
            if s not in ra and s != n: return
            if cond_nxt:
                S = a.uid("ra"); a(f"s_cmp_lg_u32 s{S_L}, 0\ns_cbranch_scc1 {S}")
            if s == min(ra): g.l_next_setup(nxt)
            for t in ra.get(s, []):
                g.l_line(nxt, t, x=False)
                q.extend([-2 if cond_nxt else -1]*g.l_issue_w(nxt, t))
            if s == n:
                k0 = 8 if (nxt is G2 and g.opt.get("w8", 1)) else nxt.NST - 1
                for k in range(k0, max(k0, nxt.NST - 1 + PFD[nxt])): g.l_pf(nxt, k)
            if cond_nxt: a.label(S)
        for s in range(n):
            i = s + N - 1
            if s == 0 and p is G4:
                g.l_wait_rows(code); g.stamp("l", p.name + "flag")
                fill(0); wait(0); a("s_barrier"); run((0, "pre"))
            elif s == 0:
                a("s_barrier"); run((0, "pre"))
                w2e = g.opt.get("w2e", 1) and N == 3
                if w2e:
                    g.l_line(p, 2, x=False); nw = g.l_issue_w(p, 2)
                if p is G1:
                    S = a.uid("f0"); a(f"s_cmp_eq_u32 s{S_L}, 0\ns_cbranch_scc1 {S}")
                g.l_wait_rows(code); g.stamp("l", p.name + "flag")
                g.l_line(p, 1, w=False); q += [1]*g.l_issue_x(p, 1)
                if p is G1: a.label(S)
                if w2e:
                    if p is G1: q += [-2]*nw
                    g.l_line(p, 2, w=False); q += [2]*g.l_issue_x(p, 2)
                else: fill(2)
            else:
                if i < n: g.l_line(p, i, w=not (w8 and i < 8))
                wait(s); a("s_barrier")
                run((s, "pre"))
                if i < n: q += [i]*(g.l_issue_x(p, i) + (0 if (w8 and i < 8) else g.l_issue_w(p, i)))
            run((s, "mid"))
            k = i + PFD[p]
            if k < n:
                if not (w8 and k < 8): g.l_pf(p, k)
            elif N == 4 and k - n < 2: g.l_pf(nxt, k - n)
            run((s, "post"))
            runahead(s)
        a("s_waitcnt lgkmcnt(0)\ns_barrier")
        run((n, "pre"))
        runahead(n)
        run((n, "post"))

    def job_colsum(g, p, s, u, q, part):
        a = g.a; D = a.uid("csd"); Hf = a.uid("csh"); St = a.uid("css")
        F, A0, ONE, U = 64, 96, 112, LV_T
        base = p.w0 + (s % p.NST)*p.wp
        if u is None: a(f"s_cmp_lg_u32 s{S_L}, 0\ns_cbranch_scc1 {D}")
        else:
            g.kline(p, T, s); a(f"s_add_u32 s{T}, s{T}, s{S_FB}\ns_cmp_lg_u32 s{T}, s{S_CSL}\ns_cbranch_scc1 {D}")
        if part == 0:
            def blk(nseg, w):
                for seg in range(nseg):
                    a(f"v_xor_b32 v{U+1}, {32*seg}, v{U}")
                    for kk in range(2):
                        for h in range(2):
                            a(f"ds_read_b64_tr_b16 {vr(F+seg*8+kk*4+h*2,2)}, v{U+1} offset:{(32*kk+4*h)*w}")
            if p is G3: a(f"s_cmp_eq_u32 s{S_W}, 3\ns_cbranch_scc1 {Hf}")
            a(f"s_lshl_b32 s{T}, s{S_W}, 13\ns_add_u32 s{T}, s{T}, {base}\nv_add_u32 v{U}, s{T}, v{LV_TRF}")
            blk(4, 128)
            if p is G3:
                a(f"s_branch {D}")
                a.label(Hf)
                a(f"v_add_u32 v{U}, {base + p.woff[3]}, v{LV_TRH}")
                blk(2, 64)
                for i in range(16, 32, 2): a(f"v_mov_b64 {vr(F+i,2)}, 0")
            a.label(D)
            return
        for i in range(4): a(f"v_mov_b32 v{ONE+i}, 0x3f803f80")
        for seg in range(4):
            for kk in range(2):
                a(f"v_mfma_f32_16x16x32_bf16 {vr(A0+4*seg,4)}, {vr(ONE,4)}, {vr(F+seg*8+kk*4,4)}, {'0' if kk == 0 else vr(A0+4*seg,4)}")
        a(f"""s_lshl_b32 s{T}, s{S_CB}, 14
        s_lshl_b32 s{T+1}, s{S_RB}, 10
        s_add_u32 s{T}, s{T}, s{T+1}
        s_add_u32 s{T}, s{T}, {CSP + (CSP_I if p is G3 else 0)}
        v_cmp_gt_u32 vcc, 16, v0
        v_cndmask_b32 v{A0}, v{A0+4}, v{A0}, vcc
        v_cmp_gt_u32 vcc, 48, v0
        v_cndmask_b32 v{A0+8}, v{A0+12}, v{A0+8}, vcc
        v_cmp_gt_u32 vcc, 32, v0
        v_cndmask_b32 v{A0}, v{A0+8}, v{A0}, vcc
        buffer_store_dword v{A0}, v{LV_T4}, s[{SWS}:{SWS+3}], s{T} offen sc1""")
        a.label(D)
        if u is None: q.append(-2)
    def job_stats(g, inst, F=16):
        a = g.a; U = F + 16; SQ = F + 20
        a(f"""v_bfe_u32 v{U}, v0, 2, 2
        v_lshlrev_b32 v{U}, 4, v{U}
        v_lshl_add_u32 v{U}, v0, 6, v{U}
        s_lshl_b32 s{T}, s{S_W}, 12
        s_add_u32 s{T}, s{T}, {RES}
        v_add_u32 v{U}, s{T}, v{U}""")
        for i in range(4):
            a(f"v_xor_b32 v{U+1}, {16*i}, v{U}\nds_read_b128 {vr(F+4*i,4)}, v{U+1}")
        for i in range(4): a(f"v_mov_b32 v{SQ+i}, 0")
        a(f"""s_mov_b32 s{T+2}, 0x3f803f80
        s_lshl_b32 s{T}, {inst}, 18
        s_lshl_b32 s{T+1}, s{S_RB}, 14
        s_add_u32 s{T}, s{T}, s{T+1}
        s_lshl_b32 s{T+1}, s{S_CB}, 10
        s_add_u32 s{T}, s{T}, s{T+1}
        s_lshl_b32 s{T+1}, s{S_W}, 8
        s_add_u32 s{T}, s{T}, s{T+1}
        s_add_u32 s{T}, s{T}, {STAT}""")
        for i in range(16):
            if i % 4 == 0: a(f"s_waitcnt lgkmcnt({3 - i//4})")
            a(f"v_dot2c_f32_bf16 v{SQ + i%2}, s{T+2}, v{F+i}\nv_dot2c_f32_bf16 v{SQ + 2 + i%2}, v{F+i}, v{F+i}")
        a(f"""v_and_b32 v{U}, 1, v0
        v_cmp_eq_u32 vcc, 0, v{U}
        v_add_f32 v{SQ}, v{SQ}, v{SQ+1}
        v_add_f32 v{SQ+2}, v{SQ+2}, v{SQ+3}
        v_add_f32_dpp v{SQ+1}, v{SQ}, v{SQ} quad_perm:[1,0,3,2] row_mask:0xf bank_mask:0xf
        v_add_f32_dpp v{SQ+3}, v{SQ+2}, v{SQ+2} quad_perm:[1,0,3,2] row_mask:0xf bank_mask:0xf
        v_cndmask_b32 v{V_SS}, v{SQ+3}, v{SQ+1}, vcc""")
        a(f"s_mov_b32 s{T+13}, s{T}")
    def job_boot_issue(g, q):
        a = g.a; D = a.uid("jpd")
        a(f"s_cmp_lg_u32 s{S_L}, 0\ns_cbranch_scc1 {D}")
        g.srd(SM, P_DBG, 256)
        a(f"buffer_load_dword v{LV_PV}, v{LV_L4}, s[{SM}:{SM+3}], 0 offen sc1")
        a.label(D); q.append(-2)
    def gather_loads(g, p, cs):
        a = g.a
        if cs: a(f"s_lshl_b32 s{T}, s{S_CB}, 14\ns_add_u32 s{T}, s{T}, {CSP + (CSP_I if p is G3 else 0)}")
        else: a(f"""s_lshl_b32 s{T}, s{S_L}, 19
            s_lshl_b32 s{T+1}, s{S_RB}, 14
            s_add_u32 s{T}, s{T}, s{T+1}
            s_add_u32 s{T}, s{T}, {STAT + (STAT_I if p is G3 else 0)}""")
        for i in range(4):
            a(f"buffer_load_dwordx4 {vr((80 if cs else 64)+4*i,4)}, v{LV_GA}, s[{SWS}:{SWS+3}], s{T} offen offset:{1024*i} sc1")
    def job_gather(g, p, q):
        a = g.a; D = a.uid("jgd")
        a(f"s_cmp_lg_u32 s{S_L}, 0\ns_cbranch_scc1 {D}")
        if p is G1:
            g.srd(SM, P_DBG, 256)
            a(f"s_mov_b32 s{S_TGT}, 32\ns_mov_b32 s{S_MASK}, 0x01010101\ns_mov_b32 s{S_MASK+1}, 0x01010101")
            g.poll(LV_L4, "0", LV_PV, srd=SM, first_done=True, andmask=63, acquire=False)
            a(f"""s_lshl_b32 s{T}, s{S_XCD}, 3
            s_lshl_b32 s{T+1}, s{S_BOOT}, 5
            v_readlane_b32 s{T+2}, v{LV_PV}, s{T}
            s_cmp_lg_u32 s{T+2}, s{T+1}
            s_cselect_b32 s{S_MODE}, 1, {1 if g.force_slow else 0}
            v_mov_b32 v{LV_T}, {L_MODE}
            v_mov_b32 v{LV_T+1}, s{S_MODE}
            ds_write_b32 v{LV_T}, v{LV_T+1}""")
        else:
            g.srd(SM, P_B1, 3584*2)
            a(f"""s_cmp_eq_u32 s{S_W}, 1
            s_cselect_b32 s{T}, s{S_COL+1}, s{S_COL}
            s_cmp_eq_u32 s{S_W}, 2
            s_cselect_b32 s{T}, s{S_COL+2}, s{T}
            s_cmp_eq_u32 s{S_W}, 3
            s_cselect_b32 s{T}, s{S_COL+3}, s{T}
            v_lshlrev_b32 v{LV_T}, 1, v0
            buffer_load_ushort v116, v{LV_T}, s[{SM}:{SM+3}], s{T} offen""")
            g.srd(SM, P_B2, 2048)
            a(f"s_lshl_b32 s{T}, s{S_CB}, 7\nbuffer_load_ushort v117, v{LV_T}, s[{SM}:{SM+3}], s{T} offen")
            q += [-2]*2
        a.label(D)
        g.gather_loads(p, False)
        q += [-1]*4
        g.gpos = len(q)
    def job_gather_cs(g, p, q):
        a = g.a; D = a.uid("jgc")
        a(f"s_cmp_lg_u32 s{S_L}, 0\ns_cbranch_scc1 {D}")
        g.gather_loads(p, True)
        a.label(D); q += [-2]*4
        g.cpos = len(q)
    def tree(g, p, q, cs):
        a = g.a; R = a.uid("jrr"); C = a.uid("jrc"); b = 80 if cs else 64
        young = q[(g.cpos if cs else g.gpos):]
        a(f"s_waitcnt vmcnt({len(young)})")
        if young.count(-2) and not cs: a(f"s_cmp_eq_u32 s{S_L}, 0\ns_cbranch_scc1 {C}\ns_waitcnt vmcnt({len(young) - young.count(-2)})")
        a.label(C)
        for st in (8, 4):
            for i in range(0, st, 2): a(f"v_pk_add_f32 {vr(b+i,2)}, {vr(b+i,2)}, {vr(b+st+i,2)}")
        for sw in ("16", "32"):
            a(f"v_mov_b64 {vr(b+4,2)}, {vr(b,2)}\nv_mov_b64 {vr(b+6,2)}, {vr(b+2,2)}")
            for i in range(4): a(f"v_permlane{sw}_swap_b32 v{b+i}, v{b+4+i}")
            for i in (0, 2): a(f"v_pk_add_f32 {vr(b+i,2)}, {vr(b+i,2)}, {vr(b+4+i,2)}")
        if cs and p is G1: return
        keep, g.a = g.a, Asm()
        g.a.label(R); g.gather_loads(p, cs); g.a(f"s_waitcnt vmcnt(0)\ns_branch {C}")
        g.cold.append(g.a.text()); g.a = keep
        a(f"v_pk_add_f32 v[98:99], {vr(b,2)}, {vr(b+2,2)}\nv_cmp_u_f32 vcc, v98, v99")
        g.retry(R)
    def job_rstd(g):
        g.a(f"""s_mov_b32 s{T+2}, {f2u(1/1024):#x}
        v_pk_mul_f32 v[64:65], v[64:65], s[{T+2}:{T+3}] op_sel_hi:[1,0]
        v_pk_mul_f32 v[66:67], v[66:67], s[{T+2}:{T+3}] op_sel_hi:[1,0]
        v_fma_f32 v68, -v64, v64, v65
        v_fma_f32 v69, -v66, v66, v67
        v_max_f32 v68, 0, v68
        v_max_f32 v69, 0, v69
        v_add_f32 v68, {f2u(1e-5):#x}, v68
        v_add_f32 v69, {f2u(1e-5):#x}, v69
        v_rsq_f32 v68, v68
        v_rsq_f32 v69, v69
        v_and_b32 v72, 15, v0
        s_lshl_b32 s{T}, s{S_W}, 7
        s_add_u32 s{T}, s{T}, {L_RSTD}
        v_lshl_add_u32 v73, v72, 3, s{T}
        v_mul_f32 v70, -v64, v68
        v_mul_f32 v71, -v66, v69
        ds_write_b64 v73, v[68:69]
        ds_write_b64 v73, v[70:71] offset:512""")
    def job_cs(g, p, q):
        a = g.a; E = a.uid("jre")
        a(f"s_cmp_lg_u32 s{S_L}, 0\ns_cbranch_scc1 {E}")
        g.tree(p, q, True)
        a(f"""v_and_b32 v72, 15, v0
        s_lshl_b32 s{T}, s{S_W}, 8
        s_add_u32 s{T}, s{T}, {L_CSQ if p is G1 else L_CS1}
        v_lshl_add_u32 v73, v72, 4, s{T}
        ds_write_b128 v73, v[80:83]""")
        if p is G3:
            a(f"""v_add_u32 v71, {L_B1}, v{LV_T4}
            v_lshlrev_b32 v116, 16, v116
            ds_write_b32 v71, v116
            v_lshlrev_b32 v117, 16, v117
            v_add_u32 v71, {L_B2}, v{LV_L4}
            ds_write_b32 v71, v117""")
        a.label(E)
    def job_clears(g, q):
        a = g.a; D = a.uid("jc")
        g.clear_xb(LV_T); q += [-1]*4
        a(f"s_cmp_lg_u32 s{S_L}, 0\ns_cbranch_scc1 {D}")
        g.clear_kv(1, LV_T)
        a(f"s_lshl_b32 s{T}, s{S_RB}, 14\ns_lshl_b32 s{T+1}, s{S_CB}, 10\ns_add_u32 s{T}, s{T}, s{T+1}\ns_add_u32 s{T}, s{T}, {STAT}")
        for i in range(1, 4):
            a(f"s_add_u32 s{T}, s{T}, {STAT_I}\nbuffer_store_dword v{V_SEN}, v{LV_T4}, s[{SWS}:{SWS+3}], s{T} offen sc1")
        a.label(D); q += [-2]*5
    def job_trickle(g, items, S_PFA=S_PFA, S_PFD=S_PFD):
        a = g.a; D = a.uid("jt")
        a(f"s_cmp_lg_u32 s{S_L}, 0\ns_cbranch_scc1 {D}\ns_lshl_b32 s{T}, s2, 2\ns_add_u32 s{T}, s{T}, s{S_W}")
        cur = None
        for ptr, sec in items:
            if ptr != cur:
                cur = ptr
                a(f"""s_mul_i32 s{T+1}, s{T}, {2048 if ptr == P_WO else 7168}
                s_add_u32 s{S_PFA}, s{ptr}, s{T+1}
                s_addc_u32 s{S_PFA+1}, s{ptr+1}, 0""")
            a(f"s_load_dword s{S_PFD}, s[{S_PFA}:{S_PFA+1}], {64*sec}")
        a.label(D)
    def job_wtouch(g, ptr, first, q):
        a = g.a; D = a.uid("jw")
        per = 2048 if ptr == P_WO else 7168
        a(f"s_cmp_lg_u32 s{S_L}, 0\ns_cbranch_scc1 {D}")
        g.srd(SM, ptr, 1024*per)
        a(f"""s_lshl_b32 s{T}, s2, 2
        s_add_u32 s{T}, s{T}, s{S_W}
        s_mul_i32 s{T}, s{T}, {per}
        s_add_u32 s{T}, s{T}, {128*first}
        v_min_u32 v{LV_T}, {per//128 - 1 - first}, v0
        v_lshlrev_b32 v{LV_T}, 7, v{LV_T}
        buffer_load_dword v{LV_DUM}, v{LV_T}, s[{SM}:{SM+3}], s{T} offen""")
        a.label(D); q.append(-2)
    def jobs(g, p):
        a = g.a; J = {}
        def add(key, fn): J.setdefault(key, []).append(fn)
        if p is G2:
            g.flag_jobs(add, g.opt.get("g2p", 4), 5, 1, False, "orem")
            return J
        if p is G4:
            g.flag_jobs(add, 4, 5, 7, True, "hall")
            g.flag_jobs(add, 19, 21, 7, False, "hrem")
            return J
        gs = g.opt.get("gs", 12); jp = g.opt.get("jprio", 0)
        add((gs, "pre"), lambda q: g.job_gather(p, q))
        add((14, "pre"), lambda q: g.job_gather_cs(p, q))
        g.flag_jobs(add, 5, 6, 3 if p is G3 else -7, False, p.name + "rem", skip_l0=p is G1)
        def colsum(st, u):
            if g.opt.get("csplit", 1):
                add((st, "pre"), lambda q: g.job_colsum(p, st, u, q, 0)); add((st, "mid"), lambda q: a("s_waitcnt lgkmcnt(0)"))
                add((st + 1, "post"), lambda q: g.job_colsum(p, st, u, q, 1))
            else: add((st, "post"), lambda q: (g.job_colsum(p, st, u, q, 0), a("s_waitcnt lgkmcnt(0)"), g.job_colsum(p, st, u, q, 1)))
        if p is G1:
            colsum(0, None)
            add((gs - 2, "pre"), g.job_boot_issue)
            add((14, "post"), lambda q: g.tab_local())
        else:
            for st in (0, 1, 2, 8, 9): colsum(st, 1)
        ntr = g.opt.get("tr1" if p is G1 else "tr3", 4); t0 = g.opt.get("tr0", 2) if p is G1 else 0
        secs = ([(P_WO, k) for k in range(32)] if p is G1 else []) + [(P_W1 if p is G1 else P_W2, k) for k in range(112)]
        for st in range(t0, 14):
            it, secs = secs[:ntr], secs[ntr:]
            if it: add((st, "post"), lambda q, it=it: g.job_trickle(it))
        if p is G1:
            it, secs = secs[:g.opt.get("trl", 0)], secs[g.opt.get("trl", 0):]
            if it: add((16, "post"), lambda q, it=it: g.job_trickle(it))
            g.ctrickle, secs = secs[:g.opt.get("trc", 0)], secs[g.opt.get("trc", 0):]
        rest = {}
        for ptr, k in secs: rest.setdefault(ptr, k // 2)
        if not g.opt.get("wt", 1): rest = {}
        for ptr, first in rest.items(): add((14, "post"), lambda q, ptr=ptr, first=first: g.job_wtouch(ptr, first, q))
        if jp: add((14, "post"), lambda q: a(f"s_setprio {jp}"))
        add((g.opt.get("ts", gs + 1), "post"), lambda q: g.tree(p, q, False))
        add((g.opt.get("rs", 14), "post"), lambda q: g.job_rstd())
        add((15, "post"), lambda q: g.job_cs(p, q))
        if jp: add((15, "post"), lambda q: a("s_setprio 0"))
        if p is G1: add(g.opt.get("clr", (16, "post")), g.job_clears)
        return J

    def l_kv_gather(g):
        a = g.a; F = 64; Z = 128; U = 132; S = 144
        P = a.uid("kvp"); D = a.uid("kvd"); P1 = a.uid("kv1"); PZ = a.uid("kvz")
        a(f"""s_lshl_b32 s{T}, s{S_L}, 20
        s_lshl_b32 s{T+1}, s{S_CB}, 16
        s_add_u32 s{T}, s{T}, s{T+1}
        s_lshl_b32 s{T+1}, s{S_W}, 14
        s_add_u32 s{T}, s{T}, s{T+1}
        s_lshr_b32 s{T+4}, s{T}, 4
        s_add_u32 s{T}, s{T}, {KVP}
        s_mov_b32 s{T+5}, s{T}
        s_add_u32 s{T+4}, s{T+4}, {ZP}""")
        for k in range(4):
            a(f"s_add_u32 s{T+k}, s{S_J2}, {2*k + 2}\ns_and_b32 s{T+k}, s{T+k}, 6\ns_lshl_b32 s{T+k}, s{T+k}, 11\ns_add_u32 s{T+k}, s{T+k}, s{T+5}")
        a(f"""v_and_b32 v{U}, 15, v0
        v_lshlrev_b32 v{U}, 6, v{U}
        v_and_b32 v{U+1}, 48, v0
        v_add_u32 v{U}, v{U}, v{U+1}
        s_lshr_b32 s{T+5}, s{S_W}, 1
        s_lshl_b32 s{T+5}, s{T+5}, 10
        s_and_b32 s{T+6}, s{S_W}, 1
        s_lshl_b32 s{T+6}, s{T+6}, 3
        s_add_u32 s{T+5}, s{T+5}, s{T+6}
        s_add_u32 s{T+5}, s{T+5}, {L_ZF}
        v_add_u32 v{U+2}, s{T+5}, v{LV_L16}
        s_add_u32 s{T+5}, s{S_LH}, {L_KVF}
        v_add_u32 v{U+3}, s{T+5}, v{LV_L16}
        s_mov_b32 s{T+8}, 0x3f80
        s_mov_b32 s{T+9}, 0x3f800000
        s_mov_b32 s{S_ISS}, 15
        s_barrier""")
        kf = g.opt.get("kvf", "sc1"); sl = g.opt.get("kvsl", 0)
        if g.opt.get("w8", 1) and g.opt.get("w8a", 4) < 8:
            a("s_barrier" if g.opt.get("bk1b", 1) else f"s_sleep {g.opt.get('jsl', 6)}")
            for t in range(g.opt.get("w8a", 4), 8):
                g.l_line(G2, t, x=False); g.l_issue_w(G2, t)
        if g.opt.get("junk", 0):
            J = a.uid("jk"); J2 = a.uid("jk")
            a(f"""s_cmp_lg_u32 s{S_L}, 0
            s_cbranch_scc1 {J}
            s_mul_i32 s{T+5}, s{S_RB}, {H_RB}
            s_and_b32 s{T+6}, s{S_CB}, 7
            s_add_u32 s{T+6}, s{T+6}, s{S_K24}
            s_lshl_b32 s{T+6}, s{T+6}, {LT}
            s_add_u32 s{T+6}, s{T+6}, s{T+5}
            s_add_u32 s{T+6}, s{T+6}, {HB + 8*TL}
            s_lshr_b32 s{T+7}, s{S_CB}, 1
            s_lshl_b32 s{T+7}, s{T+7}, {LT}
            s_add_u32 s{T+5}, s{T+5}, s{T+7}
            s_and_b32 s{T+7}, s{S_CB}, 1
            s_lshl_b32 s{T+7}, s{T+7}, {LK}
            s_add_u32 s{T+5}, s{T+5}, s{T+7}
            s_add_u32 s{T+5}, s{T+5}, {HB + 48*TL}
""")
            st = lambda sr, k: a(f"buffer_store_dwordx4 v[{LV_W}:{LV_W+3}], v{LV_X+k}, s[{SWS}:{SWS+3}], s{sr} offen offset:{1024*k}")
            for i in range(4): st(T+6, i)
            for i in range(2): st(T+5, 2*i)
            a(f"s_add_u32 s{T+6}, s{T+6}, {8*TL}\ns_bitcmp1_b32 s{S_CB}, 2\ns_cbranch_scc0 {J2}")
            for i in range(4): st(T+6, i)
            a.label(J2)
            if g.opt.get("jsl2", 0): a(f"s_sleep {g.opt.get('jsl2', 0)}")
            a(f"s_branch {P1}")
            a.label(J)
        if sl: a(f"s_sleep {sl}")
        zl = f"buffer_load_dwordx4 {vr(Z,4)}, v{U}, s[{SWS}:{SWS+3}], s{T+4} offen {kf}"
        def loads(k):
            for i in range(4): g.a(f"buffer_load_dwordx4 {vr(F+16*k+4*i,4)}, v{LV_L16}, s[{SWS}:{SWS+3}], s{T+k} offen offset:{1024*i} {kf}")
        def accum(k, K, cnt=None):
            sk = S + 8*k; a = g.a
            for i in range(4):
                if cnt is not None: a(f"s_waitcnt vmcnt({cnt - i})")
                for d in range(4):
                    x = F + 16*k + 4*i + d
                    if i == 0: a(f"v_lshlrev_b32 v{sk+2*d}, 16, v{x}\nv_and_b32 v{sk+2*d+1}, 0xffff0000, v{x}")
                    else: a(f"v_dot2c_f32_bf16 v{sk+2*d}, s{T+8}, v{x}\nv_dot2c_f32_bf16 v{sk+2*d+1}, s{T+9}, v{x}")
            a(f"""v_add_f32 v{U+4}, v{sk}, v{sk+2}
            v_add_f32 v{U+5}, v{sk+4}, v{sk+6}
            v_cmp_u_f32 vcc, v{U+4}, v{U+5}
            s_cbranch_vccnz {K}
            s_bitset0_b32 s{S_ISS}, {k}""")
            a.label(K)
        keep, g.a = g.a, Asm(); g.a._uid = keep._uid + 2000
        g.a.label(P); g.a(zl)
        for k in range(4):
            K = g.a.uid("kvl")
            g.a(f"s_bitcmp1_b32 s{S_ISS}, {k}\ns_cbranch_scc0 {K}"); loads(k); g.a.label(K)
        g.a("s_waitcnt vmcnt(0)")
        for k in range(4):
            K = g.a.uid("kva")
            g.a(f"s_bitcmp1_b32 s{S_ISS}, {k}\ns_cbranch_scc0 {K}"); accum(k, K)
        g.a(f"s_branch {PZ}")
        g.cold.append(g.a.text()); g.a = keep
        a.label(P1)
        for k in range(4): loads(k)
        a(zl)
        for k in range(4): accum(k, a.uid("kva"), 16 - 4*k)
        a("s_waitcnt vmcnt(0)")
        a.label(PZ)
        a(f"""v_max3_u32 v{U+1}, v{Z}, v{Z+1}, v{Z+2}
        v_max_u32 v{U+1}, v{U+1}, v{Z+3}
        v_cmp_eq_u32 vcc, -1, v{U+1}
        s_nop 0
        s_or_b32 s{T+5}, vcc_lo, vcc_hi
        s_or_b32 s{T+5}, s{T+5}, s{S_ISS}
        s_cbranch_scc0 {D}
        s_sub_u32 s{S_SPIN}, s{S_SPIN}, 1
        s_cbranch_scc0 {P}
        s_mov_b32 s{S_SPIN}, 0""")
        a.label(D)
        g.stamp("l", "kvflag")
        zs = [f"v_add_f32_dpp v{Z+i}, v{Z+i}, v{Z+i} row_ror:{st} row_mask:0xf bank_mask:0xf" for st in (8, 4, 2, 1) for i in range(4)]
        ks = [f"v_pk_add_f32 {vr(S+x+d,2)}, {vr(S+x+d,2)}, {vr(S+y+d,2)}" for x, y in ((0, 8), (16, 24), (0, 16)) for d in range(0, 8, 2)]
        ks += [f"v_cvt_pk_bf16_f32 v{U+4+d}, v{S+2*d}, v{S+2*d+1}" for d in range(4)]
        for l in ks: a(l)
        a(f"ds_write_b128 v{U+3}, {vr(U+4,4)}")
        for l in zs: a(l)
        a(f"""v_cvt_pk_bf16_f32 v{Z}, v{Z}, v{Z+1}
        v_cvt_pk_bf16_f32 v{Z+1}, v{Z+2}, v{Z+3}
        ds_write_b64 v{U+2}, {vr(Z,2)}
        s_waitcnt lgkmcnt(0)
        s_barrier""")

    def boot_val(g):
        g.a(f"""s_getreg_b32 s{T}, hwreg(HW_REG_XCC_ID, 0, 4)
        s_and_b32 s{T}, s{T}, 7
        s_mul_i32 s{T+1}, s{T}, s{T}
        s_lshl_b32 s{T}, s{T}, 6
        s_lshl_b32 s{T+1}, s{T+1}, 14
        s_add_u32 s{S_BOOT}, s{T}, s{T+1}
        s_add_u32 s{S_BOOT}, s{S_BOOT}, 1""")
    def loader(g):
        a = g.a; t0, t1, t2 = LV_T, LV_T+1, LV_T+2
        g.srd(SW, P_WQKV, 1024*6144)
        g.l_issue_w(G1, 0); g.l_issue_x(G1, 0)
        g.stamp("l", "start")
        a(f"""s_lshl_b32 s{S_LH}, s{S_W}, 10
        s_mov_b32 s{S_XSTR}, 128
        s_and_b32 s{S_K24}, s2, 1
        s_mul_i32 s{S_K24}, s{S_K24}, 24
        s_and_b32 s{S_J2}, s2, 6""")
        g.tab_first()
        g.l_line(G1, 1); g.l_issue_w(G1, 1); g.l_issue_x(G1, 1)
        a(f"""s_lshr_b32 s{T}, s{S_W}, 1
        s_lshl_b32 s{T}, s{T}, 5
        s_and_b32 s{T+1}, s{S_W}, 1
        s_lshl_b32 s{T+1}, s{T+1}, 3
        s_add_u32 s{T}, s{T}, s{T+1}
        v_bfe_u32 v{t0}, v0, 3, 2
        v_lshrrev_b32 v{t1}, 5, v0
        v_lshl_add_u32 v{t0}, v{t1}, 4, v{t0}
        v_add_u32 v{LV_KF}, s{T}, v{t0}
        v_bfe_u32 v{t0}, v0, 2, 2
        v_lshl_add_u32 v{t0}, v{t1}, 2, v{t0}
        v_and_b32 v{t2}, 16, v0
        v_add3_u32 v{LV_KH}, v{t0}, v{t2}, s{T}
        v_lshlrev_b32 v{t1}, 1, v{t1}
        v_and_b32 v{t2}, 3, v0
        v_xor_b32 v{t1}, v{t1}, v{t2}
        v_lshlrev_b32 v{LV_CHH}, 4, v{t1}
        v_lshlrev_b32 v{LV_L4}, 2, v0
        v_lshlrev_b32 v{LV_L16}, 4, v0
        s_lshl_b32 s{T}, s{S_W}, 8
        v_add_u32 v{LV_T4}, s{T}, v{LV_L4}
        s_lshl_b32 s{T}, s{S_RB}, 8
        v_add_u32 v{LV_PA}, s{T}, v{LV_L4}
        v_lshrrev_b32 v{t1}, 4, v0
        v_and_b32 v{t0}, 15, v0
        v_lshlrev_b32 v{t0}, 4, v{t0}
        v_lshl_add_u32 v{t0}, v{t1}, 12, v{t0}
        s_lshl_b32 s{T}, s{S_W}, 8
        v_add_u32 v{LV_GA}, s{T}, v{t0}
        v_bfe_u32 v{t0}, v0, 2, 2
        v_lshl_add_u32 v{t0}, v{t1}, 3, v{t0}
        v_lshlrev_b32 v{t2}, 3, v{t2}
        v_bfe_u32 v{t1}, v0, 3, 2
        v_lshl_add_u32 v{LV_TRF}, v{t1}, 5, v{t2}
        v_lshl_add_u32 v{LV_TRF}, v{t0}, 7, v{LV_TRF}
        v_lshrrev_b32 v{t1}, 1, v{t1}
        v_lshl_add_u32 v{LV_TRH}, v{t1}, 5, v{t2}
        v_lshl_add_u32 v{LV_TRH}, v{t0}, 6, v{LV_TRH}
        s_lshr_b32 s{S_PFR}, s2, 3
        s_lshl_b32 s{S_PFR}, s{S_PFR}, 1
        s_lshr_b32 s{T}, s{S_W}, 1
        s_add_u32 s{S_PFR}, s{S_PFR}, s{T}
        s_and_b32 s{S_PFH}, s{S_W}, 1
        s_lshl_b32 s{S_PFH}, s{S_PFH}, 6""")
        g.boot_val()
        a(f"s_waitcnt vmcnt({G1.P})")
        g.stamp("l", "land0")
        a.label("L_l_layer")
        g.l_main(G1, -7, nxt=G2)
        g.stamp("l", "g1end")
        a(f"v_add_u32 v{LV_X}, s{S_LX}, v{LV_L16}\ns_mov_b32 s{S_XSTR}, {TL}")
        if SKIP: a(f"v_add_u32 v{LV_X+1}, 128, v{LV_X}\nv_cmp_gt_u32 vcc, 24, v0\nv_cndmask_b32 v{LV_X}, v{LV_X+1}, v{LV_X}, vcc")
        a(f"v_add_u32 v{LV_X+1}, {KS - 1024}, v{LV_X}\nv_mov_b32 v{LV_X+2}, v{LV_X}\nv_mov_b32 v{LV_X+3}, v{LV_X+1}")
        g.l_xsrd(HB, H_RB)
        g.l_kv_gather()
        g.stamp("l", "kvdone")
        g.l_main(G2, 1, nxt=G3)
        g.l_xsrd(XA, 16*TL)
        a(f"s_waitcnt vmcnt({G3.PW})")
        g.l_main(G3, 3, nxt=G4)
        g.l_xsrd(HB, H_RB)
        g.l_main(G4, 5, nxt=G1, cond_nxt=True)
        a(f"s_cmp_lg_u32 s{S_L}, 0\ns_cbranch_scc1 L_l_fin")
        g.l_xsrd(XA, 16*TL)
        a(f"s_mov_b32 s{S_L}, 1\ns_mov_b32 s{S_FB}, 16\ns_waitcnt vmcnt({G1.PW})\ns_branch L_l_layer")
        a.label("L_l_fin")
        g.wbl("fin")
        g.finish("l")

    def c_frag(g, p):
        RW = 3 if p.NB == 6 else 4
        def xr(par): return [f"ds_read_b128 {vr(XF + par*32 + mb*8 + kk*4, 4)}, v{V_XA+kk} offset:{mb*2048}" for mb in range(4) for kk in range(2)]
        def wr(nb, slot=None):
            ri, off, w = p.nblk[nb]; slot = nb % RW if slot is None else slot
            return [f"ds_read_b64_tr_b16 {vr(WF + slot*8 + kk*4 + 2*h, 2)}, v{V_WA+ri} offset:{off + (32*kk + 4*h)*w}" for kk in range(2) for h in range(2)]
        def mf(par, nb, slot=None):
            out = []; slot = nb % RW if slot is None else slot
            if "x" in g.opt.get("abl", ""): par = 0
            if "w" in g.opt.get("abl", ""): slot %= 2
            sn = g.opt.get("snake", 2)
            od = [(mb, kk ^ (mb & 1) if sn else kk) for mb in range(4) for kk in range(2)]
            if sn == 2 and nb & 1: od = od[::-1]
            for mb, kk in od:
                if True:
                    d = vr(ACC + 4*(nb*4 + mb), 4)
                    X, W = vr(XF + par*32 + mb*8 + kk*4, 4), vr(WF + slot*8 + kk*4, 4)
                    A, B = (W, X) if p.swapped[nb] else (X, W)
                    out.append(f"v_mfma_f32_16x16x32_bf16 {d}, {A}, {B}, {d}")
            return out
        def inter(ms, rs):
            rs = list(rs)
            ab = g.opt.get("abl", "")
            if "x" in ab: rs = ["\n".join(l for l in r.split("\n") if not l.startswith("ds_read_b128")) for r in rs]
            if "w" in ab: rs = ["\n".join(l for l in r.split("\n") if not l.startswith("ds_read_b64_tr")) for r in rs]
            if "m" in ab: ms = [m if i % 2 else "s_nop 3" for i, m in enumerate(ms)]
            for m in ms:
                g.a(m)
                if rs: g.a(rs.pop(0))
            assert not rs
        nwa = 3 if 64 in p.subt else 2
        nxt = [f"s_add_u32 s{S_SLOT}, s{S_SLOT}, 1\ns_cmp_eq_u32 s{S_SLOT}, {p.NST}", f"s_cselect_b32 s{S_DLX}, s{S_KX}, {p.xp}",
               f"s_cselect_b32 s{S_DLW}, s{S_KW}, {p.wp}", f"s_cselect_b32 s{S_SLOT}, 0, s{S_SLOT}"]
        up = [f"v_add_u32 v{r}, s{S_DLX}, v{r}" for r in range(V_XA, V_XA+2)] + [f"v_add_u32 v{r}, s{S_DLW}, v{r}" for r in range(V_WA, V_WA+nwa)]
        up = ["\n".join(up[0:2]), "\n".join(up[2:4])] + up[4:]
        return xr, wr, mf, inter, nxt, up
    def res_reads(g, bias):
        a = g.a
        for mb in range(4):
            for b in range(2): a(f"ds_read_b64 {vr(V_RS+4*mb+2*b,2)}, v{V_RES+b} offset:{2048*mb}")
        if bias:
            a(f"s_lshl_b32 s{T}, s{S_WN}, 7\ns_add_u32 s{T}, s{T}, {L_B2}\nv_and_b32 v{V_CS}, 48, v0\nv_add_u32 v{V_CS}, s{T}, v{V_CS}")
            for b in range(2): a(f"ds_read_b128 {vr(V_RS+16+4*b,4)}, v{V_CS} offset:{64*b}")
    def acc_from_res(g, bias):
        a = g.a
        a("s_waitcnt lgkmcnt(0)")
        for mb in range(4):
            st = []
            for b in range(2):
                for h in range(2):
                    t = ACC + 4*(b*4 + mb) + 2*h; r = V_RS + 4*mb + 2*b + h
                    st.append([f"v_lshlrev_b32 v{t}, 16, v{r}", f"v_and_b32 v{t+1}, 0xffff0000, v{r}"]
                              + ([f"v_pk_add_f32 {vr(t,2)}, {vr(t,2)}, {vr(V_RS+16+4*b+2*h,2)}"] if bias else []))
            g.zipemit(st)
    def c_pre(g, p, reps):
        a = g.a; xr, wr, mf, inter, nxt, up = g.c_frag(p)
        if p is not G1: a(f"v_add_u32 v{V_XA}, {p.x0}, v{V_XA0}\nv_add_u32 v{V_XA+1}, {p.x0 + 1024}, v{V_XA0}")
        for i in range(3 if 64 in p.subt else 2): a(f"v_mov_b32 v{V_WA+i}, v{V_WA0+i}")
        zero = [f"v_mov_b64 {vr(ACC+i,2)}, 0" for i in range(32 if p is G4 else 0, p.NB*16, 2)]
        if p is G4:
            g.acc_from_res(True)
            for l in zero: a(l)
        if p in (G2, G4): zero = []
        if p is G1: zero.append(f"""v_and_b32 v{E1}, 48, v0
            v_and_b32 v{E1+1}, 15, v0
            v_lshlrev_b32 v{E1+1}, 2, v{E1+1}
            s_lshl_b32 s{T}, s{S_WM}, 8
            s_add_u32 s{T}, s{T}, {L_RSTD}
            s_lshl_b32 s{T+1}, s{S_WN}, 7
            s_add_u32 s{T+1}, s{T+1}, {L_CSQ}
            v_add_u32 v{E1+2}, s{T}, v{E1}
            v_add_u32 v{E1+3}, s{T+1}, v{E1+1}
            v_add_u32 v{E1+4}, s{T}, v{E1+1}
            v_add_u32 v{E1+5}, s{T+1}, v{E1}
            v_mov_b32 v{E1+6}, {L_MODE}""")
        if p is G3: zero.append(f"""v_and_b32 v{E3}, 48, v0
            v_and_b32 v{E3+1}, 15, v0
            s_lshl_b32 s{T}, s{S_WM}, 8
            s_add_u32 s{T}, s{T}, {L_RSTD}
            v_lshl_add_u32 v{E3+1}, v{E3+1}, 2, s{T}
            s_lshl_b32 s{T+1}, s{S_WN}, 7
            s_add_u32 s{T+1}, s{T+1}, {L_CS1}
            v_add_u32 v{E3+2}, s{T+1}, v{E3}
            s_lshl_b32 s{T+1}, s{S_WN}, 6
            s_add_u32 s{T+1}, s{T+1}, {L_CS1 + 768}
            v_add_u32 v{E3+3}, s{T+1}, v{E3}""")
        a(f"s_mov_b32 s{S_REM}, 7")
        a(f"s_mov_b32 s{S_CNT}, {reps}\ns_mov_b32 s{S_SLOT}, 0\ns_mov_b32 s{S_KX}, {(-(p.NST-1)*p.xp) & 0xffffffff:#x}\ns_mov_b32 s{S_KW}, {(-(p.NST-1)*p.wp) & 0xffffffff:#x}")
        a("s_waitcnt lgkmcnt(0)\ns_barrier")
        g.stamp("c", p.name + "b0")
        for r in wr(0) + xr(0) + wr(1) + zero: a(r)
    def c_loop(g, p):
        a = g.a; NB = p.NB; xr, wr, mf, inter, nxt, up = g.c_frag(p)
        L = a.uid("cl")
        its = g.stamps and g.opt.get("itst") == p.name
        if its:
            k = g.nst["c"]; g.nst["c"] += 16; g.stn["c"] += [f"i{i}" for i in range(16)]
            a(f"s_lshl_b32 m0, s{S_L}, 5\ns_add_u32 m0, m0, {k}")
        cnt = f"\ns_sub_u32 s{S_CNT}, s{S_CNT}, 1\ns_cmp_lg_u32 s{S_CNT}, 0"
        if NB == 2:
            def nx2(par): return [f"s_add_u32 s{S_SLOT}, s{S_SLOT}, 1\ns_cmp_eq_u32 s{S_SLOT}, 4", f"s_cselect_b32 s{S_DLX}, s{S_KX}, {p.xp}\ns_cselect_b32 s{S_SLOT}, 0, s{S_SLOT}",
                                  f"s_add_u32 s{S_LH}, s{S_LINE}, s{S_LW if par == 0 else S_LX}\ns_and_b32 s{S_LH}, s{S_LH}, 0x1ffff", f"s_sub_u32 s{S_DLW}, s{S_LH}, s{S_LINE}\ns_mov_b32 s{S_LINE}, s{S_LH}"]
            a(f"s_mov_b32 s{S_LINE}, 0")
            for l in nx2(1) + up: a(l)
        g.TAIL = a.uid("tail")
        def bar(par):
            if par == 1 and p is not G4: a(f"s_sub_u32 s{S_REM}, s{S_REM}, 1\ns_waitcnt lgkmcnt(0)\ns_barrier\ns_cbranch_scc1 {g.TAIL}")
            else: a("s_waitcnt lgkmcnt(0)\ns_barrier")
        a(f".p2align {g.opt.get('lal', 5)}")
        a.label(L)
        for par in range(2):
            if NB == 2:
                bar(par)
                nx = wr(0, 2*(1-par)) + xr(1 - par) + wr(1, 2*(1-par) + 1)
                ex = nx2(par) + list(up)
                if par == 1: ex[-1] += cnt
                inter(mf(par, 0, 2*par) + mf(par, 1, 2*par + 1), [nx[2*i] + "\n" + nx[2*i+1] for i in range(8)] + ex)
                continue
            for nb in range(NB):
                if p in (G1, G3) and par == 0 and nb in (g.opt.get("sigb", 1), NB - 2):
                    M, R = a.uid("mid"), a.uid("midr")
                    a(f"s_cmp_lg_u32 s{S_MID}, 0\ns_cbranch_scc1 {M}")
                    a.label(R)
                    keep, g.a = g.a, Asm(); g.a._uid = keep._uid + 3000
                    g.a.label(M)
                    if nb != NB - 2:
                        g.signal_row(3 if p is G3 else -7, V_HK)
                        g.stamp("c", p.name + "xsig")
                    else:
                        g.a(f"s_mov_b32 s{S_MID}, 0\ns_lshl_b32 s{T+10}, s{S_L}, 1\ns_add_u32 s{T+10}, s{T+10}, {1 if p is G3 else 0}")
                        g.job_stats(f"s{T+10}", 224)
                    g.a(f"s_branch {R}")
                    g.cold.append(g.a.text()); g.a = keep
                if nb < NB - 2:
                    a("s_waitcnt lgkmcnt(4)")
                    if its and nb == NB - 3: a(f"s_memrealtime s[{S_ST}:{S_ST+1}]")
                    inter(mf(par, nb), wr(nb + 2) + (nxt if nb == 0 else up if nb == NB - 3 else []))
                elif nb == NB - 2:
                    bar(par)
                    if its: a(f"v_writelane_b32 v{VST}, s{S_ST}, m0\ns_add_u32 m0, m0, 1")
                    nx = wr(0) + xr(1 - par) + wr(1)
                    inter(mf(par, nb), nx[:8])
                else:
                    nx = nx[8:]
                    if par == 1: nx[6] += cnt
                    inter(mf(par, nb), nx)
        a(f"s_cbranch_scc1 {L}")
        return L
    def wbl(g, where):
        if where not in g.opt.get("wbl", ("send",)): return
        a = g.a; D = a.uid("wb")
        a(f"""s_lshr_b32 s{T}, s2, 3
        s_or_b32 s{T}, s{T}, s{S_W}
        s_cmp_ge_u32 s{T}, s{S_L}
        s_cbranch_scc1 {D}
        buffer_wbl2 sc1""")
        a.label(D)
    def c_tail(g, p, extra):
        a = g.a; xr, wr, mf, inter, nxt, up = g.c_frag(p)
        a(".p2align 5"); a.label(g.TAIL)
        ms = mf(1, 0, 2) + mf(1, 1, 3) if p.NB == 2 else mf(1, p.NB - 2) + mf(1, p.NB - 1)
        ex = [l.strip() for e in extra for l in e.split("\n") if l.strip()]
        per = -(-len(ex) // 15)
        inter(ms, ["\n".join(ex[i:i+per]) for i in range(0, len(ex), per)])
        g.stamp("c", *(("loop", True) if p is G2 else (p.name + "loop",)))
    def remote_flag(g, vt):
        g.a(f"s_movk_i32 s{T}, {RXF}\nbuffer_store_dword v{vt}, v{V_FLG}, s[{SWS}:{SWS+3}], s{T} offen sc1")
    def deferred(g):
        g.remote_flag(V_HK)
        g.a(f"v_lshlrev_b32 v{V_CS}, 2, v0\nbuffer_store_dword v{V_SS}, v{V_CS}, s[{SWS}:{SWS+3}], s{T+13} offen sc1")
    def exit_hook(g, L):
        HC = g.a.uid("hkc")
        keep, g.a = g.a, Asm()
        g.a.label(HC); g.a(f"s_mov_b32 s{S_HOOK}, 0\ns_mov_b32 s{S_CNT}, 7")
        g.deferred(); g.a(f"s_branch {L}")
        g.cold.append(g.a.text()); g.a = keep
        return HC
    def c_g1(g):
        a = g.a; D = a.uid("st0"); HA, HB_ = a.uid("hka"), a.uid("hkb")
        g.c_pre(G1, f"s{T+12}")
        a(f"s_cmp_lg_u32 s{S_L}, 0\ns_cbranch_scc1 {D}")
        g.deferred()
        a.label(D)
        L = g.c_loop(G1)
        a(f"s_branch {HA}")
        HC = g.exit_hook(L)
        g.cold.append(f"""{HA}:
        s_cmp_eq_u32 s{S_HOOK}, 3
        s_cbranch_scc1 {HC}
        s_cmp_eq_u32 s{S_HOOK}, 1
        s_cbranch_scc1 {HB_}
        s_mov_b32 s{S_HOOK}, 1
        s_mov_b32 s{S_CNT}, 1
        s_waitcnt vmcnt(0)
        s_branch {L}
        {HB_}:
        s_mov_b32 s{S_HOOK}, 0
        s_mov_b32 s{S_CNT}, {8 - 1 - HOOKA}
        s_cmp_lg_u32 s{S_W}, 0
        s_cbranch_scc1 {L}
        s_mov_b32 s{SM}, s{P_DBG}
        s_mov_b32 s{SM+1}, s{P_DBG+1}
        s_mov_b32 s{SM+2}, 256
        s_mov_b32 s{SM+3}, 0x20000
        s_lshl_b32 s{T}, s{S_XCD}, 5
        v_mov_b32 v{V_HK}, s{S_BOOT}
        buffer_atomic_add v{V_HK}, v{V_ONE}, s[{SM}:{SM+3}], s{T} offen sc1
        s_branch {L}""")
    def c_g4a(g):
        a = g.a; D = a.uid("hkd"); SD = 176
        g.c_pre(G4, 1)
        a(f"s_mov_b32 s{S_HOOK}, 1")
        L = g.c_loop(G4)
        a(f"s_cmp_eq_u32 s{S_HOOK}, 0\ns_cbranch_scc1 {D}\ns_mov_b32 s{S_CNT}, 11\ns_mov_b32 s{S_HOOK}, 0")
        g.signal_row(7, V_HK); g.remote_flag(V_HK); g.wbl("hook")
        a(f"s_branch {L}")
        a.label(D)
        a(f"""s_lshl_b32 s{T+1}, s2, 14
        s_lshl_b32 s{T+2}, s{S_W}, 12
        s_add_u32 s{T+1}, s{T+1}, s{T+2}
        s_xor_b32 s{T+2}, s{T+1}, {1 << 14}
        s_add_u32 s{T+7}, s{T+1}, {XB}
        s_add_u32 s{T+5}, s{T+2}, {XB}
        s_mov_b32 s{S_CNT}, {4 - g.opt.get("xbl", 1)}
        s_mov_b32 s{S_REM}, 3""")
        for mb in range(4):
            for b in range(2):
                for h in range(2):
                    t = ACC + 4*((2+b)*4 + mb) + 2*h
                    a(f"v_cvt_pk_bf16_f32 v{SD+4*mb+2*b+h}, v{t}, v{t+1}")
            a(f"buffer_store_dwordx4 {vr(SD+4*mb,4)}, v{V_L16}, s[{SWS}:{SWS+3}], s{T+5} offen offset:{1024*mb} sc1")
        g.wbl("send")
    def xb_loads(g): return [f"buffer_load_dwordx4 {vr(V_PP+4*mb,4)}, v{V_L16}, s[{SWS}:{SWS+3}], s{T+7} offen offset:{1024*mb} sc1" for mb in range(4)]
    def c_nb2(g):
        a = g.a; D = a.uid("hkd")
        L = g.c_loop(G2)
        for l in g.xb_loads(): a(l)
        a(f"s_branch {L}")

    def phi(g, t, u, dst):
        c = f"s[{S_C}:{S_C+1}]"
        return [f"v_pk_fma_f32 {vr(u,2)}, {vr(t,2)}, {c}, {c} op_sel:[0,0,1] op_sel_hi:[1,0,1]",
                f"v_max_f32 v{t}, s{S_C+2}, v{t}", f"v_max_f32 v{t+1}, s{S_C+2}, v{t+1}",
                f"v_exp_f32 v{u}, v{u} clamp", f"v_exp_f32 v{u+1}, v{u+1} clamp",
                f"v_pk_add_f32 {vr(t,2)}, {vr(t,2)}, {vr(u,2)}",
                f"v_cvt_pk_bf16_f32 v{dst}, v{t}, v{t+1}"]
    def zipemit(g, streams):
        streams = [list(s) for s in streams]
        while any(streams):
            for s in streams:
                if s: g.a(s.pop(0))

    def clear_kv(g, layer, t0):
        g.a(f"""v_lshlrev_b32 v{t0}, 4, v0
        v_and_b32 v{t0+1}, 15, v0
        v_lshlrev_b32 v{t0+1}, 2, v{t0+1}
        s_lshl_b32 s{T}, s{S_CB}, 16
        s_lshl_b32 s{T+1}, s{S_RB}, 10
        s_add_u32 s{T}, s{T}, s{T+1}
        s_lshl_b32 s{T+1}, s{S_W}, 14
        s_add_u32 s{T}, s{T}, s{T+1}
        s_lshr_b32 s{T+1}, s{T}, 4
        s_add_u32 s{T}, s{T}, {KVP + layer*KVP_L}
        s_add_u32 s{T+1}, s{T+1}, {ZP + layer*ZP_L}
        buffer_store_dwordx4 {vr(V_SEN,4)}, v{t0}, s[{SWS}:{SWS+3}], s{T} offen sc1
        buffer_store_dword v{V_SEN}, v{t0+1}, s[{SWS}:{SWS+3}], s{T+1} offen sc1""")
    def clear_xb(g, t0):
        g.a(f"""v_mov_b64 {vr(V_SEN,2)}, -1
        v_mov_b64 {vr(V_SEN+2,2)}, -1
        v_lshlrev_b32 v{t0}, 4, v0
        s_lshl_b32 s{T}, s2, 14
        s_lshl_b32 s{T+1}, s{S_W}, 12
        s_add_u32 s{T}, s{T}, s{T+1}
        s_add_u32 s{T}, s{T}, {XB}""")
        for mb in range(4): g.a(f"buffer_store_dwordx4 {vr(V_SEN,4)}, v{t0}, s[{SWS}:{SWS+3}], s{T} offen offset:{1024*mb} sc1")
    def c_epi_g1(g):
        a = g.a
        acc = lambda nb, mb: ACC + 4*(nb*4 + mb)
        R, NM, PK, RQ, CSQ_, CSN = 16, 32, 48, 64, 72, 80
        VV, PQ, KV, U, ONE, AD = 88, 208, 224, E1, 248, 208
        eps2 = f"s[{S_C+2}:{S_C+3}]"
        ex = [f"ds_read_b32 v{CSN+2*i}, v{U+3} offset:{256*(1 + i//2) + 64*(i%2)}" for i in range(4)]
        for mb in range(4):
            ex.append(f"ds_read_b128 {vr(NM+4*mb,4)}, v{U+2} offset:{512 + 64*mb}\nds_read_b128 {vr(R+4*mb,4)}, v{U+2} offset:{64*mb}")
        ex.append(f"ds_read_b32 v{U+7}, v{U+6}")
        sa = f"""s_mov_b32 s{S_C}, {f2u(LOG2E):#x}
        s_mov_b32 s{S_C+1}, {f2u(-EPS*LOG2E):#x}
        s_mov_b32 s{S_C+2}, {f2u(EPS):#x}
        s_mov_b32 s{S_C+3}, 0
        s_mul_i32 s{T}, s{S_W}, 3072
        s_add_u32 s{T}, s{T}, {L_XCH}
        s_xor_b32 s{T+1}, s{S_W}, 2
        s_mul_i32 s{T+1}, s{T+1}, 3072
        s_add_u32 s{T+1}, s{T+1}, {L_XCH}
        v_lshl_add_u32 v{AD}, v0, 4, s{T}
        v_lshl_add_u32 v{AD+1}, v0, 4, s{T+1}
        s_lshl_b32 s{T}, s{S_L}, 20
        s_lshl_b32 s{T+1}, s{S_CB}, 16
        v_lshlrev_b32 v{AD+2}, 4, v0
        s_add_u32 s{T}, s{T}, s{T+1}
        s_lshl_b32 s{T+1}, s{S_WN}, 15
        v_and_b32 v{AD+3}, 15, v0
        s_add_u32 s{T}, s{T}, s{T+1}
        s_lshl_b32 s{T+1}, s{S_WM}, 14
        v_cmp_eq_u32 vcc, 0, v{AD+3}
        s_add_u32 s{T}, s{T}, s{T+1}
        s_lshl_b32 s{T+1}, s{S_RB}, 10
        v_mov_b32 v{AD+3}, {WSZ}
        s_add_u32 s{T}, s{T}, s{T+1}
        s_lshr_b32 s{T+1}, s{T}, 4
        v_cndmask_b32 v{AD+3}, v{AD+3}, v0, vcc
        s_add_u32 s{T}, s{T}, {KVP}
        s_add_u32 s{T+1}, s{T+1}, {ZP}"""
        g.c_tail(G1, ex + [sa] + [f"v_mov_b32 v{ONE+i}, 0x3f803f80" for i in range(4)])
        a("s_waitcnt lgkmcnt(0)")
        for mb in range(4): a(f"ds_read2_b32 {vr(RQ+2*mb,2)}, v{U+4} offset0:{16*mb} offset1:{128 + 16*mb}")
        for b in range(2): a(f"ds_read_b128 {vr(CSQ_+4*b,4)}, v{U+5} offset:{64*b}")
        a(f"v_readfirstlane_b32 s{S_MODE}, v{U+7}")
        def kvm(u2, ebs):
            out = []
            for eb in ebs:
                for db in range(2):
                    d = vr(KV + 8*eb + 4*db, 4)
                    B = vr(VV + 8*eb + 4*u2, 4) if eb < 2 else vr(ONE, 4)
                    out.append(f"v_mfma_f32_16x16x32_bf16 {d}, {vr(PK + 8*db + 4*u2, 4)}, {B}, {'0' if u2 == 0 else d}")
            return out
        for mb in range(4):
            st = []
            for b in range(2):
                for h in range(2):
                    t = acc(2+b, mb) + 2*h; u = U + 2*(2*b + h)
                    st.append([f"v_pk_fma_f32 {vr(u,2)}, {vr(NM+4*mb+2*h,2)}, {vr(CSN+2*b,2)}, {eps2} op_sel_hi:[1,0,0]",
                               f"v_pk_fma_f32 {vr(t,2)}, {vr(t,2)}, {vr(R+4*mb+2*h,2)}, {vr(u,2)}"]
                              + g.phi(t, u, PK + 8*b + 2*mb + h))
            if mb == 2: st.append(kvm(0, (2, 0, 1)))
            g.zipemit(st)
            st = []
            for b in range(2):
                for h in range(2):
                    t = acc(4+b, mb) + 2*h; u = U + 2*(2*b + h)
                    st.append([f"v_pk_mul_f32 {vr(u,2)}, {vr(NM+4*mb+2*h,2)}, {vr(CSN+4+2*b,2)} op_sel_hi:[1,0]",
                               f"v_pk_fma_f32 {vr(t,2)}, {vr(t,2)}, {vr(R+4*mb+2*h,2)}, {vr(u,2)}",
                               f"v_cvt_pk_bf16_f32 v{VV + 8*b + 2*mb + h}, v{t}, v{t+1}"])
            if mb == 3: st.append(kvm(1, (2,)))
            g.zipemit(st)
        W1 = a.uid("kvw"); W2 = a.uid("kvx")
        a(f"s_cmp_eq_u32 s{S_WM}, 0\ns_cbranch_scc0 {W1}")
        for wm in range(2):
            if wm == 1: a.label(W1)
            keep = [KV + 8*wm, KV + 8*wm + 4, KV + 16 + 4*wm]
            send = [KV + 8*(1-wm), KV + 8*(1-wm) + 4, KV + 16 + 4*(1-wm)]
            for l in kvm(1, (1 - wm, wm)): a(l)
            for i in (2, 0, 1): a(f"ds_write_b128 v{AD}, {vr(send[i],4)} offset:{1024*i}")
            a("s_waitcnt lgkmcnt(0)\ns_barrier")
            for i in range(3): a(f"ds_read_b128 {vr(R+4*i,4)}, v{AD+1} offset:{1024*i}")
            for i in range(3):
                a(f"s_waitcnt lgkmcnt({2-i})")
                for h in range(2): a(f"v_pk_add_f32 {vr(R+4*i+2*h,2)}, {vr(R+4*i+2*h,2)}, {vr(keep[i]+2*h,2)}")
            if wm == 0: a(f"s_branch {W2}")
        a.label(W2)
        for d in range(4): a(f"v_cvt_pk_bf16_f32 v{NM+d}, v{R+2*d}, v{R+2*d+1}")
        a(f"""buffer_store_dwordx4 {vr(NM,4)}, v{AD+2}, s[{SWS}:{SWS+3}], s{T} offen sc1
        buffer_store_dwordx4 {vr(R+8,4)}, v{AD+3}, s[{SWS}:{SWS+3}], s{T+1} offen sc1""")
        if g.opt.get("bk1b", 1): a("s_barrier")
        g.stamp("c", "kvst")
        for mb in range(4):
            st = []
            for b in range(2):
                for h in range(2):
                    t = acc(b, mb) + 2*h; u = U + 2*(2*b + h)
                    st.append([f"v_pk_fma_f32 {vr(u,2)}, {vr(CSQ_+4*b+2*h,2)}, {vr(RQ+2*mb,2)}, {eps2} op_sel:[0,1,0] op_sel_hi:[1,1,0]",
                               f"v_pk_fma_f32 {vr(t,2)}, {vr(t,2)}, {vr(RQ+2*mb,2)}, {vr(u,2)} op_sel_hi:[1,0,1]"]
                              + g.phi(t, u, PQ + 4*mb + 2*b + h))
            g.zipemit(st)
        if g.ctrickle: g.job_trickle(g.ctrickle, T+4, T+6)
        a(f"""s_lshl_b32 s{T}, s{S_WN}, 11
        s_add_u32 s{T}, s{T}, {L_KVF}
        v_lshl_add_u32 v{U+1}, v0, 4, s{T}
        s_lshl_b32 s{T}, s{S_WN}, 10
        v_add_u32 v{U+3}, s{T}, v{V_XA0}
        v_add_u32 v{U+3}, {G2.x0}, v{U+3}
        s_add_u32 s{T}, s{T}, {L_ZF}
        v_lshl_add_u32 v{U+2}, v0, 4, s{T}
        s_mul_i32 s{T}, s{S_RB}, {H_RB}
        s_and_b32 s{T+1}, s{S_CB}, 8
        s_lshl_b32 s{T+1}, s{T+1}, 1
        s_add_u32 s{T+1}, s{T+1}, s{S_CB}
        s_lshl_b32 s{T+1}, s{T+1}, {LT}
        s_add_u32 s{T}, s{T}, s{T+1}
        s_add_u32 s{T+2}, s{T}, {HB}
        s_add_u32 s{T+3}, s{T+2}, 4096""")
        g.stamp("c", "kvflag")
        if g.ctrickle: a("s_waitcnt lgkmcnt(0)")
        a(f"""s_barrier
        ds_read_b128 {vr(R+8,4)}, v{U+2}
        ds_read_b128 {vr(R,4)}, v{U+1}
        ds_read_b128 {vr(R+4,4)}, v{U+1} offset:1024""")
        g.stamp("c", "bk2")
        a("s_waitcnt lgkmcnt(2)")
        for mb in range(4): a(f"v_mfma_f32_16x16x32_bf16 {vr(acc(2,mb),4)}, {vr(R+8,4)}, {vr(PQ+4*mb,4)}, 0")
        a("s_waitcnt lgkmcnt(0)")
        for mb in range(4):
            for eb in range(2): a(f"v_mfma_f32_16x16x32_bf16 {vr(acc(eb,mb),4)}, {vr(R+4*eb,4)}, {vr(PQ+4*mb,4)}, 0")
        for mb in range(4): a(f"v_add_f32 v{acc(2,mb)}, s{S_C+2}, v{acc(2,mb)}")
        for mb in range(4): a(f"v_rcp_f32 v{acc(2,mb)}, v{acc(2,mb)}")
        ln = []
        for mb in range(4):
            for eb in range(2):
                for h in range(2):
                    t = acc(eb, mb) + 2*h
                    ln.append(f"v_pk_mul_f32 {vr(t,2)}, {vr(t,2)}, {vr(acc(2,mb),2)} op_sel_hi:[1,0]")
            for eb in range(2):
                for h in range(2):
                    t = acc(eb, mb) + 2*h
                    ln.append(f"v_cvt_pk_bf16_f32 v{acc(3,mb) + 2*eb + h}, v{t}, v{t+1}")
            ln.append(f"buffer_store_dwordx4 {vr(acc(3,mb),4)}, v{V_FS}, s[{SWS}:{SWS+3}], s{T+2+mb//2} offen offset:{2048*(mb%2)}")
            ln.append(f"ds_write_b128 v{U+3}, {vr(acc(3,mb),4)} offset:{2048*mb}")
        for l in ln: a(l + (" sc1" if l.startswith("buffer") else ""))

    def c_epi_g24(g):
        a = g.a
        acc = lambda nb, mb: ACC + 4*(nb*4 + mb)
        BI, U, XO = 32, 40, 80
        NB_ = a.uid("nob"); PL = a.uid("xpl"); PC = a.uid("xpc")
        g.c_tail(G2, [f"""s_lshl_b32 s{T+1}, s{S_RB}, {LT+4}
        s_lshl_b32 s{T+2}, s{S_CB}, {LT}
        s_add_u32 s{T+2}, s{T+2}, s{T+1}
        s_add_u32 s{T+2}, s{T+2}, {XA}
        s_add_u32 s{T+3}, s{T+2}, 4096
        s_lshl_b32 s{T}, s{S_WN}, 10
        s_add_u32 s{T}, s{T}, {G1.x0}
        v_add_u32 v{U+4}, s{T}, v{V_XA0}"""])
        a(f"s_cmp_eq_u32 s{S_G4}, 0\ns_cbranch_scc1 {NB_}")
        g.cold.append(f"{PL}:\n" + "\n".join(g.xb_loads()) + f"\ns_branch {PC}")
        a.label(PC)
        a("s_waitcnt vmcnt(0)")
        for mb in range(4):
            p0 = V_PP + 4*mb
            if mb == 0: a(f"v_max3_u32 v{U+3}, v{p0}, v{p0+1}, v{p0+2}\nv_max_u32 v{U+3}, v{U+3}, v{p0+3}")
            else: a(f"v_max3_u32 v{U+3}, v{U+3}, v{p0}, v{p0+1}\nv_max3_u32 v{U+3}, v{U+3}, v{p0+2}, v{p0+3}")
        a(f"v_cmp_eq_u32 vcc, -1, v{U+3}")
        g.retry(PL)
        g.stamp("c", "g4pflag")
        for mb in (3, 2, 1, 0):
            st = []
            for b in range(2):
                for h in range(2):
                    t = acc(b, mb) + 2*h; u = BI + 2*(2*b+h); r = V_PP + 4*mb + 2*b + h
                    st.append([f"v_lshlrev_b32 v{u}, 16, v{r}", f"v_and_b32 v{u+1}, 0xffff0000, v{r}", f"v_pk_add_f32 {vr(t,2)}, {vr(t,2)}, {vr(u,2)}"])
            g.zipemit(st)
        a(f"s_cmp_lg_u32 s{S_L}, 0\ns_cbranch_scc1 L_c_fin")
        a.label(NB_)
        for mb in (3, 2, 1, 0):
            for b in range(2):
                for h in range(2): a(f"v_cvt_pk_bf16_f32 v{XO+4*mb+2*b+h}, v{acc(b, mb) + 2*h}, v{acc(b, mb) + 2*h + 1}")
            a(f"buffer_store_dwordx4 {vr(XO+4*mb,4)}, v{V_FS}, s[{SWS}:{SWS+3}], s{T+2+mb//2} offen offset:{2048*(mb%2)} sc1")
        for mb in (3, 2, 1, 0):
            a(f"ds_write_b128 v{U+4}, {vr(XO+4*mb,4)} offset:{2048*mb}")
            for b in range(2): a(f"ds_write_b64 v{V_RES+b}, {vr(XO+4*mb+2*b,2)} offset:{2048*mb}")
        a(f"s_mov_b32 s{S_MID}, 1\ns_mov_b32 s{S_HOOK}, 3")

    def c_epi_g3(g):
        a = g.a
        acc = lambda nb, mb: ACC + 4*(nb*4 + mb)
        RQ, U, HO = 80, 100, 224
        CS = lambda nb: 16 + 8*nb
        B1 = lambda nb: 20 + 8*nb
        c = f"s[{S_C}:{S_C+1}]"
        ex = [f"ds_read2_b32 {vr(RQ+2*mb,2)}, v{E3+1} offset0:{16*mb} offset1:{128 + 16*mb}" for mb in range(4)]
        for nb in range(7):
            ad, off = (E3+2, 256*(nb//2) + 64*(nb%2)) if nb < 6 else (E3+3, 0)
            ex.append(f"ds_read_b128 {vr(CS(nb),4)}, v{ad} offset:{off}\nds_read_b128 {vr(B1(nb),4)}, v{ad} offset:{off + L_B1 - L_CS1}")
        sa = (f"""s_mov_b32 s{S_C}, {f2u(GC2):#x}
        s_mov_b32 s{S_C+1}, {f2u(GC1):#x}
        s_and_b32 s{T+6}, s{S_CB}, 4
        s_mul_i32 s{T}, s{S_RB}, {H_RB}
        s_add_u32 s{T}, s{T}, {HB}
        s_and_b32 s{T+1}, s{S_CB}, 7
        s_lshl_b32 s{T+1}, s{T+1}, {LT}
        s_add_u32 s{T}, s{T}, s{T+1}
        s_lshr_b32 s{T+1}, s{S_CB}, 3
        s_mul_i32 s{T+2}, s{T+1}, {24*TL}
        s_add_u32 s{T+2}, s{T+2}, s{T}
        s_add_u32 s{T+3}, s{T+2}, 4096
        s_mul_i32 s{T+4}, s{S_RB}, {H_RB}
        s_lshr_b32 s{T+1}, s{S_CB}, 1
        s_lshl_b32 s{T+1}, s{T+1}, {LT}
        s_add_u32 s{T+4}, s{T+4}, s{T+1}
        s_and_b32 s{T+1}, s{S_CB}, 1
        s_lshl_b32 s{T+1}, s{T+1}, {LK}
        s_add_u32 s{T+4}, s{T+4}, s{T+1}
        s_add_u32 s{T+4}, s{T+4}, {HB + 48*TL}
        s_mul_i32 s{T+1}, s{S_WN}, {KS - 8}
        s_sub_u32 s{T+4}, s{T+4}, s{T+1}
        s_add_u32 s{T+5}, s{T+4}, 4096""")
        g.c_tail(G3, ex[:8] + [sa])
        a("s_waitcnt lgkmcnt(0)")
        for l in ex[8:]: a(l)
        def gelu(nb, mb, h, u, dst):
            t = acc(nb, mb) + 2*h
            return [f"v_pk_fma_f32 {vr(u,2)}, {vr(CS(nb)+2*h,2)}, {vr(RQ+2*mb,2)}, {vr(B1(nb)+2*h,2)} op_sel:[0,1,0] op_sel_hi:[1,1,1]",
                    f"v_pk_fma_f32 {vr(t,2)}, {vr(t,2)}, {vr(RQ+2*mb,2)}, {vr(u,2)} op_sel_hi:[1,0,1]",
                    f"v_pk_mul_f32 {vr(u,2)}, {vr(t,2)}, {vr(t,2)}",
                    f"v_pk_fma_f32 {vr(u,2)}, {vr(u,2)}, {c}, {c} op_sel:[0,0,1] op_sel_hi:[1,0,1]",
                    f"v_pk_mul_f32 {vr(u,2)}, {vr(u,2)}, {vr(t,2)}",
                    f"v_exp_f32 v{u}, v{u}\nv_exp_f32 v{u+1}, v{u+1}",
                    f"v_pk_add_f32 {vr(u,2)}, {vr(u,2)}, 1.0 op_sel_hi:[1,0]",
                    f"v_rcp_f32 v{u}, v{u}\nv_rcp_f32 v{u+1}, v{u+1}",
                    f"v_pk_mul_f32 {vr(t,2)}, {vr(t,2)}, {vr(u,2)}",
                    f"v_cvt_pk_bf16_f32 v{dst}, v{t}, v{t+1}"]
        k = 0
        for t3 in (0, 1, 3, 2):
            if t3 == 1: a("s_waitcnt lgkmcnt(0)")
            if t3 == 3:
                for m2 in range(2):
                    o = HO + 4*(k % 4); k += 1
                    g.zipemit([gelu(6, 2*m2 + b, h, U + 4 + 2*(2*b+h), o + 2*b + h) for b in range(2) for h in range(2)])
                    for b in range(2):
                        a(f"buffer_store_dwordx2 {vr(o+2*b,2)}, v{V_FS}, s[{SWS}:{SWS+3}], s{T+4+m2} offen offset:{2048*b}")
                continue
            if t3 == 2: g.res_reads(True)
            if t3 == 2 and g.opt.get("l2dup", 0):
                keep, g.a = g.a, Asm()
                for mb in range(4):
                    o = HO + 4*(k % 4); k += 1
                    g.zipemit([gelu(2*t3 + b, mb, h, U + 4 + 2*(2*b+h), o + 2*b + h) for b in range(2) for h in range(2)])
                    g.a(f"buffer_store_dwordx4 {vr(o,4)}, v{V_FS}, s[{SWS}:{SWS+3}], s{T+2+mb//2} offen offset:{2048*(mb%2)}")
                ln = [l.strip() for l in g.a.lines]; g.a = keep
                g.stores_by_mode(ln, T+6, 4)
                continue
            for mb in range(4):
                o = HO + 4*(k % 4); k += 1
                g.zipemit([gelu(2*t3 + b, mb, h, U + 4 + 2*(2*b+h), o + 2*b + h) for b in range(2) for h in range(2)])
                st = f"buffer_store_dwordx4 {vr(o,4)}, v{V_FS}, s[{SWS}:{SWS+3}], s{T+2+mb//2} offen offset:{2048*(mb%2)}"
                if t3 == 2: g.stores_by_mode([st], T+6, 4)
                else: a(st)
                if (t3, mb) == (1, g.opt.get("h0sig", 1)):
                    g.signal_row(5, V_HK, mb + 1)
                    g.stamp("c", "h0sig")
            if t3 < 2: a(f"s_add_u32 s{T+2}, s{T+2}, {8*TL}\ns_add_u32 s{T+3}, s{T+3}, {8*TL}")
        g.stamp("c", "hsig")

    def compute(g):
        a = g.a; t0, t1, t2, t3 = 16, 17, 18, 19
        a(".p2align 3")
        a.label("L_compute")
        g.stamp("c", "start")
        if g.stamps:
            a(f"v_writelane_b32 v{VST}, s92, {g.nst['c']}"); g.nst["c"] += 1; g.stn["c"].append("t00")
        if g.opt.get("spf", 1):
            a(f"""s_lshr_b32 s{T}, s2, 3
            s_lshl_b32 s{T}, s{T}, 2
            s_add_u32 s{T}, s{T}, s{S_W}
            s_and_b32 s{T+1}, s{T}, 1
            s_lshl_b32 s{T+1}, s{T+1}, 6
            s_and_b32 s{T+2}, s{S_CB}, 8
            s_lshl_b32 s{T+2}, s{T+2}, 7
            s_add_u32 s{T+1}, s{T+1}, s{T+2}
            s_lshr_b32 s{T}, s{T}, 1
            s_and_b32 s{T+2}, s{S_RB}, 12
            s_lshl_b32 s{T+3}, s{T+2}, 6
            s_add_u32 s{T+3}, s{T+3}, s{T}
            s_mul_i32 s{T+3}, s{T+3}, 6144
            s_add_u32 s{T+3}, s{T+3}, s{T+1}
            s_add_u32 s{T+4}, s{P_WQKV}, s{T+3}
            s_addc_u32 s{T+5}, s{P_WQKV+1}, 0
            s_add_u32 s{T+6}, s{T+4}, {128*6144}
            s_addc_u32 s{T+7}, s{T+5}, 0
            s_lshl_b32 s{T+2}, s{T+2}, 7
            s_add_u32 s{T+2}, s{T+2}, s{T}
            s_lshl_b32 s{T+2}, s{T+2}, 11
            s_add_u32 s{T+2}, s{T+2}, s{T+1}
            s_add_u32 s{T+8}, s{P_X}, s{T+2}
            s_addc_u32 s{T+9}, s{P_X+1}, 0""")
            for t in (2, 1, 0):
                for k in range(4): a(f"s_load_dword s{T+11}, s[{T+4+2*(k//2)}:{T+5+2*(k//2)}], {384 + 2048*t + (k%2)*64*6144}")
            if g.opt.get("spf", 1) > 1:
                for k in range(8): a(f"s_load_dword s{T+11}, s[{T+8}:{T+9}], {384 + k*64*2048}")
        a(f"""s_getpc_b64 s[{T}:{T+1}]
        L_pc:
        s_sub_u32 s{T}, s{T}, L_pc-{NAME}
        s_subb_u32 s{T+1}, s{T+1}, 0
        s_lshr_b32 s{T+2}, s2, 3
        s_lshl_b32 s{T+2}, s{T+2}, 2
        s_add_u32 s{T+2}, s{T+2}, s{S_W}
        s_lshl_b32 s{T+2}, s{T+2}, 9
        v_and_b32 v{t0}, 3, v0
        v_lshl_add_u32 v{t0}, v{t0}, 7, s{T+2}
        v_min_u32 v{t0}, L_end-{NAME}, v{t0}
        global_load_dword v{V_HK}, v{t0}, s[{T}:{T+1}]""")
        a(f"""s_lshr_b32 s{S_WM}, s{S_W}, 1
        s_and_b32 s{S_WN}, s{S_W}, 1
        v_and_b32 v{t0}, 15, v0
        v_lshrrev_b32 v{t1}, 4, v0
        v_lshrrev_b32 v{t2}, 1, v{t0}
        v_xor_b32 v{t3}, v{t2}, v{t1}
        v_lshlrev_b32 v{t3}, 4, v{t3}
        v_lshl_add_u32 v{t3}, v{t0}, 7, v{t3}
        s_lshl_b32 s{T}, s{S_WM}, 13
        v_add_u32 v{V_XA}, s{T}, v{t3}
        v_add_u32 v{V_XA}, {G1.x0}, v{V_XA}
        v_xor_b32 v{V_XA+1}, 64, v{V_XA}
        v_lshl_add_u32 v{V_XA0}, v0, 4, s{T}
        s_lshl_b32 s{T+1}, s{S_WN}, {LK}
        v_add_u32 v{V_FS}, s{T+1}, v{V_XA0}
        v_add_u32 v{V_RES}, {128 if SKIP else 0}, v{V_FS}
        v_cmp_gt_u32 vcc, 24, v0
        v_cndmask_b32 v{V_FS}, v{V_RES}, v{V_FS}, vcc
        s_lshl_b32 s{T+1}, s{S_WN}, 2
        v_lshrrev_b32 v{t3}, 5, v0
        v_add_u32 v{t3}, s{T+1}, v{t3}
        v_xor_b32 v{t3}, v{t3}, v{t2}
        v_lshlrev_b32 v{t3}, 4, v{t3}
        v_lshl_add_u32 v{t3}, v{t0}, 7, v{t3}
        v_and_b32 v{t2}, 1, v{t1}
        v_lshl_add_u32 v{t3}, v{t2}, 3, v{t3}
        s_add_u32 s{T}, s{T}, {RES}
        v_add_u32 v{V_RES}, s{T}, v{t3}
        v_xor_b32 v{V_RES+1}, 32, v{V_RES}
        v_bfe_u32 v{t0}, v0, 2, 2
        v_lshl_add_u32 v{t0}, v{t1}, 3, v{t0}
        v_bfe_u32 v{t2}, v0, 3, 2
        v_and_b32 v{t3}, 3, v0
        v_lshlrev_b32 v{t3}, 3, v{t3}
        s_lshl_b32 s{T}, s{S_WN}, 1
        v_xor_b32 v{V_WA0}, s{T}, v{t2}
        v_lshl_add_u32 v{V_WA0}, v{V_WA0}, 5, v{t3}
        v_lshl_add_u32 v{V_WA0}, v{t0}, 7, v{V_WA0}
        v_xor_b32 v{V_WA0+1}, 32, v{V_WA0}
        v_lshrrev_b32 v{t2}, 1, v{t2}
        v_xor_b32 v{t2}, s{S_WN}, v{t2}
        v_lshl_add_u32 v{t2}, v{t2}, 5, v{t3}
        v_lshl_add_u32 v{V_WA0+2}, v{t0}, 6, v{t2}
        v_cmp_eq_u32 vcc, 0, v0
        v_mov_b32 v{t0}, {WSZ}
        v_cndmask_b32 v{V_ONE}, v{t0}, 0, vcc
        s_lshl_b32 s{T}, s{S_RB}, 8
        s_lshl_b32 s{T+1}, s{S_CB}, 4
        s_add_u32 s{T}, s{T}, s{T+1}
        s_lshl_b32 s{T+1}, s{S_W}, 2
        s_add_u32 s{T}, s{T}, s{T+1}
        v_add_u32 v{V_FLG}, s{T}, v{V_ONE}
        v_lshlrev_b32 v{V_L16}, 4, v0""")
        a(f"""v_mov_b64 {vr(V_SEN,2)}, -1
        v_mov_b64 {vr(V_SEN+2,2)}, -1
        v_mov_b32 v{V_CS}, 0
        s_movk_i32 s{T+3}, {RXF}
        buffer_store_dword v{V_CS}, v{V_FLG}, s[{SWS}:{SWS+3}], 0 offen sc1
        buffer_store_dword v{V_CS}, v{V_FLG}, s[{SWS}:{SWS+3}], s{T+3} offen sc1
        v_lshlrev_b32 v{t1}, 2, v0
        s_lshl_b32 s{T}, s{S_CB}, 14
        s_lshl_b32 s{T+1}, s{S_RB}, 10
        s_add_u32 s{T}, s{T}, s{T+1}
        s_lshl_b32 s{T+2}, s{S_W}, 8
        s_add_u32 s{T}, s{T}, s{T+2}
        s_add_u32 s{T}, s{T}, {CSP + CSP_I}
        buffer_store_dword v{V_SEN}, v{t1}, s[{SWS}:{SWS+3}], s{T} offen sc1""")
        g.clear_kv(0, t0)
        g.boot_val()
        a("s_waitcnt vmcnt(5) lgkmcnt(0)")
        g.job_stats(0)
        a(f"v_mov_b32 v{V_HK}, 0")
        a(f"s_mov_b32 s{S_HOOK}, 2\ns_mov_b32 s{T+12}, {HOOKA}\ns_mov_b32 s{S_MID}, 0")
        g.stamp("c", "init")
        a.label("L_c_layer")
        g.c_g1()
        g.c_epi_g1()
        w8 = g.opt.get("w8", 1)
        a(f"s_mov_b32 s{S_G4}, 0\ns_mov_b32 s{S_LX}, {8192 if w8 else 32768}\ns_mov_b32 s{S_LW}, {24576 if w8 else 32768}")
        g.c_pre(G2, 8)
        g.res_reads(False)
        g.signal_row(1, V_HK); g.remote_flag(V_HK)
        g.stamp("c", "osig")
        g.acc_from_res(False)
        a.label("L_c_nb2")
        g.c_nb2()
        g.c_epi_g24()
        a(f"""s_cmp_eq_u32 s{S_G4}, 0
        s_cbranch_scc1 L_c_g3
        v_add_u32 v{V_XA}, {G1.x0}, v{V_XA0}
        v_add_u32 v{V_XA+1}, {G1.x0 + 1024}, v{V_XA0}
        s_mov_b32 s{S_L}, 1
        s_mov_b32 s{S_FB}, 16
        s_mov_b32 s{T+12}, 1
        s_branch L_c_layer""")
        a.label("L_c_g3")
        g.c_pre(G3, 1)
        L = g.c_loop(G3)
        a(f"s_branch {g.exit_hook(L)}")
        g.c_epi_g3()
        a(f"s_mov_b32 s{S_G4}, 1\ns_mov_b32 s{S_LX}, 32768\ns_mov_b32 s{S_LW}, 32768")
        g.c_g4a()
        g.stamp("c", "g4send")
        a("s_branch L_c_nb2")
        a.label("L_c_fin")
        for mb in (3, 2, 1, 0):
            for b in range(2):
                for h in range(2): a(f"v_cvt_pk_bf16_f32 v{80+4*mb+2*b+h}, v{ACC + 4*(4*b + mb) + 2*h}, v{ACC + 4*(4*b + mb) + 2*h + 1}")
            for b in range(2): a(f"ds_write_b64 v{V_RES+b}, {vr(80+4*mb+2*b,2)} offset:{2048*mb}")
        g.finish("c")

    def build(g):
        g.entry(); g.loader(); g.compute()
        for c in g.cold: g.a(c)
        g.a.label("L_end"); g.a("s_endpgm")
        rep = []
        lines = fixup.fix_hazards(g.a.lines, rep)
        lines = fixup.fix_align(lines)
        g.haz = rep
        bad = fixup.verify_cfg(lines)
        for b in bad: print("CFG HAZARD", b)
        hdr = open("cdna_kernels/" + NAME[:-7] + ".s.ref").read().split("; Override")[0]
        out = hdr + f"; @launch grid=(256,1,1) block=(512,1,1) lds={LDS_BYTES}\n"
        out += '.amdgcn_target "amdgcn-amd-amdhsa--gfx950"\n.text\n' + kernel_header(NAME) + "\n".join(lines) + "\n"
        out += '.fill 64, 4, 0xBF800000\n.section .rodata,"a"\n.p2align 6\n' + kernel_desc(NAME, 256, 256, 102)
        return out

V_FS, V_RES, V_XA, V_WA, V_XA0, V_WA0, V_ONE, V_FLG = 1, 2, 4, 6, 9, 10, 13, 14
XF, WF, ACC = 16, 80, 112
E1, E3, V_RS = 104, 248, 144
V_CS, V_SS, V_HK, V_SEN, V_L16, V_PP = 252, 253, 254, 244, 15, 192
LV_X, LV_W, LV_T = 4, 8, 16
LV_KN, LV_KF, LV_KH, LV_CH, LV_CHH, LV_TRF, LV_TRH, LV_DUM, LV_L4, LV_L16, LV_T4, LV_GA, LV_PA, LV_PV = range(24, 38)

if __name__ == "__main__":
    import argparse, json
    ap = argparse.ArgumentParser(); ap.add_argument("out"); ap.add_argument("--stamps", action="store_true"); ap.add_argument("--slow", action="store_true"); ap.add_argument("--opt", default="{}")
    ar_ = ap.parse_args()
    g = Gen(stamps=ar_.stamps, force_slow=ar_.slow, opt=eval(ar_.opt))
    txt = g.build()
    open(ar_.out, "w").write(txt)
    json.dump(g.stn, open(ar_.out + ".stamps", "w"))
    print("hazard nops:", len(g.haz))
    for h in sorted(set(g.haz)):
        if " lds" not in h[1]: print("  ", h)
```
